```python
import torch

def _softmax(x, axis=-1):
    return torch.softmax(x, dim=axis)
def _gelu(x):
    return torch.nn.functional.gelu(x, approximate="tanh")
def _silu(x):
    return torch.nn.functional.silu(x)
def _sigmoid(x):
    return torch.sigmoid(x)
def _layernorm(x, axis=-1, eps=1e-5):
    m = x.mean(dim=axis, keepdim=True)
    v = x.var(dim=axis, keepdim=True, unbiased=False)
    return (x - m) / torch.sqrt(v + eps)
def _scatter_add(tgt, idx, src, axis=0):
    return tgt.clone().index_add_(axis, idx, src)
def _segment_sum(src, seg, n):
    out = torch.zeros((n,) + src.shape[1:], dtype=src.dtype)
    return out.index_add_(0, seg, src)
def _pad(x, pw):
    flat = tuple(v for pair in reversed(pw) for v in pair)
    return torch.nn.functional.pad(x, flat)

kernel_name = 'sequential_preLN__spectral_fnet__swiglu_ffn__prompt'

def setup_inputs():

    _w = (lambda a: (lambda t: t.to(torch.bfloat16) if t.is_floating_point() else t)(torch.as_tensor(a)))
    def _A_setup():
        B, S, D = 1, 2048, 512
        ns = torch.arange(S)[:, None] * torch.arange(S)[None, :]
        nd = torch.arange(D)[:, None] * torch.arange(D)[None, :]
        Ws_re = torch.cos(-2.0 * torch.pi * ns / S).to(float)
        Ws_im = torch.sin(-2.0 * torch.pi * ns / S).to(float)
        Wd_re = torch.cos(-2.0 * torch.pi * nd / D).to(float)
        Wd_im = torch.sin(-2.0 * torch.pi * nd / D).to(float)
        return {
            "x": _w((lambda *s: torch.randn(*s, dtype=torch.bfloat16) * 0.05)(B, S, D)),
            "dft_seq_re": _w(Ws_re),
            "dft_seq_im": _w(Ws_im),
            "dft_hid_re": _w(Wd_re),
            "dft_hid_im": _w(Wd_im),
        }
    _A_in = _A_setup()

    def _B_setup():
        B, S, D, F = 1, 2048, 512, 1376
        return {
            "x": _w((lambda *s: torch.randn(*s, dtype=torch.bfloat16) * 0.05)(B, S, D)),
            "w_gate": _w((lambda *s: torch.randn(*s, dtype=torch.bfloat16) * 0.2)(D, F)),
            "w_up": _w((lambda *s: torch.randn(*s, dtype=torch.bfloat16) * 0.2)(D, F)),
            "w_down": _w((lambda *s: torch.randn(*s, dtype=torch.bfloat16) * 0.2)(F, D)),
        }
    _B_in = _B_setup()

    return {
        "A_x": _A_in["x"],
        "A_dft_seq_re": _A_in["dft_seq_re"],
        "A_dft_seq_im": _A_in["dft_seq_im"],
        "A_dft_hid_re": _A_in["dft_hid_re"],
        "A_dft_hid_im": _A_in["dft_hid_im"],
        "B_x": _B_in["x"],
        "B_w_gate": _B_in["w_gate"],
        "B_w_up": _B_in["w_up"],
        "B_w_down": _B_in["w_down"],
    }

def reference(A_x, A_dft_seq_re, A_dft_seq_im, A_dft_hid_re, A_dft_hid_im, B_x, B_w_gate, B_w_up, B_w_down):
    def _A_ref(x, dft_seq_re, dft_seq_im, dft_hid_re, dft_hid_im):
        a = torch.einsum("bsd,ed->bse", x, dft_hid_re)
        b = torch.einsum("bsd,ed->bse", x, dft_hid_im)
        y = torch.einsum("ts,bse->bte", dft_seq_re, a) - torch.einsum("ts,bse->bte", dft_seq_im, b)
        return y

    def _B_ref(x, w_gate, w_up, w_down):
        g = _silu(x @ w_gate)
        u = x @ w_up
        return (g * u) @ w_down

    x = A_x
    h = x + _A_ref(_layernorm(x, axis=-1), A_dft_seq_re, A_dft_seq_im, A_dft_hid_re, A_dft_hid_im)
    h2 = h + _B_ref(_layernorm(h, axis=-1), B_w_gate, B_w_up, B_w_down)
    return h2
```

```python
import re

REG = re.compile(r'^-?(?:abs\()?([vas])(?:(\d+)|\[(\d+):(\d+)\])\)?$')
def regs_of(op):
    op = op.strip()
    m = REG.match(op)
    if m:
        k = m.group(1)
        if m.group(2) is not None: return [k + m.group(2)]
        return [k + str(i) for i in range(int(m.group(3)), int(m.group(4)) + 1)]
    if op == 'vcc': return ['vcc']
    if op in ('vcc_lo', 'vcc_hi'): return ['vcc']
    if op in ('exec', 'exec_lo', 'exec_hi'): return ['exec']
    if op == 'm0': return ['m0']
    return []

TRANS = ('v_exp_f32', 'v_log_f32', 'v_rcp_f32', 'v_rsq_f32', 'v_sqrt_f32', 'v_sin_f32', 'v_cos_f32')
SCC_W = ('s_add_', 's_addc', 's_sub_', 's_subb', 's_and_', 's_or_', 's_xor_', 's_lshl', 's_lshr', 's_ashr', 's_cmp', 's_min', 's_max',
         's_andn2', 's_not', 's_bfe', 's_addk', 's_bitcmp')
SCC_R = ('s_cselect', 's_addc', 's_subb', 's_cbranch_scc', 's_cmov')

class I:
    def __init__(s, text, rd=(), wr=(), cond=False, lat=None, partial=False):
        s.text = text; s.cond = cond; s.lat = lat
        t = text.split(';')[0].strip()
        s.label = t.endswith(':')
        parts = t.split(None, 1)
        s.op = parts[0] if parts else ''
        ops = []
        if len(parts) > 1 and not s.label:
            body = parts[1]
            ops = [o.strip() for o in body.split(',')]
            last = ops[-1].split()
            s.mods = last[1:]
            ops[-1] = last[0]
        else: s.mods = []
        s.ops = ops
        R, W = [], []
        op = s.op
        cls = 'other'
        allr = lambda l: [r for o in l for r in regs_of(o)]
        if s.label: cls = 'label'
        elif op.startswith('v_mfma'):
            cls = 'mfma'; W = regs_of(ops[0]); R = allr(ops[1:]) + ['exec']
            s.passes = 8 if '32x32x16' in op else 4
            s.A = regs_of(ops[1]); s.B = regs_of(ops[2]); s.C = regs_of(ops[3])
        elif op.startswith('v_'):
            cls = 'trans' if op.replace('_e32', '').replace('_e64', '') in TRANS else 'valu'
            if op.startswith('v_swap') or op.startswith('v_permlane'):
                W = allr(ops[:2]); R = allr(ops[:2])
            elif op.startswith('v_add_co') or op.startswith('v_addc_co') or op.startswith('v_sub_co'):
                W = allr(ops[:2]); R = allr(ops[2:])
            else:
                W = regs_of(ops[0]); R = allr(ops[1:])
                if op.startswith('v_fmac') or op.startswith('v_dot2c') or '_dpp' in op or op.startswith('v_writelane') or partial:
                    R = R + W
            R = R + ['exec']
        elif op.startswith('ds_'):
            cls = 'ds'
            if op.startswith('ds_write'): R = allr(ops)
            else: W = regs_of(ops[0]); R = allr(ops[1:])
            if partial: R = R + W
            R = R + ['exec']
        elif op.startswith('buffer_') or op.startswith('global_'):
            cls = 'vmem'
            if 'lds' in s.mods: R = allr(ops) + ['m0']
            elif '_load' in op: W = regs_of(ops[0]); R = allr(ops[1:])
            elif '_atomic' in op and 'sc0' in s.mods:
                W = regs_of(ops[0]); R = allr(ops) if op.startswith('buffer_') else allr(ops[1:])
            else: R = allr(ops)
            if partial: R = R + W
            R = R + ['exec']
            s.store = ('_store' in op)
            s.wide = s.store and ('x3' in op or 'x4' in op)
            s.data = (regs_of(ops[0]) if op.startswith('buffer_') else regs_of(ops[1])) if s.store else []
        elif op.startswith('s_load') or op.startswith('s_memtime') or op.startswith('s_memrealtime'):
            cls = 'smem'; W = regs_of(ops[0]); R = allr(ops[1:])
        elif op in ('s_waitcnt', 's_nop', 's_barrier', 's_sleep', 's_endpgm', 's_setprio', 's_set_gpr_idx_off') or op.startswith('s_branch'):
            cls = 'ctl'
        elif op.startswith('s_cbranch'):
            cls = 'ctl'
            if 'vcc' in op: R = ['vcc']
            if 'exec' in op: R = ['exec']
        elif op.startswith('s_cmp') or op.startswith('s_bitcmp'):
            cls = 'salu'; R = allr(ops)
        elif op.startswith('s_set_gpr_idx_on'):
            cls = 'salu'; R = allr(ops[:1]); W = ['m0']
        elif op.startswith('s_'):
            cls = 'salu'; W = regs_of(ops[0]); R = allr(ops[1:])
            if 'saveexec' in op: W = W + ['exec']; R = R + ['exec']
            if op.startswith('s_addk') or op.startswith('s_mulk') or op.startswith('s_cmov'): R = R + W
        if any(op.startswith(p) for p in SCC_W) or 'saveexec' in op: W = W + ['scc']
        if any(op.startswith(p) for p in SCC_R): R = R + ['scc']
        s.cls = cls
        s.R = set(R) | set(rd); s.W = set(W) | set(wr)
        if cls == 'mfma': s.cost = 8
        elif cls == 'trans' or op.startswith('v_swap') or op.startswith('v_permlane'): s.cost = 8
        elif cls == 'label': s.cost = 0
        elif cls in ('salu', 'ctl'): s.cost = 4
        elif cls == 'valu':
            big = any(op.startswith(p) for p in ('v_cvt_pk', 'v_perm', 'v_fma_', 'v_accvgpr', 'v_fmaak', 'v_fmamk', 'v_bfi', 'v_lshl_add', 'v_and_or', 'v_add3', 'v_mad', 'v_bfe', 'v_pk')) or '_dpp' in op
            s.cost = 5 if big else 4
        else: s.cost = 5
    def __repr__(s): return s.text

class B:
    def __init__(s, ins, lat=None):
        s.ins = [x if isinstance(x, I) else I(x) for x in ins]
        s.R = set(); s.W = set()
        sure = set()
        for x in s.ins:
            s.R |= (x.R - sure); s.W |= x.W
            if x.cond: s.R |= (x.W - sure)
            else: sure |= x.W
        s.cost = sum(0 if x.cond else x.cost for x in s.ins)
        s.cls = 'bundle'; s.lat = lat
        s.kinds = set(x.cls for x in s.ins)

def mk(x): return x if isinstance(x, (I, B)) else I(x)

def schedule(prog, lookahead=400, ds_lat=110, vm_lat=1200, verbose=False):
    prog = [mk(x) for x in prog]
    n = len(prog)
    def kinds(x): return x.kinds if isinstance(x, B) else {x.cls}
    preds = [[] for _ in range(n)]
    lastw = {}; readers = {}
    lastk = {}
    for i, x in enumerate(prog):
        R = x.R - {'exec'}; W = x.W - {'exec'}
        for r in R:
            if r in lastw:
                p = lastw[r]; y = prog[p]
                lat = y.cost
                ky = kinds(y)
                if r[0] == '@': lat = 1
                elif iss(r) or r in ('scc', 'm0'): lat = y.cost
                elif y.lat is not None: lat = y.lat
                elif 'mfma' in ky and not isinstance(y, B):
                    if x.cls == 'mfma' and r in x.C and set(x.C) == y.W and r not in x.A and r not in x.B: lat = 4 * y.passes
                    else: lat = 4 * y.passes + 28
                elif 'vmem' in ky and r[0] in 'va': lat = vm_lat
                elif 'ds' in ky and r[0] in 'va': lat = ds_lat
                elif x.cls == 'mfma': lat = y.cost + 8
                elif 'trans' in ky: lat = y.cost + 4
                preds[i].append((p, lat))
        for w in W:
            if w in lastw:
                p = lastw[w]; y = prog[p]
                lat = 1
                if y.cls == 'mfma' and not (x.cls == 'mfma'): lat = 4 * y.passes + 28
                preds[i].append((p, lat))
            for p in readers.get(w, ()):
                if p != i:
                    y = prog[p]; lat = 1
                    if y.cls == 'mfma' and w in y.C and x.cls != 'mfma': lat = 4 * y.passes
                    preds[i].append((p, lat))
        for k in ('mfma', 'ds', 'vmem', 'smem'):
            if k in kinds(x):
                if k in lastk: preds[i].append((lastk[k], 1))
                lastk[k] = i
        for r in R: readers.setdefault(r, []).append(i)
        for w in W:
            lastw[w] = i; readers[w] = []
    tail = [0] * n
    succs = [[] for _ in range(n)]
    for i in range(n):
        for p, lat in preds[i]: succs[p].append((i, lat))
    for i in range(n - 1, -1, -1):
        x = prog[i]
        own = 4 * x.passes if x.cls == 'mfma' else x.cost
        t = own
        for sidx, lat in succs[i]:
            l = lat
            if x.cls == 'mfma' and prog[sidx].cls == 'mfma': l = max(l, 4 * x.passes)
            t = max(t, l + tail[sidx])
        tail[i] = t
    done = [None] * n
    npred = [len(set(p for p, _ in preds[i])) for i in range(n)]
    ready_t = [0] * n
    avail = set(i for i in range(n) if npred[i] == 0)
    out = []; t = 0; mfree = 0; first = 0
    while len(out) < n:
        while first < n and done[first] is not None: first += 1
        cands = [i for i in avail if i < first + lookahead]
        m = [i for i in cands if prog[i].cls == 'mfma']
        pick = None
        if m and max(ready_t[m[0]], mfree) <= t + 2: pick = m[0]
        else:
            f = [i for i in cands if prog[i].cls != 'mfma' and ready_t[i] <= t]
            if f:
                lim = None
                if m: lim = max(ready_t[m[0]], mfree)
                f.sort(key=lambda i: (-tail[i], i))
                pick = f[0]
                if lim is not None and t + prog[pick].cost > lim + 3 and tail[pick] < tail[m[0]]:
                    g = [i for i in f if t + prog[i].cost <= lim + 3]
                    pick = g[0] if g else m[0]
            else:
                pick = min(cands, key=lambda i: (max(ready_t[i], mfree if prog[i].cls == 'mfma' else 0), i))
        x = prog[pick]
        st = max(t, ready_t[pick], mfree if x.cls == 'mfma' else 0)
        done[pick] = st
        t = st + x.cost
        if x.cls == 'mfma': mfree = st + 4 * x.passes
        out.append(x); avail.discard(pick)
        for sidx in set(q for q, _ in succs[pick]):
            npred[sidx] -= 1
        for sidx, lat in succs[pick]:
            ready_t[sidx] = max(ready_t[sidx], st + lat)
            if npred[sidx] == 0 and done[sidx] is None: avail.add(sidx)
    if verbose: print(f'   scheduled {n} items, est {t} cycles')
    return out

def flatten(prog):
    o = []
    for x in prog:
        x = mk(x)
        if isinstance(x, B): o += x.ins
        else: o.append(x)
    return o

WAIT = re.compile(r'(vmcnt|lgkmcnt)\((\d+)\)')
def add_waits(prog):
    out = []
    vm = []
    lg = []
    def need(pend, x):
        use = set(r for r in x.R - {'exec', 'scc', 'm0'} if r[0] != '@') | set(r for r in x.W if isv(r) or iss(r))
        k = -1
        for idx, y in enumerate(pend):
            if y.W & use: k = idx
            elif hasattr(x, 'drain') and (y.R & x.drain): k = idx
        if k < 0: return None
        return k
    for x in prog:
        if x.op == 's_waitcnt':
            for name, val in WAIT.findall(x.text):
                val = int(val)
                if x.cond: continue
                pend = vm if name == 'vmcnt' else lg
                keep = []; c = 0
                for y in reversed(pend):
                    if c >= val: break
                    keep.append(y)
                    if not y.cond: c += 1
                keep.reverse()
                if name == 'lgkmcnt' and val > 0 and any(y.cls == 'smem' for y in pend): keep = pend[:]
                pend[:] = keep
            out.append(x); continue
        w = []
        k = need(vm, x)
        if k is not None:
            cnt = sum(1 for y in vm[k + 1:] if not y.cond)
            w.append(f'vmcnt({min(cnt, 63)})')
            if not x.cond: vm[:] = vm[k + 1:]
        k = need(lg, x)
        if k is not None:
            if any(y.cls == 'smem' for y in lg): cnt = 0; k = len(lg) - 1
            else: cnt = sum(1 for y in lg[k + 1:] if not y.cond)
            w.append(f'lgkmcnt({min(cnt, 15)})')
            if not x.cond: lg[:] = lg[k + 1:]
        if w: out.append(I('s_waitcnt ' + ' '.join(w), cond=x.cond))
        out.append(x)
        if x.cls == 'vmem': vm.append(x)
        elif x.cls in ('ds', 'smem'): lg.append(x)
    return out

def isv(r): return r[0] in 'va' and r[1:].isdigit()
def iss(r): return (r[0] == 's' and r[1:].isdigit()) or r == 'vcc'
def add_nops(prog):
    out = []
    def states(y):
        if y.label: return 0
        if y.op == 's_nop': return int(y.ops[0], 0) + 1
        return 1
    for x in prog:
        req = 0
        if not x.label:
            d = 0
            valu_x = x.cls in ('valu', 'trans')
            for y in reversed(out):
                if d >= 20: break
                n = 0
                valu_y = y.cls in ('valu', 'trans')
                yWv = set(r for r in y.W if isv(r)); yWs = set(r for r in y.W if iss(r))
                if valu_y:
                    if x.cls == 'mfma' and (yWv & x.R): n = max(n, 2)
                    if x.cls == 'vmem' and (yWs & x.R): n = max(n, 5)
                    if valu_x and '_dpp' in x.op and (yWv & x.R): n = max(n, 2)
                    if valu_x and (yWs & x.R): n = max(n, 4 if ('readlane' in x.op or 'writelane' in x.op) else 2)
                    if valu_x and ('readfirstlane' in x.op or 'readlane' in x.op) and (yWv & x.R): n = max(n, 1)
                    if y.cls == 'trans' and x.cls == 'valu' and (yWv & x.R): n = max(n, 1)
                    if x.op.startswith('v_permlane') and (yWv & x.R): n = max(n, 2)
                    if 'exec' in y.W and x.cls in ('mfma', 'valu', 'trans'): n = max(n, 5)
                    if 'vcc' in y.W and x.op.startswith('s_cbranch_vcc'): n = max(n, 1)
                    if x.cls == 'salu' and (yWs & x.R): n = max(n, 1)
                if y.cls == 'mfma':
                    P = y.passes
                    if x.cls == 'mfma':
                        if yWv & (set(x.A) | set(x.B)): n = max(n, P + 4)
                        if yWv & set(x.C):
                            if not (set(x.C) == yWv and x.passes == P): n = max(n, P + 2)
                        elif yWv & x.W: n = max(n, P + 2)
                    elif x.cls in ('valu', 'trans', 'vmem', 'ds'):
                        if yWv & (x.R | x.W): n = max(n, P + 4)
                        if valu_x and (set(y.C) & x.W): n = max(n, P - 1)
                if y.cls == 'vmem' and y.wide and (set(y.data) & x.W): n = max(n, 2)
                if y.cls == 'salu' and 'm0' in y.W and 'm0' in x.R and x.cls == 'vmem': n = max(n, 1)
                if y.cls == 'salu' and 'exec' in y.W and valu_x and '_dpp' in x.op: n = max(n, 1)
                req = max(req, n - d)
                if (not y.cond) or (x.cond and y.cond == x.cond): d += states(y)
        while req > 0:
            k = min(req, 16)
            out.append(I(f's_nop {k-1}', cond=x.cond)); req -= k
        out.append(x)
    return out

def emit(prog):
    p = add_nops(add_waits(flatten(prog)))
    return '\n'.join((x.text if x.label else '    ' + x.text) for x in p)
```

```python
import sys, struct
from asmlib import *

NAME = 'sequential_preLN__spectral_fnet__swiglu_ffn__prompt'
OPT = dict(stamps=False)
for a in sys.argv[2:]:
    k, v = a.split('='); OPT[k] = int(v)

def fh(x): return '0x%08x' % struct.unpack('<I', struct.pack('<f', x))[0]
def vr(b, n=4): return f'v[{b}:{b+n-1}]'
def ar(b, n=4): return f'a[{b}:{b+n-1}]'
def sr(b, n=4): return f's[{b}:{b+n-1}]'

WS_G = 0; WS_Z = 0x200000; WS_MU = 0x204000; WS_FL = 0x210000; WS_ACT = 0x400000; WS_ST = 0xA00000; WS_SIZE = 0x1000000
FL_CNT = WS_FL; FL_REL = WS_FL + 2048; FL_S2 = WS_FL + 4096
ROWW = 2752
LDS_EX = 147456
SPIN = 200000

SX, SWG, SWU, SWD, SOUT, SWS, SDBG = 8, 12, 16, 20, 24, 28, 32
(sW, sChi, sCg, sS2, sBlk, sPhi, sRho, sTa, sTb, sSpec, sT0, sXb, sT, sT2, sT3, sT4, sCnt, sActW, sFlagW, sPsel0, sPsel1,
 sXmB, sXmS, sYmB, sYmS, sGa, sGb, sWoff, sLW, sActR, sCgp, sOwn, sIdx, sK, sMir, sDo, sDl) = range(48, 85)
sM = 86
sSt = 88

aX = 0; aBre = 128; aBim = 144; aOne = 160; aM = 164
aX2 = 208; aY2 = 216; aMX = 224; aMY = 232; aSelLo = 240; aSelHi = 244; aOnA = 248
aAcc0 = 128; aWB = 160; NWB = 12
aZ = 160; aMU = 192

P = []
def e(*xs):
    for x in xs: P.append(mk(x))
def stamp(i):
    if OPT['stamps']: e(I(f's_memrealtime s[{sSt+2*i}:{sSt+2*i+1}]'))
_c = [0]
def cond_block(test, body, lat=None, rd=(), wr=()):
    _c[0] += 1; L = f'L_c{_c[0]}'
    ins = [I(t) for t in test[:-1]] + [I(f'{test[-1]} {L}', rd=rd, wr=wr)]
    for b in body:
        if isinstance(b, I): b.cond = _c[0]; ins.append(b)
        else: ins.append(I(b, cond=_c[0]))
    ins.append(I(L + ':'))
    return B(ins, lat=lat)
def srd(d, p, size):
    return [f's_mov_b32 s{d}, s{p}', f's_and_b32 s{d+1}, s{p+1}, 0xffff', f's_mov_b32 s{d+2}, {size:#x}', f's_mov_b32 s{d+3}, 0x20000']
def mf32(d, a, b, c): return f'v_mfma_f32_32x32x16_bf16 {d}, {a}, {b}, {c}'
def mf16(d, a, b, c): return f'v_mfma_f32_16x16x32_bf16 {d}, {a}, {b}, {c}'
def barrier(rd=(), wr=(), drain=()):
    x = I('s_barrier', rd=rd, wr=wr)
    if drain: x.drain = set(drain)
    return x

vL, vL16, vWA0, vWA1, vWA2, vDd, vDm, vDs, vGo = 1, 2, 3, 4, 5, 6, 7, 8, 9
vXd, vXm, vYm, vYd = 10, 11, 12, 13
vZo, vMuX, vMuY = 14, 15, 16

e('s_cmp_ge_u32 s2, 0x100', 's_cbranch_scc1 L_exit')
stamp(0)
e('s_load_dwordx2 s[4:5], s[0:1], 0', 's_load_dwordx4 s[44:47], s[0:1], 80', 's_load_dwordx8 s[36:43], s[0:1], 48')
e('v_lshrrev_b32 v17, 6, v0', f'v_and_b32 v{vL}, 63, v0', f'v_readfirstlane_b32 s{sW}, v17')
e(f's_and_b32 s{sChi}, s2, 7', f's_lshr_b32 s{sCg}, s2, 4')
e(f's_sub_u32 s{sT}, 16, s{sChi}', f's_cmp_eq_u32 s{sChi}, 0', f's_cselect_b32 s{sT}, 8, s{sT}',
  's_bitcmp1_b32 s2, 3', f's_cselect_b32 s{sS2}, s{sT}, s{sChi}')
vXo = 17
e(f'v_bfe_u32 v18, v{vL}, 2, 2', f'v_lshlrev_b32 v{vXo}, 14, v18', f'v_lshrrev_b32 v18, 4, v{vL}', f'v_lshl_add_u32 v{vXo}, v18, 6, v{vXo}',
  f'v_and_b32 v18, 3, v{vL}', f'v_lshl_add_u32 v{vXo}, v18, 4, v{vXo}')
e(f's_lshl_b32 s{sXb}, s{sW}, 19', f's_lshl_b32 s{sT}, s{sS2}, 10', f's_add_u32 s{sXb}, s{sXb}, s{sT}')
e(f's_lshr_b32 s{sT}, s{sChi}, 1', f's_lshl_b32 s{sBlk}, s{sT}, 2', f's_bfe_u32 s{sT2}, s2, 0x20003', f's_add_u32 s{sBlk}, s{sBlk}, s{sT2}',
  f's_and_b32 s{sRho}, s{sChi}, 1', f's_lshl_b32 s{sPhi}, s{sRho}, 3', f's_lshr_b32 s{sCgp}, s2, 5', f's_add_u32 s{sPhi}, s{sPhi}, s{sCgp}')
e(f's_lshl_b32 s{sT}, s{sBlk}, 2', f's_add_u32 s{sT}, s{sT}, s{sW}', f's_lshl_b32 s{sFlagW}, s{sT}, 4', f's_add_u32 s{sFlagW}, s{sFlagW}, s{sPhi}',
  f's_lshl_b32 s{sFlagW}, s{sFlagW}, 7', f's_add_u32 s{sFlagW}, s{sFlagW}, {FL_S2:#x}', f's_mul_i32 s{sActW}, s{sT}, {86*1024}')
e(f's_lshl_b32 s{sOwn}, s{sW}, 4', f's_or_b32 s{sOwn}, s{sOwn}, s2')
e('v_mov_b32 v18, 0', f'v_lshlrev_b32 v19, 11, v{vL}', f'v_lshlrev_b32 v{vL16}, 4, v{vL}')
e('s_waitcnt lgkmcnt(0)')
e(*srd(SX, 4, 2048 * 1024)); e(*srd(SWS, 46, WS_SIZE))
e(B(['s_mov_b64 exec, 1', I(f'buffer_store_dword v18, v18, {sr(SWS)}, s{sFlagW} offen sc1'), 's_mov_b64 exec, -1']))
e(cond_block([f's_cmp_ge_u32 s{sOwn}, 16', 's_cbranch_scc1'],
   [f's_lshl_b32 s{sT}, s2, 7', f's_add_u32 s{sT}, s{sT}, {FL_CNT:#x}', 's_mov_b64 exec, 3',
    I(f'buffer_store_dword v18, v19, {sr(SWS)}, s{sT} offen sc1', wr=['init']), 's_mov_b64 exec, -1']))

A = []
def a_(*xs):
    for x in xs: A.append(mk(x))
loadsA = []
for g in range(8):
    for ks in range(4):
        pre = [f's_add_u32 s{sT2}, s{sXb}, {g*65536:#x}'] if ks == 0 else []
        loadsA.append(B(pre + [f'buffer_load_dwordx4 {ar(aX+16*g+4*ks)}, v{vXo}, {sr(SX)}, s{sT2} offen offset:{256*ks}']))

setup = []
def s_(*xs):
    for x in xs: setup.append(mk(x))
s_(*srd(SWG, 36, 512 * ROWW)); s_(*srd(SWU, 38, 512 * ROWW)); s_(*srd(SWD, 40, 1376 * 1024)); s_(*srd(SOUT, 42, 2048 * 1024)); s_(*srd(SDBG, 44, 256))
s_(f's_mul_i32 s{sT0}, s{sPhi}, 3', f's_lshl_b32 s{sT}, s{sPhi}, 1', f's_add_u32 s{sT}, s{sT}, 11', f's_cmp_lt_u32 s{sPhi}, 11', f's_cselect_b32 s{sT0}, s{sT0}, s{sT}',
   f's_lshl_b32 s{sWoff}, s{sT0}, 6', f's_lshl_b32 s{sT}, s{sT0}, 11', f's_add_u32 s{sActW}, s{sActW}, s{sT}', f's_add_u32 s{sActW}, s{sActW}, {WS_ACT:#x}')
s_(f'v_bfe_u32 v18, v{vL}, 4, 1', 'v_lshlrev_b32 v19, 6, v18', f'v_lshrrev_b32 v18, 5, v{vL}', 'v_lshl_add_u32 v19, v18, 5, v19',
   f'v_bfe_u32 v18, v{vL}, 2, 2', 'v_lshl_add_u32 v19, v18, 3, v19',
   f'v_and_b32 v18, 3, v{vL}', 'v_lshlrev_b32 v18, 4, v18',
   f'v_mul_u32_u24 v{vDd}, {ROWW}, v19', f'v_add_u32 v{vDd}, v{vDd}, v18',
   'v_sub_u32 v20, 120, v19', f'v_mul_u32_u24 v{vDm}, {ROWW}, v20', f'v_add_u32 v{vDm}, v{vDm}, v18',
   'v_sub_u32 v20, 0x200, v19', 'v_mov_b32 v21, 0x100', f'v_cmp_gt_u32 vcc, 4, v{vL}', 'v_cndmask_b32 v20, v20, v21, vcc',
   f'v_mul_u32_u24 v{vDs}, {ROWW}, v20', f'v_add_u32 v{vDs}, v{vDs}, v18')
s_(f's_lshl_b32 s{sLW}, s{sW}, 13', f's_mul_i32 s{sDo}, s{sW}, {2*ROWW}')
def wdma(tiles, tok=True):
    out = []
    for kk in range(8):
        cl, H, q = kk >> 2, (kk >> 1) & 1, kk & 1
        for n, (sd, p, slot) in enumerate(tiles):
            ins = []
            if n == 0:
                if H == 0: ins += [f's_add_u32 s{sT3}, s{sDo}, {(128*q+cl)*ROWW:#x}']
                else: ins += [f's_sub_u32 s{sT3}, {(392-128*q-cl)*ROWW:#x}, s{sDo}']
                ins += [f's_add_u32 s{sT3}, s{sT3}, s{sWoff}']
                if kk == 2:
                    ins += [f's_cmp_eq_u32 s{sW}, 0', f's_cselect_b32 s{sT3}, s{sWoff}, s{sT3}']
            vo = vDd if H == 0 else (vDs if kk == 2 else vDm)
            ins += [f's_add_u32 m0, s{sLW}, {slot*32768 + kk*1024 - p*64:#x}' if slot*32768 + kk*1024 - p*64 >= 0 else None]
            assert ins[-1] is not None
            ins += [I(f'buffer_load_dwordx4 v{vo}, {sr(sd)}, s{sT3} offen offset:{p*64} lds', wr=[f'W{slot}'], rd=[f'@free{slot}'])]
            out.append(B(ins))
    return out
s_(f's_cmp_eq_u32 s{sW}, 0', f's_cselect_b64 s[{sM}:{sM+1}], -1, 0', f'v_cndmask_b32 v{vDs}, v{vDm}, v{vDs}, s[{sM}:{sM+1}]')
loadsA += wdma([(SWG, 0, 0), (SWG, 1, 2), (SWU, 0, 1)])

gen = []
def g_(*xs):
    for x in xs: gen.append(mk(x))
vJ, vKq, vEf, vBa, vMsk = 18, 19, 20, 21, 22
vCr = 23
vDg = 32
vUa = 36
T = 44
g_(f'v_and_b32 v{vJ}, 15, v{vL}', f'v_lshrrev_b32 v{vKq}, 4, v{vL}')
g_(f's_and_b32 s{sT4}, s{sCg}, 7', f's_lshl_b32 s{sT4}, s{sT4}, 5', f's_lshr_b32 s{sK}, s{sCg}, 3', f's_lshl_b32 s{sK}, s{sK}, 2', f's_add_u32 s{sT4}, s{sT4}, s{sK}',
   f'v_lshrrev_b32 v{T}, 2, v{vJ}', f'v_and_b32 v{T+1}, 3, v{vJ}', f'v_lshl_add_u32 v{T}, v{T}, 3, v{T+1}', f'v_add_u32 v{T}, s{sT4}, v{T}',
   f'v_cmp_eq_u32 vcc, 0, v{T}', f'v_mov_b32 v{T+1}, 0x100', f'v_cndmask_b32 v{T}, v{T}, v{T+1}, vcc',
   f'v_cndmask_b32 v{vMsk}, 0, 1.0, vcc',
   f'v_cvt_f32_u32 v{vEf}, v{T}', f'v_mul_f32 v{vEf}, {fh(-1/512)}, v{vEf}',
   f'v_cvt_f32_u32 v{T+1}, v{vKq}', f'v_mul_f32 v{vBa}, {fh(32.0)}, v{T+1}', f'v_mul_f32 v{vBa}, v{vBa}, v{vEf}')
rot = [0]
def tmp(n):
    b = T + 2 + rot[0] * 6; rot[0] = (rot[0] + 1) % 3; return b
for ks in range(4):
    for m in range(4):
        t = tmp(6)
        for h in range(2):
            k = 128 * ks + 2 * m + h
            g_(f'v_fmamk_f32 v{t+h}, v{vEf}, {fh(float(k))}, v{vBa}', f'v_cos_f32 v{t+2+h}, v{t+h}', f'v_sin_f32 v{t+4+h}, v{t+h}')
        if ks == 0 and m == 0:
            g_(f'v_cmp_eq_u32 vcc, 0, v{vL}', f'v_cndmask_b32 v{t}, 0, v{vMsk}, vcc', f'v_add_f32 v{t+4}, v{t+4}, v{t}')
        g_(f'v_cvt_pk_bf16_f32 v{t}, v{t+2}, v{t+3}', f'v_cvt_pk_bf16_f32 v{t+1}, v{t+4}, v{t+5}',
           f'v_accvgpr_write_b32 a{aBre+4*ks+m}, v{t}', f'v_accvgpr_write_b32 a{aBim+4*ks+m}, v{t+1}')
g_(f'v_mov_b32 v{T}, 0x3f803f80')
for m in range(4): g_(f'v_accvgpr_write_b32 a{aOne+m}, v{T}')
for p in (1, 2, 3):
    t = tmp(6)
    g_(f'v_mul_f32 v{t}, {fh(8.0*p)}, v{vEf}', f'v_cos_f32 v{vCr+p-1}, v{t}', f'v_sin_f32 v{vCr+2+p}, v{t}',
       f'v_fma_f32 v{vCr+5+p}, -v{vMsk}, v{vCr+p-1}, v{vCr+p-1}')
g_(f'v_lshlrev_b32 v{T}, 2, v{vKq}', f'v_sub_u32 v{T}, v{vJ}, v{T}')
for c in range(4): g_(f'v_cmp_eq_u32 vcc, {c}, v{T}', f'v_cndmask_b32 v{vDg+c}, 0, 1.0, vcc')
vTf, vTb = 64, 65
for Tt in range(2):
    g_(f'v_lshlrev_b32 v{T}, 2, v{vJ}', f'v_add_u32 v{T}, s{sW}, v{T}', f'v_add_u32 v{T}, {64*Tt}, v{T}', f'v_cvt_f32_u32 v{vTf}, v{T}',
       f'v_mul_f32 v{vTf}, {fh(-1/2048)}, v{vTf}', f'v_lshlrev_b32 v{T+1}, 4, v{vKq}', f'v_add_u32 v{T+1}, s{sS2}, v{T+1}', f'v_cvt_f32_u32 v{vTb}, v{T+1}',
       f'v_mul_f32 v{vTb}, v{vTb}, v{vTf}')
    for m in range(4):
        t = tmp(6)
        for h in range(2):
            g_(f'v_fmamk_f32 v{t+h}, v{vTf}, {fh(64.0*(2*m+h))}, v{vTb}', f'v_cos_f32 v{t+2+h}, v{t+h}', f'v_sin_f32 v{t+4+h}, v{t+h}')
        g_(f'v_cvt_pk_bf16_f32 v{t}, v{t+2}, v{t+3}', f'v_cvt_pk_bf16_f32 v{t+1}, v{t+4}, v{t+5}', f'v_cvt_pk_bf16_f32 v{t+2}, -v{t+4}, -v{t+5}',
           f'v_accvgpr_write_b32 a{aM+12*Tt+m}, v{t}', f'v_accvgpr_write_b32 a{aM+12*Tt+4+m}, v{t+1}', f'v_accvgpr_write_b32 a{aM+12*Tt+8+m}, v{t+2}')
for w in (1, 2, 3):
    g_(f's_mul_i32 s{sT4}, s{sW}, {w}', f's_and_b32 s{sK}, s{sT4}, 3', f's_lshl_b32 s{sK}, s{sK}, 10', f's_add_u32 s{sK}, s{sK}, {LDS_EX+4096*w:#x}',
       f'v_add_u32 v{vUa+2*w-2}, s{sK}, v{vL16}',
       f's_add_u32 s{sT4}, s{sT4}, 1', f's_and_b32 s{sK}, s{sT4}, 3', f's_lshl_b32 s{sK}, s{sK}, 10', f's_add_u32 s{sK}, s{sK}, {LDS_EX+4096*w:#x}',
       f'v_add_u32 v{vUa+2*w-1}, s{sK}, v{vL16}')
g_(f's_lshl_b32 s{sK}, s{sW}, 12', f's_add_u32 s{sK}, s{sK}, {LDS_EX:#x}', f'v_add_u32 v{vUa+6}, s{sK}, v{vL16}', f'v_add_u32 v{vUa+7}, {LDS_EX:#x}, v{vL16}')
def rowclass(widx, ta, tb, spec, sK=sK):
    return [f's_and_b32 s{sT4}, s{sBlk}, 1', f's_lshl_b32 s{sT4}, s{sT4}, 2', f's_add_u32 s{sT4}, s{sT4}, s{widx}', f's_lshr_b32 s{sK}, s{sBlk}, 1',
            f's_lshl_b32 s{ta}, s{sT4}, 4', f's_add_u32 s{ta}, s{ta}, s{sK}', f's_lshl_b32 s{sT4}, s{sT4}, 3', f's_cmp_eq_u32 s{sK}, 0',
            f's_cselect_b32 s{ta}, s{sT4}, s{ta}', f's_sub_u32 s{tb}, 0x80, s{ta}', f's_cmp_eq_u32 s{ta}, 0', f's_cselect_b32 s{tb}, 64, s{tb}',
            f's_cselect_b32 s{spec}, 1, 0']
g_(*rowclass(sW, sTa, sTb, sSpec))
vI, vHb = 66, 67
g_(f'v_and_b32 v{vI}, 31, v{vL}', f'v_lshrrev_b32 v{vHb}, 5, v{vL}')
g_(f'v_lshlrev_b32 v{T}, 20, v{vHb}', f'v_xor_b32 v{T+1}, 0x100000, v{T}', f'v_lshlrev_b32 v{T+2}, 4, v{vI}', f'v_sub_u32 v{T+3}, 1008, v{T+2}',
   f'v_add_u32 v{vXd}, v{T}, v{T+2}', f'v_add_u32 v{vYd}, v{T+1}, v{T+2}',
   f's_cmp_eq_u32 s{sSpec}, 1', f's_cselect_b64 s[{sM}:{sM+1}], -1, 0',
   f'v_cndmask_b32 v{vXm}, v{T+1}, v{T}, s[{sM}:{sM+1}]', f'v_cndmask_b32 v{vYm}, v{T}, v{T+1}, s[{sM}:{sM+1}]',
   f'v_add_u32 v{vXm}, v{vXm}, v{T+3}', f'v_add_u32 v{vYm}, v{vYm}, v{T+3}')
g_(f's_lshl_b32 s{sGa}, s{sTa}, 10', f's_lshl_b32 s{sGb}, s{sTb}, 10', f's_add_u32 s{sGb}, s{sGb}, {7*131072:#x}',
   f's_cmp_eq_u32 s{sSpec}, 1', f's_cselect_b32 s{sXmB}, s{sGa}, s{sGb}', f's_cselect_b32 s{sYmB}, s{sGb}, s{sGa}',
   f's_mov_b32 s{sXmS}, 0x20000', f's_cselect_b32 s{sXmS}, s{sXmS}, 0xfffe0000', f's_sub_u32 s{sYmS}, 0, s{sXmS}')
vTau = 68
g_(f'v_sub_u32 v{T}, 15, v{vJ}', f'v_sub_u32 v{T+1}, 16, v{vJ}', f'v_cmp_lt_u32 vcc, 15, v{vI}',
   f'v_cndmask_b32 v{T+2}, v{vJ}, v{T+1}, vcc', f'v_cndmask_b32 v{T+3}, v{vJ}, v{T}, vcc',
   f'v_cndmask_b32 v{T+4}, v{T+1}, v{vJ}, vcc', f'v_cndmask_b32 v{T+5}, v{T}, v{vJ}, vcc',
   f'v_cndmask_b32 v{vTau}, v{vJ}, v{T+2}, s[{sM}:{sM+1}]', f'v_cndmask_b32 v{vTau+1}, v{T}, v{T+3}, s[{sM}:{sM+1}]',
   f'v_cndmask_b32 v{vTau+2}, v{T}, v{T+4}, s[{sM}:{sM+1}]', f'v_cndmask_b32 v{vTau+3}, v{vJ}, v{T+5}, s[{sM}:{sM+1}]')
g_(f'v_lshlrev_b32 v{T+1}, 7, v{vJ}', f'v_add_u32 v{T+1}, s{sTa}, v{T+1}', f'v_lshlrev_b32 v{T}, 7, v{T}', f'v_add_u32 v{T}, s{sTb}, v{T}',
   f'v_cndmask_b32 v{T+2}, v{T+1}, v{T}, vcc',
   f'v_cndmask_b32 v{vMuX}, v{T+2}, v{T+1}, s[{sM}:{sM+1}]', f'v_cndmask_b32 v{vMuY}, v{T+2}, v{T}, s[{sM}:{sM+1}]',
   f'v_lshlrev_b32 v{vMuX}, 2, v{vMuX}', f'v_lshlrev_b32 v{vMuY}, 2, v{vMuY}')
g_(f'v_cvt_f32_u32 v{T}, v{vHb}', f'v_mul_f32 v{T}, 4.0, v{T}')
rot2 = [0]
for mi, base in enumerate((aMX, aMY, aX2, aY2)):
    g_(f'v_cvt_f32_u32 v{vTf}, v{vTau+mi}', f'v_mul_f32 v{vTf}, {fh(1/16)}, v{vTf}', f'v_mul_f32 v{vTb}, v{vTf}, v{T}')
    for q in range(2):
        for m in range(4):
            t = T + 2 + 3 * rot2[0]; rot2[0] = (rot2[0] + 1) % 3
            g_(f'v_fmamk_f32 v{t}, v{vTf}, {fh(float(8*q+m))}, v{vTb}', f'v_cos_f32 v{t+1}, v{t}', f'v_sin_f32 v{t+2}, v{t}',
               f'v_cvt_pk_bf16_f32 v{t}, v{t+1}, v{t+2}', f'v_accvgpr_write_b32 a{base+4*q+m}, v{t}')
g_(f'v_lshlrev_b32 v{T}, 3, v{vHb}', f'v_sub_u32 v{T}, v{vI}, v{T}', f'v_mov_b32 v{T+1}, 0x3f80', f'v_mov_b32 v{T+2}, 0x3f800000')
for base, off in ((aSelLo, 0), (aSelHi, 16)):
    for m in range(4):
        g_(f'v_cmp_eq_u32 vcc, {off+2*m}, v{T}', f'v_cndmask_b32 v{T+3}, 0, v{T+1}, vcc', f'v_cmp_eq_u32 vcc, {off+2*m+1}, v{T}',
           f'v_cndmask_b32 v{T+3}, v{T+3}, v{T+2}, vcc', f'v_accvgpr_write_b32 a{base+m}, v{T+3}')
g_(f'v_add_u32 v{T}, -1, v{vL}', f'v_cmp_gt_u32 vcc, 31, v{T}', f'v_mov_b32 v{T+1}, 0x3f803f80', f'v_cndmask_b32 v{T+1}, 0, v{T+1}, vcc',
   f'v_accvgpr_write_b32 a{aOnA}, v{T+1}', f'v_accvgpr_write_b32 a{aOnA+1}, 0', f'v_accvgpr_write_b32 a{aOnA+2}, 0', f'v_accvgpr_write_b32 a{aOnA+3}, 0')
g_(f'v_lshlrev_b32 v{vGo}, 12, v{vHb}', f'v_lshl_add_u32 v{vGo}, v{vI}, 4, v{vGo}',
   f'v_cmp_eq_u32 vcc, 0, v{vI}', f'v_mov_b32 v{T}, 0x2000', f'v_cndmask_b32 v{vZo}, v{T}, 0, vcc', f'v_lshl_add_u32 v{vZo}, v{vHb}, 4, v{vZo}',
   f'v_lshlrev_b32 v{vWA0}, 9, v{vHb}', f'v_bfe_u32 v{T}, v{vL}, 2, 2', f'v_lshl_add_u32 v{vWA0}, v{T}, 6, v{vWA0}',
   f'v_bfe_u32 v{T}, v{vL}, 4, 1', f'v_lshl_add_u32 v{vWA0}, v{T}, 5, v{vWA0}', f'v_and_b32 v{T}, 3, v{vL}', f'v_lshl_add_u32 v{vWA0}, v{T}, 3, v{vWA0}',
   f'v_add_u32 v{vWA1}, 0x10000, v{vWA0}', f'v_add_u32 v{vWA2}, 0x20000, v{vWA0}',
   f's_mov_b32 s{sPsel0}, 0x05040100', f's_mov_b32 s{sPsel1}, 0x07060302')

gen = schedule(gen, lookahead=40)
def weave(loads, work, first, per):
    out = list(loads[:first]); li = first; acc = 0
    for x in work:
        out.append(x); acc += x.cost
        if acc >= per and li < len(loads) and not ('scc' in x.W):
            out.append(loads[li]); li += 1; acc = 0
    return out + list(loads[li:])
def scc_safe(seq):
    live = None
    for x in seq:
        if isinstance(x, B):
            if 'scc' in x.W: live = False
            continue
        if 'scc' in x.R: assert live is not False, f'scc clobbered before {x}'
        if 'scc' in x.W: live = True
work = setup + gen
def bundle_scc(seq):
    out = []; i = 0
    while i < len(seq):
        x = seq[i]
        if not isinstance(x, B) and 'scc' in x.W:
            j = i + 1; last = i
            while j < len(seq):
                if 'scc' in seq[j].R: last = j
                if 'scc' in seq[j].W: break
                j += 1
            if last > i:
                out.append(B(flatten(seq[i:last + 1]))); i = last + 1; continue
        out.append(x); i += 1
    return out
work = bundle_scc(work)
def weave(loads, work, first, per):
    out = list(loads[:first]); li = first; acc = 0
    for x in work:
        out.append(x); acc += x.cost
        if acc >= per and li < len(loads):
            out.append(loads[li]); li += 1; acc = 0
    return out + list(loads[li:])
e(*weave(loadsA, work, 6, 56))
stamp(1)

Q = []
def q_(*xs):
    for x in xs: Q.append(mk(x))
vAcc = 64
vU = 96
vMu = 112
vRaw = 128
xsets = [(vXd, sGa, None), (vXm, sXmB, sXmS), (vYm, sYmB, sYmS), (vYd, sGb, None)]
xloads = []
for si, (vo, sb, ss) in enumerate(xsets):
    for jj in range(8):
        if jj == 0: pre = [f's_mov_b32 s{sT2}, s{sb}']
        elif ss is not None: pre = [f's_add_u32 s{sT2}, s{sT2}, s{ss}']
        elif si == 0: pre = [f's_add_u32 s{sT2}, s{sT2}, 0x20000']
        else: pre = [f's_sub_u32 s{sT2}, s{sT2}, 0x20000']
        xloads.append(pre + [f'buffer_load_dwordx4 {vr(vRaw+32*si+4*jj)}, v{vo}, {sr(SX)}, s{sT2} offen'])
for g in range(8):
    ac = vAcc + 16 * (g & 1)
    for ks in range(4):
        xa = ar(aX + 16 * g + 4 * ks)
        for ti, bop in enumerate((ar(aBre + 4 * ks), ar(aBim + 4 * ks), ar(aOne), xa)):
            d = vr(ac + 4 * ti)
            q_(I(mf16(d, xa, bop, '0' if ks == 0 else d), wr=[f'@m{g}_{ks}'] if ti == 0 else [], rd=[f'@x{g}_{ks}'] if ti == 0 else []))
        ins = [I(t) for t in xloads[4*g+ks][:-1]] + [I(xloads[4*g+ks][-1], rd=[f'@m{g}_{ks}'], wr=[f'@x{(4*g+ks+2)//4}_{(4*g+ks+2)%4}'])]
        q_(B(ins))
    if g == 0:
        q_(cond_block([f's_cmp_ge_u32 s{sOwn}, 16', 's_cbranch_scc1'],
            ['s_mov_b64 exec, 1', 'v_mov_b32 v44, 1', 'v_mov_b32 v45, 0', I(f'buffer_atomic_add v44, v45, {sr(SDBG)}, 0 offen sc1', rd=['init']), 's_mov_b64 exec, -1']))
    if g == 5:
        q_('v_mov_b32 v121, 0', f'buffer_load_dword v120, v121, {sr(SDBG)}, 0 offen sc1')
    re, im, on, gr = ac, ac + 4, ac + 8, ac + 12
    t = 46 + 4 * (g & 1)
    ur, ui = vU + g, vU + 8 + g
    q_(f'v_mul_f32 v{t}, v{vDg}, v{gr}', f'v_fmac_f32 v{t}, v{vDg+1}, v{gr+1}', f'v_fmac_f32 v{t}, v{vDg+2}, v{gr+2}', f'v_fmac_f32 v{t}, v{vDg+3}, v{gr+3}')
    q_(f'v_add_f32 v{t+1}, v{on}, v{on+1}', f'v_add_f32 v{t+2}, v{on+2}, v{on+3}', f'v_add_f32 v{t+1}, v{t+1}, v{t+2}', f'v_mul_f32 v{vMu+g}, {fh(-1/512)}, v{t+1}')
    q_(f'v_fma_f32 v{ur}, v{vCr}, v{re+1}, v{re}', f'v_fma_f32 v{ui}, v{vCr+6}, v{im+1}, v{im}')
    for p in (1, 2, 3):
        if p > 1: q_(f'v_fmac_f32 v{ur}, v{vCr+p-1}, v{re+p}', f'v_fmac_f32 v{ui}, v{vCr+5+p}, v{im+p}')
        q_(f'v_fma_f32 v{ur}, -v{vCr+2+p}, v{im+p}, v{ur}', f'v_fmac_f32 v{ui}, v{vCr+2+p}, v{re+p}')
    for rr in (8, 4, 2, 1):
        q_(I(f'v_add_f32_dpp v{t}, v{t}, v{t} row_ror:{rr} row_mask:0xf bank_mask:0xf', lat=13))
    q_(f'v_fmac_f32 v{ui}, v{vMsk}, v{vMu+g}')
    q_(f'v_fmaak_f32 v{t}, v{t}, v{vDg-1+0}, 0' if False else f'v_mov_b32 v{t+2}, {fh(1e-5)}',
       f'v_fmamk_f32 v{t}, v{t}, {fh(1/512)}, v{t+2}', f'v_fma_f32 v{t}, -v{vMu+g}, v{vMu+g}, v{t}', f'v_rsq_f32 v{t}, v{t}',
       f'v_mul_f32 v{ur}, v{ur}, v{t}', f'v_mul_f32 v{ui}, v{ui}, v{t}')
vF = 64
for m in range(4):
    q_(f'v_cvt_pk_bf16_f32 v{vF+m}, v{vU+2*m}, v{vU+2*m+1}', f'v_cvt_pk_bf16_f32 v{vF+4+m}, v{vU+8+2*m}, v{vU+9+2*m}')
for m in range(8): q_(f'v_xor_b32 v{vF+8+m}, 0x80008000, v{vF+m}')
for ver in range(4): q_(I(f'ds_write_b128 v{vUa+6}, {vr(vF+4*ver)} offset:{1024*ver}', wr=['EX']))
e(*schedule(Q, verbose=True, vm_lat=200))
e(barrier(rd=['EX']))
Q = []
vPQ = 64
q_(f'ds_read_b128 {vr(vPQ)}, v{vUa+7}', f'ds_read_b128 {vr(vPQ+4)}, v{vUa+7} offset:1024')
for w in (1, 2, 3):
    q_(f'ds_read_b128 {vr(vPQ+8*w)}, v{vUa+2*w-2}', f'ds_read_b128 {vr(vPQ+8*w+4)}, v{vUa+2*w-1}')
vGa = 96
for w in range(4):
    Pf, Qf = vr(vPQ + 8 * w), vr(vPQ + 8 * w + 4)
    for Tt in range(2):
        mre, mim, mni = ar(aM + 12 * Tt), ar(aM + 12 * Tt + 4), ar(aM + 12 * Tt + 8)
        dr, di = vr(vGa + 8 * Tt), vr(vGa + 8 * Tt + 4)
        q_(mf16(dr, Pf, mre, '0' if w == 0 else dr), mf16(di, Pf, mim, '0' if w == 0 else di))
    for Tt in range(2):
        mre, mim, mni = ar(aM + 12 * Tt), ar(aM + 12 * Tt + 4), ar(aM + 12 * Tt + 8)
        dr, di = vr(vGa + 8 * Tt), vr(vGa + 8 * Tt + 4)
        q_(mf16(dr, Qf, mni, dr), mf16(di, Qf, mre, di))
q_(f'v_lshlrev_b32 v44, 16, v{vJ}', f'v_lshl_add_u32 v44, v{vKq}, 4, v44', f'v_lshlrev_b32 v45, 8, v{vJ}',
   B([f's_lshl_b32 s{sT}, s{sW}, 14', f's_lshl_b32 s{sT2}, s{sS2}, 10', f's_add_u32 s{sT}, s{sT}, s{sT2}', f's_lshl_b32 s{sT2}, s{sCg}, 6', f's_add_u32 s{sT}, s{sT}, s{sT2}',
      f's_add_u32 s{sT2}, s{sT}, 0x100000']))
mu = [f'v_mov_b32 v46, v{vMu}']
for g in range(1, 8): mu += [f'v_cmp_eq_u32 vcc, {g}, v{vJ}', f'v_cndmask_b32 v46, v46, v{vMu+g}, vcc']
mu += ['v_cvt_pk_bf16_f32 v47, v46, v46', 'v_and_b32 v47, 0xffff0000, v47', 'v_sub_f32 v48, v46, v47', 'v_cvt_pk_bf16_f32 v47, v47, v48',
       f'v_lshlrev_b32 v46, 8, v{vJ}', f'v_lshl_add_u32 v46, v{vKq}, 6, v46',
       f's_lshl_b32 s{sT3}, s{sW}, 11', f's_lshl_b32 s{sT4}, s{sS2}, 2', f's_add_u32 s{sT3}, s{sT3}, s{sT4}', f's_add_u32 s{sT3}, s{sT3}, {WS_MU:#x}',
       's_mov_b32 exec_lo, 0x00ff00ff', 's_mov_b32 exec_hi, 0x00ff00ff', f'buffer_store_dword v47, v46, {sr(SWS)}, s{sT3} offen sc1', 's_mov_b64 exec, -1']
q_(cond_block([f's_cmp_lg_u32 s{sCg}, 0', 's_cbranch_scc1'], mu, lat=12))
side = [f's_lshl_b32 s{sT3}, s{sW}, 6', f's_lshl_b32 s{sT4}, s{sS2}, 2', f's_add_u32 s{sT3}, s{sT3}, s{sT4}', f's_add_u32 s{sT3}, s{sT3}, {WS_Z:#x}',
        f's_add_u32 s{sT4}, s{sT3}, 0x2000', 's_mov_b64 exec, 0xffff']
for Tt in range(2):
    r0, i0 = vGa + 8 * Tt, vGa + 8 * Tt + 4
    side += [I(f'v_mul_f32 v{r0}, 0.5, v{r0}'), I(f'v_mul_f32 v{i0}, 0.5, v{i0}'),
             f'v_cvt_pk_bf16_f32 v{50+2*Tt}, v{r0}, v{i0}', f'v_cvt_pk_bf16_f32 v{51+2*Tt}, -v{i0}, v{r0}',
             I(f'v_mov_b32 v{r0}, 0', partial=True), I(f'v_mov_b32 v{i0}, 0', partial=True)]
    if Tt == 1: side += ['v_add_u32 v45, 0x1000, v45']
    side += [f'buffer_store_dword v{50+2*Tt}, v45, {sr(SWS)}, s{sT3} offen sc1', f'buffer_store_dword v{51+2*Tt}, v45, {sr(SWS)}, s{sT4} offen sc1']
side += ['s_mov_b64 exec, -1']
q_(cond_block([f's_cmp_lg_u32 s{sCg}, 0', 's_cbranch_scc1'], side, lat=12))
for Tt in range(2):
    for c in range(4): q_(f'v_cvt_pk_bf16_f32 v{56+4*Tt+c}, v{vGa+8*Tt+c}, v{vGa+8*Tt+4+c}')
    q_(f'buffer_store_dwordx4 {vr(56+4*Tt)}, v44, {sr(SWS)}, s{sT if Tt == 0 else sT2} offen sc1')
e(*schedule(Q, verbose=True))
e('s_waitcnt vmcnt(0)', 's_barrier')
stamp(2)

arr = ['s_mov_b64 exec, 1', f's_mov_b32 s{sCnt}, 0', 'L_early:', 'v_cmp_le_u32 vcc, 16, v120', 's_cbranch_vccnz L_early_ok',
       f's_add_u32 s{sCnt}, s{sCnt}, 1', f's_cmp_gt_u32 s{sCnt}, {SPIN}', 's_cbranch_scc1 L_early_ok', 's_sleep 1',
       f'buffer_load_dword v120, v121, {sr(SDBG)}, 0 offen sc1', 's_waitcnt vmcnt(0)', 's_branch L_early', 'L_early_ok:',
       f's_and_b32 s{sT}, s2, 15', f's_lshl_b32 s{sT}, s{sT}, 7', f's_add_u32 s{sT}, s{sT}, {FL_CNT:#x}', 'v_mov_b32 v44, 1',
       f'buffer_atomic_add v44, v121, {sr(SWS)}, s{sT} offen sc0 sc1', 's_waitcnt vmcnt(0)', 'v_cmp_eq_u32 vcc, 15, v44', 's_cbranch_vccz L_notlast',
       'v_mov_b32 v44, 1', f'buffer_store_dword v44, v121, {sr(SWS)}, s{sT} offen offset:2048 sc1', 'L_notlast:', 's_mov_b64 exec, -1']
e(cond_block([f's_cmp_lg_u32 s{sW}, 0', 's_cbranch_scc1'], arr))
Q = []
q_(f'v_add_u32 v17, -1, v{vL}', 'v_and_b32 v17, 31, v17', f'v_and_b32 v18, 32, v{vL}', 'v_or_b32 v17, v17, v18', 'v_lshlrev_b32 v17, 2, v17')
def xf(si, c): return aX + 32 * si + 4 * c
k = 0
for cp in range(8):
    for si in range(4):
        mirror = si in (1, 2)
        u = (8 - cp) % 8 if mirror else cp
        for m in range(4):
            t = 32 + (k % 32); k += 1
            lo, hi = vRaw + 32 * si + 8 * m + (u >> 1), vRaw + 32 * si + 8 * m + 4 + (u >> 1)
            q_(f'v_perm_b32 v{t}, v{hi}, v{lo}, s{sPsel1 if u & 1 else sPsel0}')
            if mirror and cp == 0: q_(f'ds_bpermute_b32 a{xf(si, cp)+m}, v17, v{t}' if False else f'ds_bpermute_b32 v{t}, v17, v{t}')
            q_(f'v_accvgpr_write_b32 a{xf(si, cp)+m}, v{t}')
for b in (aMU, aMU + 4):
    for m in (1, 2, 3): q_(f'v_accvgpr_write_b32 a{b+m}, 0')
q_(B([f's_lshl_b32 s{sGa}, s{sTa}, 14', f's_lshl_b32 s{sGb}, s{sTb}, 14']))
q_(B([f's_lshl_b32 s{sXmB}, s{sTa}, 6', f's_add_u32 s{sXmB}, s{sXmB}, {WS_Z:#x}', f's_lshl_b32 s{sYmB}, s{sTb}, 6', f's_add_u32 s{sYmB}, s{sYmB}, {WS_Z:#x}',
      f's_cmp_eq_u32 s{sSpec}, 1', f's_cselect_b32 s{sXmS}, s{sXmB}, s{sYmB}', f's_cselect_b32 s{sYmS}, s{sYmB}, s{sXmB}', f's_mov_b32 s{sT4}, {WS_MU:#x}']))
q_('s_mov_b32 vcc_lo, 0xffff0000', 's_mov_b32 vcc_hi, 0xffff0000')
e(*schedule(Q, lookahead=60))
poll = [f's_mov_b32 s{sCnt}, 0', f'v_and_b32 v44, 15, v{vL}', 'v_lshlrev_b32 v44, 7, v44', f's_mov_b32 s{sT}, {FL_REL:#x}', 'L_poll1:',
        f'buffer_load_dword v45, v44, {sr(SWS)}, s{sT} offen sc1', 's_waitcnt vmcnt(0)', f'v_cmp_ne_u32 s[{sM}:{sM+1}], 1, v45',
        f's_add_u32 s{sCnt}, s{sCnt}, 1', f's_cmp_gt_u32 s{sCnt}, {SPIN}', 's_cbranch_scc1 L_poll1_ok',
        f's_cmp_eq_u64 s[{sM}:{sM+1}], 0', 's_cbranch_scc1 L_poll1_ok', 's_sleep 1', 's_branch L_poll1', 'L_poll1_ok:']
e(cond_block([f's_cmp_lg_u32 s{sW}, 0', 's_cbranch_scc1'], poll))
e('s_barrier')
stamp(3)

Q = []
vG = 128
def gf(sign, g, q, c): return vG + 64 * g + 32 * sign + 16 * q + 4 * c
zsrc = (sXmB, sXmS, sYmB, sYmS)
tl = 700
for zi in range(4):
    for q in range(2): q_(I(f'buffer_load_dwordx4 {ar(aZ+8*zi+4*q)}, v{vZo}, {sr(SWS)}, s{zsrc[zi]} offen offset:{32*q} sc1', lat=tl))
q_(I(f'buffer_load_dword a{aMU}, v{vMuX}, {sr(SWS)}, s{sT4} offen sc1', lat=tl), I(f'buffer_load_dword a{aMU+4}, v{vMuY}, {sr(SWS)}, s{sT4} offen sc1', lat=tl))
n = 0
for g in range(2):
    for sign in range(2):
        for q in range(2):
            for m in range(4):
                n += 1
                pre = [f's_add_u32 s{sT2}, s{sGb if sign else sGa}, {8192*q}'] if m == 0 else []
                q_(B(pre + [f'buffer_load_dwordx4 {vr(gf(sign,g,q,m))}, v{vGo}, {sr(SWS)}, s{sT2} offen offset:{1024*m+512*g} sc1'], lat=tl + 58 * n))
for b in wdma([(SWU, 1, 3), (SWG, 2, 4)]): q_(b)
vNX, vNY = 32, 48
vYX, vYY, vSX, vSY, vNM = 17, 18, 19, 21, 23
vTm = 24
for d, z1, m1, z2, m2, mu_ in ((vNX, aZ, aMX, aZ + 8, aX2, aMU), (vNY, aZ + 16, aMY, aZ + 24, aY2, aMU + 4)):
    D = vr(d, 16)
    q_(mf32(D, ar(z1), ar(m1), '0'), mf32(D, ar(z1 + 4), ar(m1 + 4), D), mf32(D, ar(z2), ar(m2), D), mf32(D, ar(z2 + 4), ar(m2 + 4), D), mf32(D, ar(aOnA), ar(mu_), D))
q_(B([f's_mov_b32 s{sM}, 0xffff0000', f's_mov_b32 s{sM+1}, 0', f'v_cndmask_b32 v{vYX}, 0, v{vNX}, s[{sM}:{sM+1}]']), f'v_mov_b32 v{vNX}, v{vNX+1}')
q_(B([f's_mov_b32 s{sM}, 0x0000ffff', f'v_cndmask_b32 v{vYY}, 0, v{vNY}, s[{sM}:{sM+1}]']), f'v_mov_b32 v{vNY}, v{vNY+1}')
q_(f'v_cndmask_b32 v{vNM}, v{vNX+1}, v{vNY+1}, vcc')
for r in (vSX, vSX + 1, vSY, vSY + 1): q_(f'v_mov_b32 v{r}, 0')
wb = [0]
def wfrag(slot, ks):
    b = aWB + 4 * wb[0]; wb[0] = (wb[0] + 1) % NWB
    va = (vWA0, vWA0, vWA1, vWA1, vWA2)[slot]; off = (slot & 1) * 32768 + ks * 1024
    return b, [I(f'ds_read_b64_tr_b16 {ar(b,2)}, v{va} offset:{off}', rd=[f'@pub{slot}', f'L{slot}']),
               I(f'ds_read_b64_tr_b16 {ar(b+2,2)}, v{va} offset:{off+256}', rd=[f'@pub{slot}', f'L{slot}'])]
def hcf(ks):
    cp, H, q = ks >> 2, (ks >> 1) & 1, ks & 1
    return gf(H, cp >> 2, q, cp & 3)
def gemm_step(ks, tiles):
    for slot, acc in tiles:
        b, rds = wfrag(slot, ks)
        q_(*rds); q_(mf32(acc, ar(b), vr(hcf(ks)), '0' if ks == 0 else acc))
def dft_tiles(cp):
    g, c = cp >> 2, cp & 3
    X, Y = 64 + 32 * (cp & 1), 80 + 32 * (cp & 1)
    if c == 0:
        for sign in range(2):
            for q in range(2):
                for i in range(4):
                    for j in range(i + 1, 4): q_(f'v_swap_b32 v{gf(sign,g,q,i)+j}, v{gf(sign,g,q,j)+i}')
    for d, nm, s1, s2_, sign, mm in ((X, vNX, 0, 1, 0, aMX), (Y, vNY, 2, 3, 1, aMY)):
        D = vr(d, 16)
        q_(mf32(D, ar(xf(s1, cp)), ar(aSelLo), vr(nm, 16)), mf32(D, ar(xf(s2_, cp)), ar(aSelHi), D),
           mf32(D, vr(gf(sign, g, 0, c)), ar(mm), D), mf32(D, vr(gf(sign, g, 1, c)), ar(mm + 4), D))
def dft_post(cp):
    g, c = cp >> 2, cp & 3
    X, Y = 64 + 32 * (cp & 1), 80 + 32 * (cp & 1)
    if cp == 0: q_(f'v_add_f32 v{X}, v{X}, v{vYX}', f'v_add_f32 v{Y}, v{Y}, v{vYY}')
    for m in range(8):
        t = vTm + 2 * (m & 3)
        q_(f'v_cvt_pk_bf16_f32 v{t}, v{X+2*m}, v{X+2*m+1}', f'v_cvt_pk_bf16_f32 v{t+1}, v{Y+2*m}, v{Y+2*m+1}')
        q_(f'v_cndmask_b32 v{gf(0,g,m>>2,c)+(m&3)}, v{t}, v{t+1}, vcc', f'v_cndmask_b32 v{gf(1,g,m>>2,c)+(m&3)}, v{t+1}, v{t}, vcc')
        if m & 3 == 3:
            b = gf(1, g, m >> 2, c)
            q_(cond_block([f's_cmp_eq_u32 s{sSpec}, 0', 's_cbranch_scc1'], [f'v_permlane16_swap_b32 v{b+i}, v{b+i}' for i in range(4)]))
    for r in range(16):
        q_(f'v_fmac_f32 v{vSX+(r&1)}, v{X+r}, v{X+r}', f'v_fmac_f32 v{vSY+(r&1)}, v{Y+r}, v{Y+r}')
t0 = [(0, ar(aAcc0, 16)), (1, ar(aAcc0 + 16, 16))]
dft_tiles(0); dft_post(0)
for cp in range(1, 9):
    if cp < 8: dft_tiles(cp)
    for ks in range(4 * (cp - 1), 4 * cp): gemm_step(ks, t0)
    if cp < 8: dft_post(cp)
vNr, vIr = 17, 18
q_(f'v_add_f32 v{vSX}, v{vSX}, v{vSX+1}', f'v_add_f32 v{vSY}, v{vSY}, v{vSY+1}')
q_(cond_block([f's_cmp_eq_u32 s{sSpec}, 0', 's_cbranch_scc1'], [f'v_permlane16_swap_b32 v{vSX}, v{vSY}']))
q_(f'v_add_f32 v{vSX}, v{vSX}, v{vSY}', f'v_mov_b32 v{vSY}, v{vSX}', f'v_permlane32_swap_b32 v{vSY}, v{vSY}', f'v_add_f32 v{vSX}, v{vSX}, v{vSY}',
   f'v_mov_b32 v{vSY}, {fh(1e-5)}', f'v_fmamk_f32 v{vIr}, v{vSX}, {fh(1/512)}, v{vSY}', f'v_rsq_f32 v{vNr}, v{vIr}', f'v_mul_f32 v{vNr}, {fh(-1.4426950408889634)}, v{vNr}')

et = [0]
def epilogue(p, gacc, uacc, from_a):
    pk = 56
    for r in range(16):
        t = 32 + 4 * et[0]; et[0] = (et[0] + 1) % 6
        if from_a:
            q_(f'v_accvgpr_read_b32 v{t}, a{gacc+r}', f'v_accvgpr_read_b32 v{t+1}, a{uacc+r}'); gs, us = t, t + 1
        else: gs, us = gacc + r, uacc + r
        q_(f'v_mul_f32 v{t+2}, v{vNr}, v{gs}', f'v_exp_f32 v{t+2}, v{t+2}', f'v_mul_f32 v{t+3}, v{gs}, v{us}', f'v_fma_f32 v{t+2}, v{t+2}, v{vIr}, v{vIr}',
           f'v_rcp_f32 v{t+2}, v{t+2}', f'v_mul_f32 v{vTm+(r&7)}, v{t+3}, v{t+2}')
        if r & 1: q_(f'v_cvt_pk_bf16_f32 v{pk+(r>>1)}, v{vTm+(r&7)-1}, v{vTm+(r&7)}')
        if r & 7 == 7:
            st = I(f'buffer_store_dwordx4 {vr(pk+4*(r>>3))}, v{vL16}, {sr(SWS)}, s{sActW} offen offset:{1024*(r>>3)} sc1', wr=[f'act{p}'], lat=900)
            if p == 2: q_(cond_block([f's_cmp_ge_u32 s{sPhi}, 11', 's_cbranch_scc1'], [st], lat=900))
            else: q_(st)
    q_(B([f's_add_u32 s{sActW}, s{sActW}, 2048']))
def flag(p):
    return B([f'v_mov_b32 v19, {p+1}', 'v_mov_b32 v20, 0', 's_mov_b64 exec, 1', I(f'buffer_store_dword v19, v20, {sr(SWS)}, s{sFlagW} offen sc1', rd=[f'act{p}']), 's_mov_b64 exec, -1'])

order = [(3*f if f < 11 else 2*f+11) for f in range(16)] + [(3*f+1 if f < 11 else 2*f+12) for f in range(16)] + [3*f+2 for f in range(11)]
assert sorted(order) == list(range(43))
def dpos(n):
    if n < 8: return 32768 + 4096 * n
    if n < 24: return 65536 + 4096 * (n - 8)
    if n < 32: return 131072 + 4096 * (n - 24)
    if n < 40: return 4096 * (n - 32)
    return 32768 + 4096 * (n - 40)
def dslot(n): return 1 if n < 8 else (2 + (n - 8) // 8 if n < 24 else (4 if n < 32 else (0 if n < 40 else 5)))
vDw = vDd
def ddma(ns):
    out = []
    for n in ns:
        out.append(B([f's_add_u32 s{sT3}, s{sDo}, {order[n]*32768:#x}', f's_add_u32 m0, s{sDl}, {dpos(n):#x}',
                      I(f'buffer_load_dwordx4 v{vDw}, {sr(SWD)}, s{sT3} offen lds', wr=[f'D{dslot(n)}'], rd=[f'@free{dslot(n)}'])]))
    return out

q_(barrier(rd=['W2', 'W3'], wr=['@free0', '@free1', '@pub2', '@pub3', 'L0', 'L1'], drain=['L0', 'L1']))
q_(B([f's_add_u32 s{sWoff}, s{sWoff}, 128']))
for b in wdma([(SWU, 0, 0)]): q_(b)
q_(f'v_lshrrev_b32 v19, 3, v{vL}', 'v_and_b32 v20, 3, v19', 'v_lshrrev_b32 v19, 2, v19', 'v_lshl_add_u32 v20, v19, 3, v20', f'v_lshlrev_b32 v{vDw}, 10, v20',
   f'v_lshrrev_b32 v19, 3, v{vL}', 'v_and_b32 v19, 2, v19', f'v_and_b32 v20, 7, v{vL}', 'v_xor_b32 v19, v19, v20', f'v_lshl_add_u32 v{vDw}, v19, 4, v{vDw}')
q_(B([f's_lshr_b32 s{sDo}, s{sW}, 1', f's_lshl_b32 s{sDo}, s{sDo}, 14', f's_and_b32 s{sT3}, s{sW}, 1', f's_lshl_b32 s{sT3}, s{sT3}, 12', f's_add_u32 s{sDo}, s{sDo}, s{sT3}',
      f's_lshl_b32 s{sT3}, s{sCgp}, 7', f's_add_u32 s{sDo}, s{sDo}, s{sT3}', f's_lshl_b32 s{sDl}, s{sW}, 10']))
for b in ddma(range(0, 8)): q_(b)
epilogue(0, aAcc0, aAcc0 + 16, True)
t1 = [(2, vr(64, 16)), (3, vr(80, 16))]
for ks in range(32): gemm_step(ks, t1)
q_(flag(0))
q_(barrier(rd=['W4', 'W0', 'D1'], wr=['@free2', '@free3', '@pub4', '@pub0', '@pubD1', 'L2', 'L3'], drain=['L2', 'L3']))
for b in ddma(range(8, 24)): q_(b)
epilogue(1, 64, 80, False)
t2 = [(4, vr(96, 16)), (0, vr(112, 16))]
for ks in range(32): gemm_step(ks, t2)
q_(flag(1))
vDA = 10
q_(B([f's_lshr_b32 s{sMir}, s{sCgp}, 2', f's_lshr_b32 s{sK}, s{sW}, 1', f's_lshl_b32 s{sT}, s{sK}, 11']))
q_(f'v_lshrrev_b32 v19, 5, v{vL}', 'v_lshlrev_b32 v19, 10, v19', f'v_bfe_u32 v20, v{vL}, 2, 2', 'v_lshl_add_u32 v19, v20, 7, v19',
   f'v_and_b32 v20, 1, v{vL}', f'v_xor_b32 v20, s{sMir}, v20', 'v_lshl_add_u32 v19, v20, 6, v19',
   f'v_bfe_u32 v20, v{vL}, 4, 1', 'v_lshl_add_u32 v19, v20, 4, v19', f'v_bfe_u32 v20, v{vL}, 1, 1', 'v_lshl_add_u32 v19, v20, 3, v19',
   f'v_bfe_u32 v20, v{vL}, 3, 1', 'v_lshl_add_u32 v19, v20, 5, v19', f'v_add_u32 v{vDA}, s{sT}, v19', f'v_xor_b32 v{vDA+3}, 32, v{vDA}')
for ct in range(2):
    for wdw in (1, 2): q_(f'v_add_u32 v{vDA+3*ct+wdw}, {65536*wdw:#x}, v{vDA+3*ct}')
aAct = 0; aDB = 172; NDB = 21
db = [0]
def dfrag(n, ct):
    b = aDB + 4 * db[0]; db[0] = (db[0] + 1) % NDB
    pos = dpos(n); va = vDA + 3 * ct + (pos >> 16); off = pos & 0xffff
    tk = [f'@pubD{dslot(n)}', f'LD{dslot(n)}']
    return b, [I(f'ds_read_b64_tr_b16 {ar(b,2)}, v{va} offset:{off}', rd=tk), I(f'ds_read_b64_tr_b16 {ar(b+2,2)}, v{va} offset:{off+512}', rd=tk)]
pre = {}
for n in range(3):
    for ct in range(2):
        b, rds = dfrag(n, ct); pre[(n, ct)] = b
        for r in rds: r.R.add('@p2end')
        q_(*rds)
q_(barrier(rd=['D2', 'D3'], wr=['@free4', '@free0', '@free5', '@pubD2', '@pubD3', 'L4', 'L0', 'LD1'], drain=['L4', 'L0', 'LD1']))
for b in ddma(range(24, 43)): q_(b)
epilogue(2, 96, 112, False)
e(*schedule(Q, verbose=True))
stamp(4)
e(flag(2))

vO = 64
win = 32
res_pre = [f's_and_b32 s{sT}, s{sCgp}, 3', f's_sub_u32 s{sT2}, 3, s{sT}', f's_cmp_eq_u32 s{sMir}, 1', f's_cselect_b32 s{sT}, s{sT2}, s{sT}',
           f's_lshr_b32 s{sIdx}, s{sT}, 1', f's_lshl_b32 s{sIdx}, s{sIdx}, 4', f's_and_b32 s{sT2}, s{sT}, 1', f's_lshl_b32 s{sT2}, s{sT2}, 1', f's_add_u32 s{sIdx}, s{sIdx}, s{sT2}',
           f's_lshl_b32 s{sT2}, s{sMir}, 5', f's_add_u32 s{sIdx}, s{sIdx}, s{sT2}',
           f's_add_u32 s{sT}, s{sT}, 1', f's_and_b32 s{sT}, s{sT}, 3',
           f's_lshr_b32 s{sT3}, s{sT}, 1', f's_lshl_b32 s{sT3}, s{sT3}, 4', f's_and_b32 s{sT2}, s{sT}, 1', f's_lshl_b32 s{sT2}, s{sT2}, 1', f's_add_u32 s{sT3}, s{sT3}, s{sT2}',
           f's_add_u32 s{sT3}, s{sT3}, 32',
           f's_set_gpr_idx_on s{sIdx}, gpr_idx(SRC0)', 's_nop 1']
for cp in range(8):
    for m in range(2): res_pre.append(f'v_mov_b32 v{win+2*cp+m}, v{gf(0,cp>>2,0,cp&3)+m}')
res_pre += ['s_set_gpr_idx_off', f's_set_gpr_idx_on s{sT3}, gpr_idx(SRC0)', 's_nop 1', f'v_mov_b32 v{win+16}, v{vG}', 's_set_gpr_idx_off', 's_nop 1']
def unpack(dst, eps):
    u, cp = eps >> 3, eps & 7
    src = win + 2 * cp + (u >> 1)
    return [f'v_and_b32 v{dst}, 0xffff0000, v{src}' if u & 1 else f'v_lshlrev_b32 v{dst}, 16, v{src}', f'v_sub_f32 v{dst}, v{dst}, v{vNM}']
rd_ = []
for col in range(32): rd_ += unpack(vO + col, col)
rm_ = [f's_mov_b32 s{sM}, 0', f's_mov_b32 s{sM+1}, -1', f'v_cndmask_b32 v{win+16}, v{win+16}, v{win}, s[{sM}:{sM+1}]', f'v_permlane32_swap_b32 v{win+16}, v{win+16}',
       f'v_lshlrev_b32 v{vO}, 16, v{win+16}', f'v_sub_f32 v{vO}, v{vO}, v{vNM}']
for col in range(1, 32): rm_ += unpack(vO + col, 32 - col)
zero = [f'v_mov_b32 v{vO+i}, 0' for i in range(32)]
e(cond_block([f's_cmp_eq_u32 s{sK}, s{sRho}', 's_cbranch_scc1'], zero))
e(cond_block([f's_cmp_lg_u32 s{sK}, s{sRho}', 's_cbranch_scc1'], res_pre + [f's_cmp_eq_u32 s{sMir}, 1', 's_cbranch_scc1 L_resm'] + rd_ + ['s_branch L_rese', 'L_resm:'] + rm_ + ['L_rese:']))
e(f's_and_b32 s{sT}, s{sW}, 1', f's_lshl_b32 s{sT2}, s{sRho}, 1', f's_add_u32 s{sIdx}, s{sT}, s{sT2}', f's_lshl_b32 s{sT2}, s{sBlk}, 2', f's_add_u32 s{sT}, s{sIdx}, s{sT2}',
  f's_mul_i32 s{sActR}, s{sT}, {86*1024}', f's_lshl_b32 s{sT2}, s{sK}, 10', f's_add_u32 s{sActR}, s{sActR}, s{sT2}', f's_add_u32 s{sActR}, s{sActR}, {WS_ACT:#x}',
  f's_lshl_b32 s{sFlagW}, s{sT}, 11', f's_add_u32 s{sFlagW}, s{sFlagW}, {FL_S2:#x}', f'v_and_b32 v19, 15, v{vL}', 'v_lshlrev_b32 v19, 7, v19')
def poll2(level, tag):
    return B([I(x, cond=None) for x in [f's_mov_b32 s{sCnt}, 0']] + [I(x) for x in [f'L_p2{tag}:',
        f'buffer_load_dword v20, v19, {sr(SWS)}, s{sFlagW} offen sc1', 's_waitcnt vmcnt(0)', f'v_cmp_gt_u32 vcc, {level}, v20',
        f's_add_u32 s{sCnt}, s{sCnt}, 1', f's_cmp_gt_u32 s{sCnt}, {SPIN}', f's_cbranch_scc1 L_p2{tag}_ok', f's_cbranch_vccz L_p2{tag}_ok', 's_sleep 1', f's_branch L_p2{tag}', f'L_p2{tag}_ok:']])
def actload(n, lat):
    return B([f's_add_u32 s{sT2}, s{sActR}, {order[n]*2048:#x}', f'buffer_load_dwordx4 {ar(aAct+4*n)}, v{vL16}, {sr(SWS)}, s{sT2} offen sc1'], lat=lat)
def p3_step(n):
    for ct in range(2):
        if (n, ct) in pre: b = pre[(n, ct)]
        else:
            b, rds = dfrag(n, ct); q_(*rds)
        q_(mf32(vr(vO + 16 * ct, 16), ar(b), ar(aAct + 4 * n), vr(vO + 16 * ct, 16)))
e(poll2(3, 'a'))
e(barrier(wr=['@pubD4', '@pubD0', '@pubD5']))
stamp(5)
Q = []
for n in range(43): q_(actload(n, 700 + 58 * n))
q_(*rowclass(sIdx, sTa, sTb, sSpec, sT3))
for n in range(43): p3_step(n)
q_(f'v_and_b32 v20, 15, v{vL}', 'v_sub_u32 v21, 15, v20', 'v_lshlrev_b32 v20, 7, v20', f'v_add_u32 v20, s{sTa}, v20', 'v_lshlrev_b32 v21, 7, v21', f'v_add_u32 v21, s{sTb}, v21',
   f'v_and_b32 v22, 16, v{vL}', 'v_cmp_eq_u32 vcc, 0, v22', 'v_cndmask_b32 v20, v21, v20, vcc', 'v_lshlrev_b32 v20, 10, v20',
   f'v_lshrrev_b32 v21, 5, v{vL}', f'v_xor_b32 v21, s{sMir}, v21', 'v_lshl_add_u32 v20, v21, 6, v20')
Q = bundle_scc(Q)
e(*schedule(Q, verbose=True))
RED = 32768 + 12288
e(f's_lshl_b32 s{sT}, s{sCgp}, 7', f's_lshl_b32 s{sT2}, s{sK}, 5', f's_add_u32 s{sT}, s{sT}, s{sT2}',
  f's_lshl_b32 s{sT2}, s{sW}, 12', f's_add_u32 s{sT2}, s{sT2}, {RED:#x}', f'v_add_u32 v21, s{sT2}, v{vL16}', 'v_xor_b32 v22, 0x2000, v21' if False else f's_xor_b32 s{sT2}, s{sW}, 2',
  f's_lshl_b32 s{sT2}, s{sT2}, 12', f's_add_u32 s{sT2}, s{sT2}, {RED:#x}', f'v_add_u32 v22, s{sT2}, v{vL16}')
e('s_barrier')
def red(own, other):
    o = [f'ds_write_b128 v21, {vr(vO+16*other+4*i)} offset:{1024*i}' for i in range(4)]
    o += ['s_waitcnt lgkmcnt(0)', 's_barrier']
    o += [f'ds_read_b128 {vr(32+4*i)}, v22 offset:{1024*i}' for i in range(4)]
    o += ['s_waitcnt lgkmcnt(0)']
    o += [f'v_add_f32 v{32+i}, v{32+i}, v{vO+16*own+i}' for i in range(16)]
    return o
e(cond_block([f's_cmp_lg_u32 s{sK}, 0', 's_cbranch_scc1'], red(0, 1)))
e(cond_block([f's_cmp_eq_u32 s{sK}, 0', 's_cbranch_scc1'], red(1, 0)))
for i in range(8): e(f'v_cvt_pk_bf16_f32 v{48+i}, v{32+2*i}, v{33+2*i}')
e(f'buffer_store_dwordx4 {vr(48)}, v20, {sr(SOUT)}, s{sT} offen', f'buffer_store_dwordx4 {vr(52)}, v20, {sr(SOUT)}, s{sT} offen offset:16')
if OPT['stamps']:
    e('s_waitcnt vmcnt(0)')
    stamp(6)
    e('s_waitcnt lgkmcnt(0)', f's_lshl_b32 s{sT}, s2, 2', f's_add_u32 s{sT}, s{sT}, s{sW}', f's_lshl_b32 s{sT}, s{sT}, 5', f's_add_u32 s{sT}, s{sT}, {WS_ST:#x}',
      's_mov_b64 exec, 1', 'v_mov_b32 v21, 0')
    for i in range(7): e(f'v_mov_b32 v20, s{sSt+2*i}', f'buffer_store_dword v20, v21, {sr(SWS)}, s{sT} offen offset:{4*i}')
e('L_exit:')

body = emit(P)
hdr = open('cdna_kernels/' + NAME + '.s.ref').read().split('; Override launch')[0]
src = hdr + f'''; @launch grid=(256,1,1) block=(256,1,1) lds=163840
.amdgcn_target "amdgcn-amd-amdhsa--gfx950"
.text
.globl {NAME}_kernel
.p2align 8
.type {NAME}_kernel,@function
{NAME}_kernel:
{body}
    s_endpgm
.section .rodata,"a"
.p2align 6
.amdhsa_kernel {NAME}_kernel
  .amdhsa_next_free_vgpr 512
  .amdhsa_next_free_sgpr 102
  .amdhsa_accum_offset 256
  .amdhsa_group_segment_fixed_size 0
  .amdhsa_kernarg_size 96
  .amdhsa_user_sgpr_count 2
  .amdhsa_user_sgpr_kernarg_segment_ptr 1
  .amdhsa_system_sgpr_workgroup_id_x 1
.end_amdhsa_kernel
'''
open(sys.argv[1], 'w').write(src)
print('lines', body.count('\n'))
```

```python
import sys, struct
from asmlib import *

NAME = 'sequential_preLN__spectral_fnet__swiglu_ffn__prompt'
OPT = dict(stamps=False)
for a in sys.argv[2:]:
    k, v = a.split('='); OPT[k] = int(v)

def fh(x): return '0x%08x' % struct.unpack('<I', struct.pack('<f', x))[0]
def vr(b, n=4): return f'v[{b}:{b+n-1}]'
def ar(b, n=4): return f'a[{b}:{b+n-1}]'
def sr(b, n=4): return f's[{b}:{b+n-1}]'

WS_G = 0; WS_Z = 0x200000; WS_MU = 0x204000; WS_FL = 0x210000; WS_ACT = 0x400000; WS_ST = 0xA00000; WS_SIZE = 0x1000000
FL_CNT = WS_FL; FL_REL = WS_FL + 2048; FL_S2 = WS_FL + 4096
ROWW = 2752
LDS_EX = 147456
SPIN = 200000

SX, SWG, SWU, SWD, SOUT, SWS, SDBG = 8, 12, 16, 20, 24, 28, 32
(sW, sChi, sCg, sS2, sBlk, sPhi, sRho, sTa, sTb, sSpec, sT0, sXb, sT, sT2, sT3, sT4, sCnt, sActW, sFlagW, sPsel0, sPsel1,
 sXmB, sXmS, sYmB, sYmS, sGa, sGb, sWoff, sLW, sActR, sCgp, sOwn, sIdx, sK, sMir, sDo, sDl) = range(48, 85)
sM = 86
sSt = 88

aX = 0; aBre = 128; aBim = 144; aOne = 160; aM = 164
aX2 = 208; aY2 = 216; aMX = 224; aMY = 232; aSelLo = 240; aSelHi = 244; aOnA = 248
aAcc0 = 128; aWB = 160; NWB = 12
aZ = 160; aMU = 192

P = []
def e(*xs):
    for x in xs: P.append(mk(x))
SSETS = [['start','A','p1','s1','p2','s2','end'], ['s1','negm','b0','b1','b2','p2','s2'], ['start','xiss','A','p1a','p1','arr','s1'], ['p2','res','s2','p3l','p3m','red','end']]
def stampi(name, **kw):
    if not OPT['stamps'] or name not in SSETS[OPT.get('sset', 0)]: return []
    i = SSETS[OPT.get('sset', 0)].index(name)
    return [I(f'{"s_memrealtime" if OPT["stamps"]==1 else "s_memtime"} s[{sSt+2*i}:{sSt+2*i+1}]', **kw)]
def stamp(name): e(*stampi(name))
_c = [0]
def cond_block(test, body, lat=None, rd=(), wr=()):
    _c[0] += 1; L = f'L_c{_c[0]}'
    ins = [I(t) for t in test[:-1]] + [I(f'{test[-1]} {L}', rd=rd, wr=wr)]
    for b in body:
        if isinstance(b, I): b.cond = _c[0]; ins.append(b)
        else: ins.append(I(b, cond=_c[0]))
    ins.append(I(L + ':'))
    return B(ins, lat=lat)
def srd(d, p, size):
    return [f's_mov_b32 s{d}, s{p}', f's_and_b32 s{d+1}, s{p+1}, 0xffff', f's_mov_b32 s{d+2}, {size:#x}', f's_mov_b32 s{d+3}, 0x20000']
def mf32(d, a, b, c): return f'v_mfma_f32_32x32x16_bf16 {d}, {a}, {b}, {c}'
def mf16(d, a, b, c): return f'v_mfma_f32_16x16x32_bf16 {d}, {a}, {b}, {c}'
def barrier(rd=(), wr=(), drain=(), st=None):
    x = I('s_barrier', rd=rd, wr=wr)
    if drain: x.drain = set(drain)
    if st and stampi(st): return B([x] + stampi(st))
    return x

vL, vL16, vWA0, vWA1, vWA2, vDd, vDm, vDs, vGo = 1, 2, 3, 4, 5, 6, 7, 8, 9
vXd, vXm, vYm, vYd = 10, 11, 12, 13
vZo, vMuX, vMuY = 14, 15, 16

e('s_cmp_ge_u32 s2, 0x100', 's_cbranch_scc1 L_exit')
stamp('start')
e('s_load_dwordx2 s[4:5], s[0:1], 0', 's_load_dwordx4 s[44:47], s[0:1], 80', 's_load_dwordx8 s[36:43], s[0:1], 48')
e('v_lshrrev_b32 v17, 6, v0', f'v_and_b32 v{vL}, 63, v0', f'v_readfirstlane_b32 s{sW}, v17')
e(f's_and_b32 s{sChi}, s2, 7', f's_lshr_b32 s{sCg}, s2, 4')
e(f's_sub_u32 s{sT}, 16, s{sChi}', f's_cmp_eq_u32 s{sChi}, 0', f's_cselect_b32 s{sT}, 8, s{sT}',
  's_bitcmp1_b32 s2, 3', f's_cselect_b32 s{sS2}, s{sT}, s{sChi}')
vXo = 17
e(f'v_bfe_u32 v18, v{vL}, 2, 2', f'v_lshlrev_b32 v{vXo}, 14, v18', f'v_lshrrev_b32 v18, 4, v{vL}', f'v_lshl_add_u32 v{vXo}, v18, 6, v{vXo}',
  f'v_and_b32 v18, 3, v{vL}', f'v_lshl_add_u32 v{vXo}, v18, 4, v{vXo}')
e(f's_lshl_b32 s{sXb}, s{sW}, 19', f's_lshl_b32 s{sT}, s{sS2}, 10', f's_add_u32 s{sXb}, s{sXb}, s{sT}')
e(f's_lshr_b32 s{sT}, s{sChi}, 1', f's_lshl_b32 s{sBlk}, s{sT}, 2', f's_bfe_u32 s{sT2}, s2, 0x20003', f's_add_u32 s{sBlk}, s{sBlk}, s{sT2}',
  f's_and_b32 s{sRho}, s{sChi}, 1', f's_lshl_b32 s{sPhi}, s{sRho}, 3', f's_lshr_b32 s{sCgp}, s2, 5', f's_add_u32 s{sPhi}, s{sPhi}, s{sCgp}')
e(f's_lshl_b32 s{sT}, s{sBlk}, 2', f's_add_u32 s{sT}, s{sT}, s{sW}', f's_lshl_b32 s{sFlagW}, s{sT}, 4', f's_add_u32 s{sFlagW}, s{sFlagW}, s{sPhi}',
  f's_lshl_b32 s{sFlagW}, s{sFlagW}, 7', f's_add_u32 s{sFlagW}, s{sFlagW}, {FL_S2:#x}', f's_mul_i32 s{sActW}, s{sT}, {86*1024}')
e(f's_lshl_b32 s{sOwn}, s{sW}, 4', f's_or_b32 s{sOwn}, s{sOwn}, s2')
e('v_mov_b32 v18, 0', f'v_lshlrev_b32 v19, 11, v{vL}', f'v_lshlrev_b32 v{vL16}, 4, v{vL}')
e('s_waitcnt lgkmcnt(0)')
e(*srd(SX, 4, 2048 * 1024)); e(*srd(SWS, 46, WS_SIZE))
e(B(['s_mov_b64 exec, 1', I(f'buffer_store_dword v18, v18, {sr(SWS)}, s{sFlagW} offen sc1'), 's_mov_b64 exec, -1']))
e(cond_block([f's_cmp_ge_u32 s{sOwn}, 16', 's_cbranch_scc1'],
   [f's_lshl_b32 s{sT}, s2, 7', f's_add_u32 s{sT}, s{sT}, {FL_CNT:#x}', 's_mov_b64 exec, 3',
    I(f'buffer_store_dword v18, v19, {sr(SWS)}, s{sT} offen sc1', wr=['init']), 's_mov_b64 exec, -1']))

A = []
def a_(*xs):
    for x in xs: A.append(mk(x))
loadsA = []
for g in range(8):
    for ks in range(4):
        pre = [f's_add_u32 s{sT2}, s{sXb}, {g*65536:#x}'] if ks == 0 else []
        loadsA.append(B(pre + [f'buffer_load_dwordx4 {ar(aX+16*g+4*ks)}, v{vXo}, {sr(SX)}, s{sT2} offen offset:{256*ks}']))

if stampi('xiss'): loadsA[-1] = B(loadsA[-1].ins + stampi('xiss'))
setup = []
def s_(*xs):
    for x in xs: setup.append(mk(x))
s_(*srd(SWG, 36, 512 * ROWW)); s_(*srd(SWU, 38, 512 * ROWW)); s_(*srd(SWD, 40, 1376 * 1024)); s_(*srd(SOUT, 42, 2048 * 1024)); s_(*srd(SDBG, 44, 256))
s_(f's_mul_i32 s{sT0}, s{sPhi}, 3', f's_lshl_b32 s{sT}, s{sPhi}, 1', f's_add_u32 s{sT}, s{sT}, 11', f's_cmp_lt_u32 s{sPhi}, 11', f's_cselect_b32 s{sT0}, s{sT0}, s{sT}',
   f's_lshl_b32 s{sWoff}, s{sT0}, 6', f's_lshl_b32 s{sT}, s{sT0}, 11', f's_add_u32 s{sActW}, s{sActW}, s{sT}', f's_add_u32 s{sActW}, s{sActW}, {WS_ACT:#x}')
s_(f'v_bfe_u32 v18, v{vL}, 4, 1', 'v_lshlrev_b32 v19, 6, v18', f'v_lshrrev_b32 v18, 5, v{vL}', 'v_lshl_add_u32 v19, v18, 5, v19',
   f'v_bfe_u32 v18, v{vL}, 2, 2', 'v_lshl_add_u32 v19, v18, 3, v19',
   f'v_and_b32 v18, 3, v{vL}', 'v_lshlrev_b32 v18, 4, v18',
   f'v_mul_u32_u24 v{vDd}, {ROWW}, v19', f'v_add_u32 v{vDd}, v{vDd}, v18',
   'v_sub_u32 v20, 120, v19', f'v_mul_u32_u24 v{vDm}, {ROWW}, v20', f'v_add_u32 v{vDm}, v{vDm}, v18',
   'v_sub_u32 v20, 0x200, v19', 'v_mov_b32 v21, 0x100', f'v_cmp_gt_u32 vcc, 4, v{vL}', 'v_cndmask_b32 v20, v20, v21, vcc',
   f'v_mul_u32_u24 v{vDs}, {ROWW}, v20', f'v_add_u32 v{vDs}, v{vDs}, v18')
s_(f's_lshl_b32 s{sLW}, s{sW}, 13', f's_mul_i32 s{sDo}, s{sW}, {2*ROWW}')
def wdma(tiles, tok=True):
    out = []
    for kk in range(8):
        cl, H, q = kk >> 2, (kk >> 1) & 1, kk & 1
        for n, (sd, p, slot) in enumerate(tiles):
            ins = []
            if n == 0:
                if H == 0: ins += [f's_add_u32 s{sT3}, s{sDo}, {(128*q+cl)*ROWW:#x}']
                else: ins += [f's_sub_u32 s{sT3}, {(392-128*q-cl)*ROWW:#x}, s{sDo}']
                ins += [f's_add_u32 s{sT3}, s{sT3}, s{sWoff}']
                if kk == 2:
                    ins += [f's_cmp_eq_u32 s{sW}, 0', f's_cselect_b32 s{sT3}, s{sWoff}, s{sT3}']
            vo = vDd if H == 0 else (vDs if kk == 2 else vDm)
            ins += [f's_add_u32 m0, s{sLW}, {slot*32768 + kk*1024 - p*64:#x}' if slot*32768 + kk*1024 - p*64 >= 0 else None]
            assert ins[-1] is not None
            ins += [I(f'buffer_load_dwordx4 v{vo}, {sr(sd)}, s{sT3} offen offset:{p*64} lds', wr=[f'W{slot}'], rd=[f'@free{slot}'])]
            out.append(B(ins))
    return out
s_(f's_cmp_eq_u32 s{sW}, 0', f's_cselect_b64 s[{sM}:{sM+1}], -1, 0', f'v_cndmask_b32 v{vDs}, v{vDm}, v{vDs}, s[{sM}:{sM+1}]')
loadsA += wdma([(SWG, 0, 0), (SWG, 1, 2), (SWU, 0, 1)])

gen = []
def g_(*xs):
    for x in xs: gen.append(mk(x))
vJ, vKq, vEf, vBa, vMsk = 18, 19, 20, 21, 22
vCr = 23
vDg = 32
vUa = 36
T = 44
g_(f'v_and_b32 v{vJ}, 15, v{vL}', f'v_lshrrev_b32 v{vKq}, 4, v{vL}')
g_(f's_and_b32 s{sT4}, s{sCg}, 7', f's_lshl_b32 s{sT4}, s{sT4}, 5', f's_lshr_b32 s{sK}, s{sCg}, 3', f's_lshl_b32 s{sK}, s{sK}, 2', f's_add_u32 s{sT4}, s{sT4}, s{sK}',
   f'v_lshrrev_b32 v{T}, 2, v{vJ}', f'v_and_b32 v{T+1}, 3, v{vJ}', f'v_lshl_add_u32 v{T}, v{T}, 3, v{T+1}', f'v_add_u32 v{T}, s{sT4}, v{T}',
   f'v_cmp_eq_u32 vcc, 0, v{T}', f'v_mov_b32 v{T+1}, 0x100', f'v_cndmask_b32 v{T}, v{T}, v{T+1}, vcc',
   f'v_cndmask_b32 v{vMsk}, 0, 1.0, vcc',
   f'v_cvt_f32_u32 v{vEf}, v{T}', f'v_mul_f32 v{vEf}, {fh(-1/512)}, v{vEf}',
   f'v_cvt_f32_u32 v{T+1}, v{vKq}', f'v_mul_f32 v{vBa}, {fh(32.0)}, v{T+1}', f'v_mul_f32 v{vBa}, v{vBa}, v{vEf}')
rot = [0]
def tmp(n):
    b = T + 2 + rot[0] * 6; rot[0] = (rot[0] + 1) % 3; return b
for ks in range(4):
    for m in range(4):
        t = tmp(6)
        for h in range(2):
            k = 128 * ks + 2 * m + h
            g_(f'v_fmamk_f32 v{t+h}, v{vEf}, {fh(float(k))}, v{vBa}', f'v_cos_f32 v{t+2+h}, v{t+h}', f'v_sin_f32 v{t+4+h}, v{t+h}')
        if ks == 0 and m == 0:
            g_(f'v_cmp_eq_u32 vcc, 0, v{vL}', f'v_cndmask_b32 v{t}, 0, v{vMsk}, vcc', f'v_add_f32 v{t+4}, v{t+4}, v{t}')
        g_(f'v_cvt_pk_bf16_f32 v{t}, v{t+2}, v{t+3}', f'v_cvt_pk_bf16_f32 v{t+1}, v{t+4}, v{t+5}',
           f'v_accvgpr_write_b32 a{aBre+4*ks+m}, v{t}', f'v_accvgpr_write_b32 a{aBim+4*ks+m}, v{t+1}')
g_(f'v_mov_b32 v{T}, 0x3f803f80')
for m in range(4): g_(f'v_accvgpr_write_b32 a{aOne+m}, v{T}')
for p in (1, 2, 3):
    t = tmp(6)
    g_(f'v_mul_f32 v{t}, {fh(8.0*p)}, v{vEf}', f'v_cos_f32 v{vCr+p-1}, v{t}', f'v_sin_f32 v{vCr+2+p}, v{t}',
       f'v_fma_f32 v{vCr+5+p}, -v{vMsk}, v{vCr+p-1}, v{vCr+p-1}')
g_(f'v_lshlrev_b32 v{T}, 2, v{vKq}', f'v_sub_u32 v{T}, v{vJ}, v{T}')
for c in range(4): g_(f'v_cmp_eq_u32 vcc, {c}, v{T}', f'v_cndmask_b32 v{vDg+c}, 0, 1.0, vcc')
vTf, vTb = 64, 65
for Tt in range(2):
    g_(f'v_lshlrev_b32 v{T}, 2, v{vJ}', f'v_add_u32 v{T}, s{sW}, v{T}', f'v_add_u32 v{T}, {64*Tt}, v{T}', f'v_cvt_f32_u32 v{vTf}, v{T}',
       f'v_mul_f32 v{vTf}, {fh(-1/2048)}, v{vTf}', f'v_lshlrev_b32 v{T+1}, 4, v{vKq}', f'v_add_u32 v{T+1}, s{sS2}, v{T+1}', f'v_cvt_f32_u32 v{vTb}, v{T+1}',
       f'v_mul_f32 v{vTb}, v{vTb}, v{vTf}')
    for m in range(4):
        t = tmp(6)
        for h in range(2):
            g_(f'v_fmamk_f32 v{t+h}, v{vTf}, {fh(64.0*(2*m+h))}, v{vTb}', f'v_cos_f32 v{t+2+h}, v{t+h}', f'v_sin_f32 v{t+4+h}, v{t+h}')
        g_(f'v_cvt_pk_bf16_f32 v{t}, v{t+2}, v{t+3}', f'v_cvt_pk_bf16_f32 v{t+1}, v{t+4}, v{t+5}', f'v_cvt_pk_bf16_f32 v{t+2}, -v{t+4}, -v{t+5}',
           f'v_accvgpr_write_b32 a{aM+12*Tt+m}, v{t}', f'v_accvgpr_write_b32 a{aM+12*Tt+4+m}, v{t+1}', f'v_accvgpr_write_b32 a{aM+12*Tt+8+m}, v{t+2}')
for w in (1, 2, 3):
    g_(f's_mul_i32 s{sT4}, s{sW}, {w}', f's_and_b32 s{sK}, s{sT4}, 3', f's_lshl_b32 s{sK}, s{sK}, 10', f's_add_u32 s{sK}, s{sK}, {LDS_EX+4096*w:#x}',
       f'v_add_u32 v{vUa+2*w-2}, s{sK}, v{vL16}',
       f's_add_u32 s{sT4}, s{sT4}, 1', f's_and_b32 s{sK}, s{sT4}, 3', f's_lshl_b32 s{sK}, s{sK}, 10', f's_add_u32 s{sK}, s{sK}, {LDS_EX+4096*w:#x}',
       f'v_add_u32 v{vUa+2*w-1}, s{sK}, v{vL16}')
g_(f's_lshl_b32 s{sK}, s{sW}, 12', f's_add_u32 s{sK}, s{sK}, {LDS_EX:#x}', f'v_add_u32 v{vUa+6}, s{sK}, v{vL16}', f'v_add_u32 v{vUa+7}, {LDS_EX:#x}, v{vL16}')
def rowclass(widx, ta, tb, spec, sK=sK):
    return [f's_and_b32 s{sT4}, s{sBlk}, 1', f's_lshl_b32 s{sT4}, s{sT4}, 2', f's_add_u32 s{sT4}, s{sT4}, s{widx}', f's_lshr_b32 s{sK}, s{sBlk}, 1',
            f's_lshl_b32 s{ta}, s{sT4}, 4', f's_add_u32 s{ta}, s{ta}, s{sK}', f's_lshl_b32 s{sT4}, s{sT4}, 3', f's_cmp_eq_u32 s{sK}, 0',
            f's_cselect_b32 s{ta}, s{sT4}, s{ta}', f's_sub_u32 s{tb}, 0x80, s{ta}', f's_cmp_eq_u32 s{ta}, 0', f's_cselect_b32 s{tb}, 64, s{tb}',
            f's_cselect_b32 s{spec}, 1, 0']
g_(*rowclass(sW, sTa, sTb, sSpec))
vI, vHb = 66, 67
g_(f'v_and_b32 v{vI}, 31, v{vL}', f'v_lshrrev_b32 v{vHb}, 5, v{vL}')
g_(f'v_lshlrev_b32 v{T}, 20, v{vHb}', f'v_xor_b32 v{T+1}, 0x100000, v{T}', f'v_lshlrev_b32 v{T+2}, 4, v{vI}', f'v_sub_u32 v{T+3}, 1008, v{T+2}',
   f'v_add_u32 v{vXd}, v{T}, v{T+2}', f'v_add_u32 v{vYd}, v{T+1}, v{T+2}',
   f's_cmp_eq_u32 s{sSpec}, 1', f's_cselect_b64 s[{sM}:{sM+1}], -1, 0',
   f'v_cndmask_b32 v{vXm}, v{T+1}, v{T}, s[{sM}:{sM+1}]', f'v_cndmask_b32 v{vYm}, v{T}, v{T+1}, s[{sM}:{sM+1}]',
   f'v_add_u32 v{vXm}, v{vXm}, v{T+3}', f'v_add_u32 v{vYm}, v{vYm}, v{T+3}')
g_(f's_lshl_b32 s{sGa}, s{sTa}, 10', f's_lshl_b32 s{sGb}, s{sTb}, 10', f's_add_u32 s{sGb}, s{sGb}, {7*131072:#x}',
   f's_cmp_eq_u32 s{sSpec}, 1', f's_cselect_b32 s{sXmB}, s{sGa}, s{sGb}', f's_cselect_b32 s{sYmB}, s{sGb}, s{sGa}',
   f's_mov_b32 s{sXmS}, 0x20000', f's_cselect_b32 s{sXmS}, s{sXmS}, 0xfffe0000', f's_sub_u32 s{sYmS}, 0, s{sXmS}')
vTau = 68
g_(f'v_sub_u32 v{T}, 15, v{vJ}', f'v_sub_u32 v{T+1}, 16, v{vJ}', f'v_cmp_lt_u32 vcc, 15, v{vI}',
   f'v_cndmask_b32 v{T+2}, v{vJ}, v{T+1}, vcc', f'v_cndmask_b32 v{T+3}, v{vJ}, v{T}, vcc',
   f'v_cndmask_b32 v{T+4}, v{T+1}, v{vJ}, vcc', f'v_cndmask_b32 v{T+5}, v{T}, v{vJ}, vcc',
   f'v_cndmask_b32 v{vTau}, v{vJ}, v{T+2}, s[{sM}:{sM+1}]', f'v_cndmask_b32 v{vTau+1}, v{T}, v{T+3}, s[{sM}:{sM+1}]',
   f'v_cndmask_b32 v{vTau+2}, v{T}, v{T+4}, s[{sM}:{sM+1}]', f'v_cndmask_b32 v{vTau+3}, v{vJ}, v{T+5}, s[{sM}:{sM+1}]')
g_(f'v_lshlrev_b32 v{T+1}, 7, v{vJ}', f'v_add_u32 v{T+1}, s{sTa}, v{T+1}', f'v_lshlrev_b32 v{T}, 7, v{T}', f'v_add_u32 v{T}, s{sTb}, v{T}',
   f'v_cndmask_b32 v{T+2}, v{T+1}, v{T}, vcc',
   f'v_cndmask_b32 v{vMuX}, v{T+2}, v{T+1}, s[{sM}:{sM+1}]', f'v_cndmask_b32 v{vMuY}, v{T+2}, v{T}, s[{sM}:{sM+1}]',
   f'v_lshlrev_b32 v{vMuX}, 2, v{vMuX}', f'v_lshlrev_b32 v{vMuY}, 2, v{vMuY}')
g_(f'v_cvt_f32_u32 v{T}, v{vHb}', f'v_mul_f32 v{T}, 4.0, v{T}')
rot2 = [0]
for mi, base in enumerate((aMX, aMY, aX2, aY2)):
    g_(f'v_cvt_f32_u32 v{vTf}, v{vTau+mi}', f'v_mul_f32 v{vTf}, {fh(1/16)}, v{vTf}', f'v_mul_f32 v{vTb}, v{vTf}, v{T}')
    for q in range(2):
        for m in range(4):
            t = T + 2 + 3 * rot2[0]; rot2[0] = (rot2[0] + 1) % 3
            g_(f'v_fmamk_f32 v{t}, v{vTf}, {fh(float(8*q+m))}, v{vTb}', f'v_cos_f32 v{t+1}, v{t}', f'v_sin_f32 v{t+2}, v{t}',
               f'v_cvt_pk_bf16_f32 v{t}, v{t+1}, v{t+2}', f'v_accvgpr_write_b32 a{base+4*q+m}, v{t}')
g_(f'v_lshlrev_b32 v{T}, 3, v{vHb}', f'v_sub_u32 v{T}, v{vI}, v{T}', f'v_mov_b32 v{T+1}, 0x3f80', f'v_mov_b32 v{T+2}, 0x3f800000')
for base, off in ((aSelLo, 0), (aSelHi, 16)):
    for m in range(4):
        g_(f'v_cmp_eq_u32 vcc, {off+2*m}, v{T}', f'v_cndmask_b32 v{T+3}, 0, v{T+1}, vcc', f'v_cmp_eq_u32 vcc, {off+2*m+1}, v{T}',
           f'v_cndmask_b32 v{T+3}, v{T+3}, v{T+2}, vcc', f'v_accvgpr_write_b32 a{base+m}, v{T+3}')
g_(f'v_add_u32 v{T}, -1, v{vL}', f'v_cmp_gt_u32 vcc, 31, v{T}', f'v_mov_b32 v{T+1}, 0x3f803f80', f'v_cndmask_b32 v{T+1}, 0, v{T+1}, vcc',
   f'v_accvgpr_write_b32 a{aOnA}, v{T+1}', f'v_accvgpr_write_b32 a{aOnA+1}, 0', f'v_accvgpr_write_b32 a{aOnA+2}, 0', f'v_accvgpr_write_b32 a{aOnA+3}, 0')
g_(f'v_lshlrev_b32 v{vGo}, 12, v{vHb}', f'v_lshl_add_u32 v{vGo}, v{vI}, 4, v{vGo}',
   f'v_cmp_eq_u32 vcc, 0, v{vI}', f'v_mov_b32 v{T}, 0x2000', f'v_cndmask_b32 v{vZo}, v{T}, 0, vcc', f'v_lshl_add_u32 v{vZo}, v{vHb}, 4, v{vZo}',
   f'v_lshlrev_b32 v{vWA0}, 9, v{vHb}', f'v_bfe_u32 v{T}, v{vL}, 2, 2', f'v_lshl_add_u32 v{vWA0}, v{T}, 6, v{vWA0}',
   f'v_bfe_u32 v{T}, v{vL}, 4, 1', f'v_lshl_add_u32 v{vWA0}, v{T}, 5, v{vWA0}', f'v_and_b32 v{T}, 3, v{vL}', f'v_lshl_add_u32 v{vWA0}, v{T}, 3, v{vWA0}',
   f'v_add_u32 v{vWA1}, 0x10000, v{vWA0}', f'v_add_u32 v{vWA2}, 0x20000, v{vWA0}',
   f's_mov_b32 s{sPsel0}, 0x05040100', f's_mov_b32 s{sPsel1}, 0x07060302')

gen = schedule(gen, lookahead=40)
def weave(loads, work, first, per):
    out = list(loads[:first]); li = first; acc = 0
    for x in work:
        out.append(x); acc += x.cost
        if acc >= per and li < len(loads) and not ('scc' in x.W):
            out.append(loads[li]); li += 1; acc = 0
    return out + list(loads[li:])
def scc_safe(seq):
    live = None
    for x in seq:
        if isinstance(x, B):
            if 'scc' in x.W: live = False
            continue
        if 'scc' in x.R: assert live is not False, f'scc clobbered before {x}'
        if 'scc' in x.W: live = True
work = setup + gen
def bundle_scc(seq):
    out = []; i = 0
    while i < len(seq):
        x = seq[i]
        if not isinstance(x, B) and 'scc' in x.W:
            j = i + 1; last = i
            while j < len(seq):
                if 'scc' in seq[j].R: last = j
                if 'scc' in seq[j].W: break
                j += 1
            if last > i:
                out.append(B(flatten(seq[i:last + 1]))); i = last + 1; continue
        out.append(x); i += 1
    return out
work = bundle_scc(work)
def weave(loads, work, first, per):
    out = list(loads[:first]); li = first; acc = 0
    for x in work:
        out.append(x); acc += x.cost
        if acc >= per and li < len(loads):
            out.append(loads[li]); li += 1; acc = 0
    return out + list(loads[li:])
e(*weave(loadsA, work, 6, 56))
stamp('A')

Q = []
def q_(*xs):
    for x in xs: Q.append(mk(x))
vAcc = 64
vU = 96
vMu = 112
vRaw = 128
xsets = [(vXd, sGa, None), (vXm, sXmB, sXmS), (vYm, sYmB, sYmS), (vYd, sGb, None)]
xloads = []
for si, (vo, sb, ss) in enumerate(xsets):
    for jj in range(8):
        if jj == 0: pre = [f's_mov_b32 s{sT2}, s{sb}']
        elif ss is not None: pre = [f's_add_u32 s{sT2}, s{sT2}, s{ss}']
        elif si == 0: pre = [f's_add_u32 s{sT2}, s{sT2}, 0x20000']
        else: pre = [f's_sub_u32 s{sT2}, s{sT2}, 0x20000']
        xloads.append(pre + [f'buffer_load_dwordx4 {vr(vRaw+32*si+4*jj)}, v{vo}, {sr(SX)}, s{sT2} offen'])
for g in range(8):
    ac = vAcc + 16 * (g & 1)
    for ks in range(4):
        xa = ar(aX + 16 * g + 4 * ks)
        for ti, bop in enumerate((ar(aBre + 4 * ks), ar(aBim + 4 * ks), ar(aOne), xa)):
            d = vr(ac + 4 * ti)
            q_(I(mf16(d, xa, bop, '0' if ks == 0 else d), wr=[f'@m{g}_{ks}'] if ti == 0 else [], rd=[f'@x{g}_{ks}'] if ti == 0 else []))
        ins = [I(t) for t in xloads[4*g+ks][:-1]] + [I(xloads[4*g+ks][-1], rd=[f'@m{g}_{ks}'], wr=[f'@x{(4*g+ks+2)//4}_{(4*g+ks+2)%4}'])]
        q_(B(ins))
    if g == 0:
        q_(cond_block([f's_cmp_ge_u32 s{sOwn}, 16', 's_cbranch_scc1'],
            ['s_mov_b64 exec, 1', 'v_mov_b32 v44, 1', 'v_mov_b32 v45, 0', I(f'buffer_atomic_add v44, v45, {sr(SDBG)}, 0 offen sc1', rd=['init']), 's_mov_b64 exec, -1']))
    if g == 5:
        q_('v_mov_b32 v121, 0', f'buffer_load_dword v120, v121, {sr(SDBG)}, 0 offen sc1')
    re, im, on, gr = ac, ac + 4, ac + 8, ac + 12
    t = 46 + 4 * (g & 1)
    ur, ui = vU + g, vU + 8 + g
    q_(f'v_mul_f32 v{t}, v{vDg}, v{gr}', f'v_fmac_f32 v{t}, v{vDg+1}, v{gr+1}', f'v_fmac_f32 v{t}, v{vDg+2}, v{gr+2}', f'v_fmac_f32 v{t}, v{vDg+3}, v{gr+3}')
    q_(f'v_add_f32 v{t+1}, v{on}, v{on+1}', f'v_add_f32 v{t+2}, v{on+2}, v{on+3}', f'v_add_f32 v{t+1}, v{t+1}, v{t+2}', f'v_mul_f32 v{vMu+g}, {fh(-1/512)}, v{t+1}')
    q_(f'v_fma_f32 v{ur}, v{vCr}, v{re+1}, v{re}', f'v_fma_f32 v{ui}, v{vCr+6}, v{im+1}, v{im}')
    for p in (1, 2, 3):
        if p > 1: q_(f'v_fmac_f32 v{ur}, v{vCr+p-1}, v{re+p}', f'v_fmac_f32 v{ui}, v{vCr+5+p}, v{im+p}')
        q_(f'v_fma_f32 v{ur}, -v{vCr+2+p}, v{im+p}, v{ur}', f'v_fmac_f32 v{ui}, v{vCr+2+p}, v{re+p}')
    for rr in (8, 4, 2, 1):
        q_(I(f'v_add_f32_dpp v{t}, v{t}, v{t} row_ror:{rr} row_mask:0xf bank_mask:0xf', lat=13))
    q_(f'v_fmac_f32 v{ui}, v{vMsk}, v{vMu+g}')
    q_(f'v_fmaak_f32 v{t}, v{t}, v{vDg-1+0}, 0' if False else f'v_mov_b32 v{t+2}, {fh(1e-5)}',
       f'v_fmamk_f32 v{t}, v{t}, {fh(1/512)}, v{t+2}', f'v_fma_f32 v{t}, -v{vMu+g}, v{vMu+g}, v{t}', f'v_rsq_f32 v{t}, v{t}',
       f'v_mul_f32 v{ur}, v{ur}, v{t}', f'v_mul_f32 v{ui}, v{ui}, v{t}')
vF = 64
for m in range(4):
    q_(f'v_cvt_pk_bf16_f32 v{vF+m}, v{vU+2*m}, v{vU+2*m+1}', f'v_cvt_pk_bf16_f32 v{vF+4+m}, v{vU+8+2*m}, v{vU+9+2*m}')
for m in range(8): q_(f'v_xor_b32 v{vF+8+m}, 0x80008000, v{vF+m}')
for ver in range(4): q_(I(f'ds_write_b128 v{vUa+6}, {vr(vF+4*ver)} offset:{1024*ver}', wr=['EX']))
e(*schedule(Q, verbose=True, vm_lat=200))
e(barrier(rd=['EX'], st='p1a'))
Q = []
vPQ = 64
q_(f'ds_read_b128 {vr(vPQ)}, v{vUa+7}', f'ds_read_b128 {vr(vPQ+4)}, v{vUa+7} offset:1024')
for w in (1, 2, 3):
    q_(f'ds_read_b128 {vr(vPQ+8*w)}, v{vUa+2*w-2}', f'ds_read_b128 {vr(vPQ+8*w+4)}, v{vUa+2*w-1}')
vGa = 96
for w in range(4):
    Pf, Qf = vr(vPQ + 8 * w), vr(vPQ + 8 * w + 4)
    for Tt in range(2):
        mre, mim, mni = ar(aM + 12 * Tt), ar(aM + 12 * Tt + 4), ar(aM + 12 * Tt + 8)
        dr, di = vr(vGa + 8 * Tt), vr(vGa + 8 * Tt + 4)
        q_(mf16(dr, Pf, mre, '0' if w == 0 else dr), mf16(di, Pf, mim, '0' if w == 0 else di))
    for Tt in range(2):
        mre, mim, mni = ar(aM + 12 * Tt), ar(aM + 12 * Tt + 4), ar(aM + 12 * Tt + 8)
        dr, di = vr(vGa + 8 * Tt), vr(vGa + 8 * Tt + 4)
        q_(mf16(dr, Qf, mni, dr), mf16(di, Qf, mre, di))
q_(f'v_lshlrev_b32 v44, 16, v{vJ}', f'v_lshl_add_u32 v44, v{vKq}, 4, v44', f'v_lshlrev_b32 v45, 8, v{vJ}',
   B([f's_lshl_b32 s{sT}, s{sW}, 14', f's_lshl_b32 s{sT2}, s{sS2}, 10', f's_add_u32 s{sT}, s{sT}, s{sT2}', f's_lshl_b32 s{sT2}, s{sCg}, 6', f's_add_u32 s{sT}, s{sT}, s{sT2}',
      f's_add_u32 s{sT2}, s{sT}, 0x100000']))
mu = [f'v_mov_b32 v46, v{vMu}']
for g in range(1, 8): mu += [f'v_cmp_eq_u32 vcc, {g}, v{vJ}', f'v_cndmask_b32 v46, v46, v{vMu+g}, vcc']
mu += ['v_cvt_pk_bf16_f32 v47, v46, v46', 'v_and_b32 v47, 0xffff0000, v47', 'v_sub_f32 v48, v46, v47', 'v_cvt_pk_bf16_f32 v47, v47, v48',
       f'v_lshlrev_b32 v46, 8, v{vJ}', f'v_lshl_add_u32 v46, v{vKq}, 6, v46',
       f's_lshl_b32 s{sT3}, s{sW}, 11', f's_lshl_b32 s{sT4}, s{sS2}, 2', f's_add_u32 s{sT3}, s{sT3}, s{sT4}', f's_add_u32 s{sT3}, s{sT3}, {WS_MU:#x}',
       's_mov_b32 exec_lo, 0x00ff00ff', 's_mov_b32 exec_hi, 0x00ff00ff', f'buffer_store_dword v47, v46, {sr(SWS)}, s{sT3} offen sc1', 's_mov_b64 exec, -1']
q_(cond_block([f's_cmp_lg_u32 s{sCg}, 0', 's_cbranch_scc1'], mu, lat=12))
side = [f's_lshl_b32 s{sT3}, s{sW}, 6', f's_lshl_b32 s{sT4}, s{sS2}, 2', f's_add_u32 s{sT3}, s{sT3}, s{sT4}', f's_add_u32 s{sT3}, s{sT3}, {WS_Z:#x}',
        f's_add_u32 s{sT4}, s{sT3}, 0x2000', 's_mov_b64 exec, 0xffff']
for Tt in range(2):
    r0, i0 = vGa + 8 * Tt, vGa + 8 * Tt + 4
    side += [I(f'v_mul_f32 v{r0}, 0.5, v{r0}'), I(f'v_mul_f32 v{i0}, 0.5, v{i0}'),
             f'v_cvt_pk_bf16_f32 v{50+2*Tt}, v{r0}, v{i0}', f'v_cvt_pk_bf16_f32 v{51+2*Tt}, -v{i0}, v{r0}',
             I(f'v_mov_b32 v{r0}, 0', partial=True), I(f'v_mov_b32 v{i0}, 0', partial=True)]
    if Tt == 1: side += ['v_add_u32 v45, 0x1000, v45']
    side += [f'buffer_store_dword v{50+2*Tt}, v45, {sr(SWS)}, s{sT3} offen sc1', f'buffer_store_dword v{51+2*Tt}, v45, {sr(SWS)}, s{sT4} offen sc1']
side += ['s_mov_b64 exec, -1']
q_(cond_block([f's_cmp_lg_u32 s{sCg}, 0', 's_cbranch_scc1'], side, lat=12))
for Tt in range(2):
    for c in range(4): q_(f'v_cvt_pk_bf16_f32 v{56+4*Tt+c}, v{vGa+8*Tt+c}, v{vGa+8*Tt+4+c}')
    q_(f'buffer_store_dwordx4 {vr(56+4*Tt)}, v44, {sr(SWS)}, s{sT if Tt == 0 else sT2} offen sc1')
e(*schedule(Q, verbose=True))
e('s_waitcnt vmcnt(0)', 's_barrier')
stamp('p1')

arr = ['s_mov_b64 exec, 1', f's_mov_b32 s{sCnt}, 0', 'L_early:', 'v_cmp_le_u32 vcc, 16, v120', 's_cbranch_vccnz L_early_ok',
       f's_add_u32 s{sCnt}, s{sCnt}, 1', f's_cmp_gt_u32 s{sCnt}, {SPIN}', 's_cbranch_scc1 L_early_ok', 's_sleep 1',
       f'buffer_load_dword v120, v121, {sr(SDBG)}, 0 offen sc1', 's_waitcnt vmcnt(0)', 's_branch L_early', 'L_early_ok:',
       f's_and_b32 s{sT}, s2, 15', f's_lshl_b32 s{sT}, s{sT}, 7', f's_add_u32 s{sT}, s{sT}, {FL_CNT:#x}', 'v_mov_b32 v44, 1',
       f'buffer_atomic_add v44, v121, {sr(SWS)}, s{sT} offen sc0 sc1', 's_waitcnt vmcnt(0)', 'v_cmp_eq_u32 vcc, 15, v44', 's_cbranch_vccz L_notlast',
       'v_mov_b32 v44, 1', f'buffer_store_dword v44, v121, {sr(SWS)}, s{sT} offen offset:2048 sc1', 'L_notlast:', 's_mov_b64 exec, -1']
e(cond_block([f's_cmp_lg_u32 s{sW}, 0', 's_cbranch_scc1'], arr))
stamp('arr')
Q = []
q_(f'v_add_u32 v17, -1, v{vL}', 'v_and_b32 v17, 31, v17', f'v_and_b32 v18, 32, v{vL}', 'v_or_b32 v17, v17, v18', 'v_lshlrev_b32 v17, 2, v17')
def xf(si, c): return aX + 32 * si + 4 * c
k = 0
for cp in range(8):
    for si in range(4):
        mirror = si in (1, 2)
        u = (8 - cp) % 8 if mirror else cp
        for m in range(4):
            t = 32 + (k % 32); k += 1
            lo, hi = vRaw + 32 * si + 8 * m + (u >> 1), vRaw + 32 * si + 8 * m + 4 + (u >> 1)
            q_(f'v_perm_b32 v{t}, v{hi}, v{lo}, s{sPsel1 if u & 1 else sPsel0}')
            if mirror and cp == 0: q_(f'ds_bpermute_b32 a{xf(si, cp)+m}, v17, v{t}' if False else f'ds_bpermute_b32 v{t}, v17, v{t}')
            q_(f'v_accvgpr_write_b32 a{xf(si, cp)+m}, v{t}')
for b in (aMU, aMU + 4):
    for m in (1, 2, 3): q_(f'v_accvgpr_write_b32 a{b+m}, 0')
q_(B([f's_lshl_b32 s{sGa}, s{sTa}, 14', f's_lshl_b32 s{sGb}, s{sTb}, 14']))
q_(B([f's_lshl_b32 s{sXmB}, s{sTa}, 6', f's_add_u32 s{sXmB}, s{sXmB}, {WS_Z:#x}', f's_lshl_b32 s{sYmB}, s{sTb}, 6', f's_add_u32 s{sYmB}, s{sYmB}, {WS_Z:#x}',
      f's_cmp_eq_u32 s{sSpec}, 1', f's_cselect_b32 s{sXmS}, s{sXmB}, s{sYmB}', f's_cselect_b32 s{sYmS}, s{sYmB}, s{sXmB}', f's_mov_b32 s{sT4}, {WS_MU:#x}']))
q_('s_mov_b32 vcc_lo, 0xffff0000', 's_mov_b32 vcc_hi, 0xffff0000')
e(*schedule(Q, lookahead=60))
poll = [f's_mov_b32 s{sCnt}, 0', f'v_and_b32 v44, 15, v{vL}', 'v_lshlrev_b32 v44, 7, v44', f's_mov_b32 s{sT}, {FL_REL:#x}', 'L_poll1:',
        f'buffer_load_dword v45, v44, {sr(SWS)}, s{sT} offen sc1', 's_waitcnt vmcnt(0)', f'v_cmp_ne_u32 s[{sM}:{sM+1}], 1, v45',
        f's_add_u32 s{sCnt}, s{sCnt}, 1', f's_cmp_gt_u32 s{sCnt}, {SPIN}', 's_cbranch_scc1 L_poll1_ok',
        f's_cmp_eq_u64 s[{sM}:{sM+1}], 0', 's_cbranch_scc1 L_poll1_ok', 's_sleep 1', 's_branch L_poll1', 'L_poll1_ok:']
e(cond_block([f's_cmp_lg_u32 s{sW}, 0', 's_cbranch_scc1'], poll))
e('s_barrier')
stamp('s1')

Q = []
vG = 128
def gf(sign, g, q, c): return vG + 64 * g + 32 * sign + 16 * q + 4 * c
zsrc = (sXmB, sXmS, sYmB, sYmS)
tl = 700
for zi in range(4):
    for q in range(2): q_(I(f'buffer_load_dwordx4 {ar(aZ+8*zi+4*q)}, v{vZo}, {sr(SWS)}, s{zsrc[zi]} offen offset:{32*q} sc1', lat=tl))
q_(I(f'buffer_load_dword a{aMU}, v{vMuX}, {sr(SWS)}, s{sT4} offen sc1', lat=tl), I(f'buffer_load_dword a{aMU+4}, v{vMuY}, {sr(SWS)}, s{sT4} offen sc1', lat=tl))
n = 0
for g in range(2):
    for sign in range(2):
        for q in range(2):
            for m in range(4):
                n += 1
                pre = [f's_add_u32 s{sT2}, s{sGb if sign else sGa}, {8192*q}'] if m == 0 else []
                q_(B(pre + [f'buffer_load_dwordx4 {vr(gf(sign,g,q,m))}, v{vGo}, {sr(SWS)}, s{sT2} offen offset:{1024*m+512*g} sc1'], lat=tl + 58 * n))
for b in wdma([(SWU, 1, 3), (SWG, 2, 4)]): q_(b)
vNX, vNY = 32, 48
vYX, vYY, vSX, vSY, vNM = 17, 18, 19, 21, 23
vTm = 24
for d, z1, m1, z2, m2, mu_ in ((vNX, aZ, aMX, aZ + 8, aX2, aMU), (vNY, aZ + 16, aMY, aZ + 24, aY2, aMU + 4)):
    D = vr(d, 16)
    q_(mf32(D, ar(z1), ar(m1), '0'), mf32(D, ar(z1 + 4), ar(m1 + 4), D), mf32(D, ar(z2), ar(m2), D), mf32(D, ar(z2 + 4), ar(m2 + 4), D), mf32(D, ar(aOnA), ar(mu_), D))
q_(B([f's_mov_b32 s{sM}, 0xffff0000', f's_mov_b32 s{sM+1}, 0', f'v_cndmask_b32 v{vYX}, 0, v{vNX}, s[{sM}:{sM+1}]']), f'v_mov_b32 v{vNX}, v{vNX+1}')
q_(B([f's_mov_b32 s{sM}, 0x0000ffff', f'v_cndmask_b32 v{vYY}, 0, v{vNY}, s[{sM}:{sM+1}]']), f'v_mov_b32 v{vNY}, v{vNY+1}')
q_(B([f'v_cndmask_b32 v{vNM}, v{vNX+1}, v{vNY+1}, vcc'] + stampi('negm')))
for r in (vSX, vSX + 1, vSY, vSY + 1): q_(f'v_mov_b32 v{r}, 0')
wb = [0]
def wfrag(slot, ks):
    b = aWB + 4 * wb[0]; wb[0] = (wb[0] + 1) % NWB
    va = (vWA0, vWA0, vWA1, vWA1, vWA2)[slot]; off = (slot & 1) * 32768 + ks * 1024
    return b, [I(f'ds_read_b64_tr_b16 {ar(b,2)}, v{va} offset:{off}', rd=[f'@pub{slot}', f'L{slot}']),
               I(f'ds_read_b64_tr_b16 {ar(b+2,2)}, v{va} offset:{off+256}', rd=[f'@pub{slot}', f'L{slot}'])]
def hcf(ks):
    cp, H, q = ks >> 2, (ks >> 1) & 1, ks & 1
    return gf(H, cp >> 2, q, cp & 3)
def gemm_step(ks, tiles):
    for slot, acc in tiles:
        b, rds = wfrag(slot, ks)
        q_(*rds); q_(mf32(acc, ar(b), vr(hcf(ks)), '0' if ks == 0 else acc))
def dft_tiles(cp):
    g, c = cp >> 2, cp & 3
    X, Y = 64 + 32 * (cp & 1), 80 + 32 * (cp & 1)
    if c == 0:
        for sign in range(2):
            for q in range(2):
                for i in range(4):
                    for j in range(i + 1, 4): q_(f'v_swap_b32 v{gf(sign,g,q,i)+j}, v{gf(sign,g,q,j)+i}')
    for d, nm, s1, s2_, sign, mm in ((X, vNX, 0, 1, 0, aMX), (Y, vNY, 2, 3, 1, aMY)):
        D = vr(d, 16)
        q_(mf32(D, ar(xf(s1, cp)), ar(aSelLo), vr(nm, 16)), mf32(D, ar(xf(s2_, cp)), ar(aSelHi), D),
           mf32(D, vr(gf(sign, g, 0, c)), ar(mm), D), mf32(D, vr(gf(sign, g, 1, c)), ar(mm + 4), D))
def dft_post(cp):
    g, c = cp >> 2, cp & 3
    X, Y = 64 + 32 * (cp & 1), 80 + 32 * (cp & 1)
    if cp == 0: q_(f'v_add_f32 v{X}, v{X}, v{vYX}', f'v_add_f32 v{Y}, v{Y}, v{vYY}')
    for m in range(8):
        t = vTm + 2 * (m & 3)
        q_(f'v_cvt_pk_bf16_f32 v{t}, v{X+2*m}, v{X+2*m+1}', f'v_cvt_pk_bf16_f32 v{t+1}, v{Y+2*m}, v{Y+2*m+1}')
        q_(f'v_cndmask_b32 v{gf(0,g,m>>2,c)+(m&3)}, v{t}, v{t+1}, vcc', f'v_cndmask_b32 v{gf(1,g,m>>2,c)+(m&3)}, v{t+1}, v{t}, vcc')
        if m & 3 == 3:
            b = gf(1, g, m >> 2, c)
            q_(cond_block([f's_cmp_eq_u32 s{sSpec}, 0', 's_cbranch_scc1'], [f'v_permlane16_swap_b32 v{b+i}, v{b+i}' for i in range(4)]))
    for r in range(16):
        q_(f'v_fmac_f32 v{vSX+(r&1)}, v{X+r}, v{X+r}', f'v_fmac_f32 v{vSY+(r&1)}, v{Y+r}, v{Y+r}')
t0 = [(0, ar(aAcc0, 16)), (1, ar(aAcc0 + 16, 16))]
dft_tiles(0); dft_post(0)
for cp in range(1, 9):
    if cp < 8: dft_tiles(cp)
    for ks in range(4 * (cp - 1), 4 * cp): gemm_step(ks, t0)
    if cp < 8: dft_post(cp)
vNr, vIr = 17, 18
q_(f'v_add_f32 v{vSX}, v{vSX}, v{vSX+1}', f'v_add_f32 v{vSY}, v{vSY}, v{vSY+1}')
q_(cond_block([f's_cmp_eq_u32 s{sSpec}, 0', 's_cbranch_scc1'], [f'v_permlane16_swap_b32 v{vSX}, v{vSY}']))
q_(f'v_add_f32 v{vSX}, v{vSX}, v{vSY}', f'v_mov_b32 v{vSY}, v{vSX}', f'v_permlane32_swap_b32 v{vSY}, v{vSY}', f'v_add_f32 v{vSX}, v{vSX}, v{vSY}',
   f'v_mov_b32 v{vSY}, {fh(1e-5)}', f'v_fmamk_f32 v{vIr}, v{vSX}, {fh(1/512)}, v{vSY}', f'v_rsq_f32 v{vNr}, v{vIr}', f'v_mul_f32 v{vNr}, {fh(-1.4426950408889634)}, v{vNr}')

et = [0]
def epilogue(p, gacc, uacc, from_a):
    pk = 56
    for r in range(16):
        t = 32 + 4 * et[0]; et[0] = (et[0] + 1) % 6
        if from_a:
            q_(f'v_accvgpr_read_b32 v{t}, a{gacc+r}', f'v_accvgpr_read_b32 v{t+1}, a{uacc+r}'); gs, us = t, t + 1
        else: gs, us = gacc + r, uacc + r
        q_(f'v_mul_f32 v{t+2}, v{vNr}, v{gs}', f'v_exp_f32 v{t+2}, v{t+2}', f'v_mul_f32 v{t+3}, v{gs}, v{us}', f'v_fma_f32 v{t+2}, v{t+2}, v{vIr}, v{vIr}',
           f'v_rcp_f32 v{t+2}, v{t+2}', f'v_mul_f32 v{vTm+(r&7)}, v{t+3}, v{t+2}')
        if r & 1: q_(f'v_cvt_pk_bf16_f32 v{pk+(r>>1)}, v{vTm+(r&7)-1}, v{vTm+(r&7)}')
        if r & 7 == 7:
            st = I(f'buffer_store_dwordx4 {vr(pk+4*(r>>3))}, v{vL16}, {sr(SWS)}, s{sActW} offen offset:{1024*(r>>3)} sc1', wr=[f'act{p}'], lat=900)
            if p == 2: q_(cond_block([f's_cmp_ge_u32 s{sPhi}, 11', 's_cbranch_scc1'], [st], lat=900))
            else: q_(st)
    q_(B([f's_add_u32 s{sActW}, s{sActW}, 2048']))
def flag(p):
    return B([f'v_mov_b32 v19, {p+1}', 'v_mov_b32 v20, 0', 's_mov_b64 exec, 1', I(f'buffer_store_dword v19, v20, {sr(SWS)}, s{sFlagW} offen sc1', rd=[f'act{p}']), 's_mov_b64 exec, -1'])

order = [(3*f if f < 11 else 2*f+11) for f in range(16)] + [(3*f+1 if f < 11 else 2*f+12) for f in range(16)] + [3*f+2 for f in range(11)]
assert sorted(order) == list(range(43))
def dpos(n):
    if n < 8: return 32768 + 4096 * n
    if n < 24: return 65536 + 4096 * (n - 8)
    if n < 32: return 131072 + 4096 * (n - 24)
    if n < 40: return 4096 * (n - 32)
    return 32768 + 4096 * (n - 40)
def dslot(n): return 1 if n < 8 else (2 + (n - 8) // 8 if n < 24 else (4 if n < 32 else (0 if n < 40 else 5)))
vDw = vDd
def ddma(ns):
    out = []
    for n in ns:
        out.append(B([f's_add_u32 s{sT3}, s{sDo}, {order[n]*32768:#x}', f's_add_u32 m0, s{sDl}, {dpos(n):#x}',
                      I(f'buffer_load_dwordx4 v{vDw}, {sr(SWD)}, s{sT3} offen lds', wr=[f'D{dslot(n)}'], rd=[f'@free{dslot(n)}'])]))
    return out

q_(barrier(rd=['W2', 'W3'], wr=['@free0', '@free1', '@pub2', '@pub3', 'L0', 'L1'], drain=['L0', 'L1'], st='b0'))
q_(B([f's_add_u32 s{sWoff}, s{sWoff}, 128']))
for b in wdma([(SWU, 0, 0)]): q_(b)
q_(f'v_lshrrev_b32 v19, 3, v{vL}', 'v_and_b32 v20, 3, v19', 'v_lshrrev_b32 v19, 2, v19', 'v_lshl_add_u32 v20, v19, 3, v20', f'v_lshlrev_b32 v{vDw}, 10, v20',
   f'v_lshrrev_b32 v19, 3, v{vL}', 'v_and_b32 v19, 2, v19', f'v_and_b32 v20, 7, v{vL}', 'v_xor_b32 v19, v19, v20', f'v_lshl_add_u32 v{vDw}, v19, 4, v{vDw}')
q_(B([f's_lshr_b32 s{sDo}, s{sW}, 1', f's_lshl_b32 s{sDo}, s{sDo}, 14', f's_and_b32 s{sT3}, s{sW}, 1', f's_lshl_b32 s{sT3}, s{sT3}, 12', f's_add_u32 s{sDo}, s{sDo}, s{sT3}',
      f's_lshl_b32 s{sT3}, s{sCgp}, 7', f's_add_u32 s{sDo}, s{sDo}, s{sT3}', f's_lshl_b32 s{sDl}, s{sW}, 10']))
for b in ddma(range(0, 8)): q_(b)
epilogue(0, aAcc0, aAcc0 + 16, True)
t1 = [(2, vr(64, 16)), (3, vr(80, 16))]
for ks in range(32): gemm_step(ks, t1)
q_(flag(0))
q_(barrier(rd=['W4', 'W0', 'D1'], wr=['@free2', '@free3', '@pub4', '@pub0', '@pubD1', 'L2', 'L3'], drain=['L2', 'L3'], st='b1'))
for b in ddma(range(8, 24)): q_(b)
epilogue(1, 64, 80, False)
t2 = [(4, vr(96, 16)), (0, vr(112, 16))]
for ks in range(32): gemm_step(ks, t2)
q_(flag(1))
vDA = 10
q_(B([f's_lshr_b32 s{sMir}, s{sCgp}, 2', f's_lshr_b32 s{sK}, s{sW}, 1', f's_lshl_b32 s{sT}, s{sK}, 11']))
q_(f'v_lshrrev_b32 v19, 5, v{vL}', 'v_lshlrev_b32 v19, 10, v19', f'v_bfe_u32 v20, v{vL}, 2, 2', 'v_lshl_add_u32 v19, v20, 7, v19',
   f'v_and_b32 v20, 1, v{vL}', f'v_xor_b32 v20, s{sMir}, v20', 'v_lshl_add_u32 v19, v20, 6, v19',
   f'v_bfe_u32 v20, v{vL}, 4, 1', 'v_lshl_add_u32 v19, v20, 4, v19', f'v_bfe_u32 v20, v{vL}, 1, 1', 'v_lshl_add_u32 v19, v20, 3, v19',
   f'v_bfe_u32 v20, v{vL}, 3, 1', 'v_lshl_add_u32 v19, v20, 5, v19', f'v_add_u32 v{vDA}, s{sT}, v19', f'v_xor_b32 v{vDA+3}, 32, v{vDA}')
for ct in range(2):
    for wdw in (1, 2): q_(f'v_add_u32 v{vDA+3*ct+wdw}, {65536*wdw:#x}, v{vDA+3*ct}')
aAct = 0; aDB = 172; NDB = 21
db = [0]
def dfrag(n, ct):
    b = aDB + 4 * db[0]; db[0] = (db[0] + 1) % NDB
    pos = dpos(n); va = vDA + 3 * ct + (pos >> 16); off = pos & 0xffff
    tk = [f'@pubD{dslot(n)}', f'LD{dslot(n)}']
    return b, [I(f'ds_read_b64_tr_b16 {ar(b,2)}, v{va} offset:{off}', rd=tk), I(f'ds_read_b64_tr_b16 {ar(b+2,2)}, v{va} offset:{off+512}', rd=tk)]
pre = {}
for n in range(3):
    for ct in range(2):
        b, rds = dfrag(n, ct); pre[(n, ct)] = b
        for r in rds: r.R.add('@p2end')
        q_(*rds)
q_(barrier(rd=['D2', 'D3'], wr=['@free4', '@free0', '@free5', '@pubD2', '@pubD3', 'L4', 'L0', 'LD1'], drain=['L4', 'L0', 'LD1'], st='b2'))
for b in ddma(range(24, 43)): q_(b)
epilogue(2, 96, 112, False)
e(*schedule(Q, verbose=True))
stamp('p2')
e(flag(2))

vO = 64
win = 32
res_pre = [f's_and_b32 s{sT}, s{sCgp}, 3', f's_sub_u32 s{sT2}, 3, s{sT}', f's_cmp_eq_u32 s{sMir}, 1', f's_cselect_b32 s{sT}, s{sT2}, s{sT}',
           f's_lshr_b32 s{sIdx}, s{sT}, 1', f's_lshl_b32 s{sIdx}, s{sIdx}, 4', f's_and_b32 s{sT2}, s{sT}, 1', f's_lshl_b32 s{sT2}, s{sT2}, 1', f's_add_u32 s{sIdx}, s{sIdx}, s{sT2}',
           f's_lshl_b32 s{sT2}, s{sMir}, 5', f's_add_u32 s{sIdx}, s{sIdx}, s{sT2}',
           f's_add_u32 s{sT}, s{sT}, 1', f's_and_b32 s{sT}, s{sT}, 3',
           f's_lshr_b32 s{sT3}, s{sT}, 1', f's_lshl_b32 s{sT3}, s{sT3}, 4', f's_and_b32 s{sT2}, s{sT}, 1', f's_lshl_b32 s{sT2}, s{sT2}, 1', f's_add_u32 s{sT3}, s{sT3}, s{sT2}',
           f's_add_u32 s{sT3}, s{sT3}, 32',
           f's_set_gpr_idx_on s{sIdx}, gpr_idx(SRC0)', 's_nop 1']
for cp in range(8):
    for m in range(2): res_pre.append(f'v_mov_b32 v{win+2*cp+m}, v{gf(0,cp>>2,0,cp&3)+m}')
res_pre += ['s_set_gpr_idx_off', f's_set_gpr_idx_on s{sT3}, gpr_idx(SRC0)', 's_nop 1', f'v_mov_b32 v{win+16}, v{vG}', 's_set_gpr_idx_off', 's_nop 1']
def unpack(dst, eps):
    u, cp = eps >> 3, eps & 7
    src = win + 2 * cp + (u >> 1)
    return [f'v_and_b32 v{dst}, 0xffff0000, v{src}' if u & 1 else f'v_lshlrev_b32 v{dst}, 16, v{src}', f'v_sub_f32 v{dst}, v{dst}, v{vNM}']
rd_ = []
for col in range(32): rd_ += unpack(vO + col, col)
rm_ = [f's_mov_b32 s{sM}, 0', f's_mov_b32 s{sM+1}, -1', f'v_cndmask_b32 v{win+16}, v{win+16}, v{win}, s[{sM}:{sM+1}]', f'v_permlane32_swap_b32 v{win+16}, v{win+16}',
       f'v_lshlrev_b32 v{vO}, 16, v{win+16}', f'v_sub_f32 v{vO}, v{vO}, v{vNM}']
for col in range(1, 32): rm_ += unpack(vO + col, 32 - col)
zero = [f'v_mov_b32 v{vO+i}, 0' for i in range(32)]
e(cond_block([f's_cmp_eq_u32 s{sK}, s{sRho}', 's_cbranch_scc1'], zero))
e(cond_block([f's_cmp_lg_u32 s{sK}, s{sRho}', 's_cbranch_scc1'], res_pre + [f's_cmp_eq_u32 s{sMir}, 1', 's_cbranch_scc1 L_resm'] + rd_ + ['s_branch L_rese', 'L_resm:'] + rm_ + ['L_rese:']))
stamp('res')
e(f's_and_b32 s{sT}, s{sW}, 1', f's_lshl_b32 s{sT2}, s{sRho}, 1', f's_add_u32 s{sIdx}, s{sT}, s{sT2}', f's_lshl_b32 s{sT2}, s{sBlk}, 2', f's_add_u32 s{sT}, s{sIdx}, s{sT2}',
  f's_mul_i32 s{sActR}, s{sT}, {86*1024}', f's_lshl_b32 s{sT2}, s{sK}, 10', f's_add_u32 s{sActR}, s{sActR}, s{sT2}', f's_add_u32 s{sActR}, s{sActR}, {WS_ACT:#x}',
  f's_lshl_b32 s{sFlagW}, s{sT}, 11', f's_add_u32 s{sFlagW}, s{sFlagW}, {FL_S2:#x}', f'v_and_b32 v19, 15, v{vL}', 'v_lshlrev_b32 v19, 7, v19')
def poll2(level, tag):
    return B([I(x, cond=None) for x in [f's_mov_b32 s{sCnt}, 0']] + [I(x) for x in [f'L_p2{tag}:',
        f'buffer_load_dword v20, v19, {sr(SWS)}, s{sFlagW} offen sc1', 's_waitcnt vmcnt(0)', f'v_cmp_gt_u32 vcc, {level}, v20',
        f's_add_u32 s{sCnt}, s{sCnt}, 1', f's_cmp_gt_u32 s{sCnt}, {SPIN}', f's_cbranch_scc1 L_p2{tag}_ok', f's_cbranch_vccz L_p2{tag}_ok', 's_sleep 1', f's_branch L_p2{tag}', f'L_p2{tag}_ok:']])
def actload(n, lat):
    return B([f's_add_u32 s{sT2}, s{sActR}, {order[n]*2048:#x}', f'buffer_load_dwordx4 {ar(aAct+4*n)}, v{vL16}, {sr(SWS)}, s{sT2} offen sc1'], lat=lat)
def p3_step(n):
    for ct in range(2):
        if (n, ct) in pre: b = pre[(n, ct)]
        else:
            b, rds = dfrag(n, ct); q_(*rds)
        q_(mf32(vr(vO + 16 * ct, 16), ar(b), ar(aAct + 4 * n), vr(vO + 16 * ct, 16)))
e(poll2(3, 'a'))
e(barrier(wr=['@pubD4', '@pubD0', '@pubD5']))
stamp('s2')
Q = []
for n in range(43): q_(actload(n, 700 + 58 * n))
if stampi('p3l'): Q[-1] = B(Q[-1].ins + stampi('p3l'), lat=Q[-1].lat)
q_(*rowclass(sIdx, sTa, sTb, sSpec, sT3))
for n in range(43): p3_step(n)
q_(f'v_and_b32 v20, 15, v{vL}', 'v_sub_u32 v21, 15, v20', 'v_lshlrev_b32 v20, 7, v20', f'v_add_u32 v20, s{sTa}, v20', 'v_lshlrev_b32 v21, 7, v21', f'v_add_u32 v21, s{sTb}, v21',
   f'v_and_b32 v22, 16, v{vL}', 'v_cmp_eq_u32 vcc, 0, v22', 'v_cndmask_b32 v20, v21, v20, vcc', 'v_lshlrev_b32 v20, 10, v20',
   f'v_lshrrev_b32 v21, 5, v{vL}', f'v_xor_b32 v21, s{sMir}, v21', 'v_lshl_add_u32 v20, v21, 6, v20')
Q = bundle_scc(Q)
e(*schedule(Q, verbose=True))
stamp('p3m')
RED = 32768 + 12288
e(f's_lshl_b32 s{sT}, s{sCgp}, 7', f's_lshl_b32 s{sT2}, s{sK}, 5', f's_add_u32 s{sT}, s{sT}, s{sT2}',
  f's_lshl_b32 s{sT2}, s{sW}, 12', f's_add_u32 s{sT2}, s{sT2}, {RED:#x}', f'v_add_u32 v21, s{sT2}, v{vL16}', 'v_xor_b32 v22, 0x2000, v21' if False else f's_xor_b32 s{sT2}, s{sW}, 2',
  f's_lshl_b32 s{sT2}, s{sT2}, 12', f's_add_u32 s{sT2}, s{sT2}, {RED:#x}', f'v_add_u32 v22, s{sT2}, v{vL16}')
e('s_barrier')
def red(own, other):
    o = [f'ds_write_b128 v21, {vr(vO+16*other+4*i)} offset:{1024*i}' for i in range(4)]
    o += ['s_waitcnt lgkmcnt(0)', 's_barrier']
    o += [f'ds_read_b128 {vr(32+4*i)}, v22 offset:{1024*i}' for i in range(4)]
    o += ['s_waitcnt lgkmcnt(0)']
    o += [f'v_add_f32 v{32+i}, v{32+i}, v{vO+16*own+i}' for i in range(16)]
    return o
e(cond_block([f's_cmp_lg_u32 s{sK}, 0', 's_cbranch_scc1'], red(0, 1)))
e(cond_block([f's_cmp_eq_u32 s{sK}, 0', 's_cbranch_scc1'], red(1, 0)))
stamp('red')
for i in range(8): e(f'v_cvt_pk_bf16_f32 v{48+i}, v{32+2*i}, v{33+2*i}')
e(f'buffer_store_dwordx4 {vr(48)}, v20, {sr(SOUT)}, s{sT} offen', f'buffer_store_dwordx4 {vr(52)}, v20, {sr(SOUT)}, s{sT} offen offset:16')
if OPT['stamps']:
    e('s_waitcnt vmcnt(0)')
    stamp('end')
    e('s_waitcnt lgkmcnt(0)', f's_lshl_b32 s{sT}, s2, 2', f's_add_u32 s{sT}, s{sT}, s{sW}', f's_lshl_b32 s{sT}, s{sT}, 5', f's_add_u32 s{sT}, s{sT}, {WS_ST:#x}',
      's_mov_b64 exec, 1', 'v_mov_b32 v21, 0')
    for i in range(7): e(f'v_mov_b32 v20, s{sSt+2*i}', f'buffer_store_dword v20, v21, {sr(SWS)}, s{sT} offen offset:{4*i}')
if OPT.get('dbgst'):
    for i in range(1, 7): e(f's_sub_u32 s{sT}, s{sSt+2*i}, s{sSt}', f'v_mov_b32 v20, s{sT}', f'buffer_atomic_umax v20, v21, {sr(SDBG)}, 0 offen offset:{4*i} sc1')
    e(f'v_mov_b32 v20, s{sSt}', f'buffer_atomic_umax v20, v21, {sr(SDBG)}, 0 offen offset:32 sc1', f'v_not_b32 v22, v20', f'buffer_atomic_umax v22, v21, {sr(SDBG)}, 0 offen offset:36 sc1',
      f'v_mov_b32 v23, s{sSt+12}', f'buffer_atomic_umax v23, v21, {sr(SDBG)}, 0 offen offset:40 sc1')
e('L_exit:')

body = emit(P)
hdr = open('cdna_kernels/' + NAME + '.s.ref').read().split('; Override launch')[0]
src = hdr + f'''; @launch grid=(256,1,1) block=(256,1,1) lds=163840
.amdgcn_target "amdgcn-amd-amdhsa--gfx950"
.text
.globl {NAME}_kernel
.p2align 8
.type {NAME}_kernel,@function
{NAME}_kernel:
{body}
    s_endpgm
.section .rodata,"a"
.p2align 6
.amdhsa_kernel {NAME}_kernel
  .amdhsa_next_free_vgpr 512
  .amdhsa_next_free_sgpr 102
  .amdhsa_accum_offset 256
  .amdhsa_group_segment_fixed_size 0
  .amdhsa_kernarg_size 96
  .amdhsa_user_sgpr_count 2
  .amdhsa_user_sgpr_kernarg_segment_ptr 1
  .amdhsa_system_sgpr_workgroup_id_x 1
.end_amdhsa_kernel
'''
open(sys.argv[1], 'w').write(src)
print('lines', body.count('\n'))
```

```python
import re

REG = re.compile(r'^-?(?:abs\()?([vas])(?:(\d+)|\[(\d+):(\d+)\])\)?$')
def regs_of(op):
    op = op.strip()
    m = REG.match(op)
    if m:
        k = m.group(1)
        if m.group(2) is not None: return [k + m.group(2)]
        return [k + str(i) for i in range(int(m.group(3)), int(m.group(4)) + 1)]
    if op == 'vcc': return ['vcc']
    if op in ('vcc_lo', 'vcc_hi'): return ['vcc']
    if op in ('exec', 'exec_lo', 'exec_hi'): return ['exec']
    if op == 'm0': return ['m0']
    return []

TRANS = ('v_exp_f32', 'v_log_f32', 'v_rcp_f32', 'v_rsq_f32', 'v_sqrt_f32', 'v_sin_f32', 'v_cos_f32')
SCC_W = ('s_add_', 's_addc', 's_sub_', 's_subb', 's_and_', 's_or_', 's_xor_', 's_lshl', 's_lshr', 's_ashr', 's_cmp', 's_min', 's_max',
         's_andn2', 's_not', 's_bfe', 's_addk', 's_bitcmp')
SCC_R = ('s_cselect', 's_addc', 's_subb', 's_cbranch_scc', 's_cmov')

class I:
    def __init__(s, text, rd=(), wr=(), cond=False, lat=None, partial=False, svc=64, nb=0):
        s.text = text; s.cond = cond; s.lat = lat; s.svc = svc; s.nb = nb
        t = text.split(';')[0].strip()
        s.label = t.endswith(':')
        parts = t.split(None, 1)
        s.op = parts[0] if parts else ''
        ops = []
        if len(parts) > 1 and not s.label:
            body = parts[1]
            ops = [o.strip() for o in body.split(',')]
            last = ops[-1].split()
            s.mods = last[1:]
            ops[-1] = last[0]
        else: s.mods = []
        s.ops = ops
        R, W = [], []
        op = s.op
        cls = 'other'
        allr = lambda l: [r for o in l for r in regs_of(o)]
        if s.label: cls = 'label'
        elif op.startswith('v_mfma'):
            cls = 'mfma'; W = regs_of(ops[0]); R = allr(ops[1:]) + ['exec']
            s.passes = 8 if '32x32x16' in op else 4
            s.A = regs_of(ops[1]); s.B = regs_of(ops[2]); s.C = regs_of(ops[3])
        elif op.startswith('v_'):
            cls = 'trans' if op.replace('_e32', '').replace('_e64', '') in TRANS else 'valu'
            if op.startswith('v_swap') or op.startswith('v_permlane'):
                W = allr(ops[:2]); R = allr(ops[:2])
            elif op.startswith('v_add_co') or op.startswith('v_addc_co') or op.startswith('v_sub_co'):
                W = allr(ops[:2]); R = allr(ops[2:])
            else:
                W = regs_of(ops[0]); R = allr(ops[1:])
                if op.startswith('v_fmac') or op.startswith('v_dot2c') or '_dpp' in op or op.startswith('v_writelane') or partial:
                    R = R + W
            R = R + ['exec']
        elif op.startswith('ds_'):
            cls = 'ds'
            if op.startswith('ds_write'): R = allr(ops)
            else: W = regs_of(ops[0]); R = allr(ops[1:])
            if partial: R = R + W
            R = R + ['exec']
        elif op.startswith('buffer_') or op.startswith('global_'):
            cls = 'vmem'
            if 'lds' in s.mods: R = allr(ops) + ['m0']
            elif '_load' in op: W = regs_of(ops[0]); R = allr(ops[1:])
            elif '_atomic' in op and 'sc0' in s.mods:
                W = regs_of(ops[0]); R = allr(ops) if op.startswith('buffer_') else allr(ops[1:])
            else: R = allr(ops)
            if partial: R = R + W
            R = R + ['exec']
            s.store = ('_store' in op)
            s.wide = s.store and ('x3' in op or 'x4' in op)
            s.data = (regs_of(ops[0]) if op.startswith('buffer_') else regs_of(ops[1])) if s.store else []
        elif op.startswith('s_load') or op.startswith('s_memtime') or op.startswith('s_memrealtime'):
            cls = 'smem'; W = regs_of(ops[0]); R = allr(ops[1:])
        elif op == 'WAITFOR':
            cls = 'ctl'; R = allr(ops)
        elif op in ('s_waitcnt', 's_nop', 's_barrier', 's_sleep', 's_endpgm', 's_setprio', 's_set_gpr_idx_off') or op.startswith('s_branch'):
            cls = 'ctl'
        elif op.startswith('s_cbranch'):
            cls = 'ctl'
            if 'vcc' in op: R = ['vcc']
            if 'exec' in op: R = ['exec']
        elif op.startswith('s_cmp') or op.startswith('s_bitcmp'):
            cls = 'salu'; R = allr(ops)
        elif op.startswith('s_set_gpr_idx_on'):
            cls = 'salu'; R = allr(ops[:1]); W = ['m0']
        elif op.startswith('s_'):
            cls = 'salu'; W = regs_of(ops[0]); R = allr(ops[1:])
            if 'saveexec' in op: W = W + ['exec']; R = R + ['exec']
            if op.startswith('s_addk') or op.startswith('s_mulk') or op.startswith('s_cmov'): R = R + W
        if any(op.startswith(p) for p in SCC_W) or 'saveexec' in op: W = W + ['scc']
        if any(op.startswith(p) for p in SCC_R): R = R + ['scc']
        s.cls = cls
        s.R = set(R) | set(rd); s.W = set(W) | set(wr)
        if cls == 'mfma': s.cost = 8
        elif cls == 'trans' or op.startswith('v_swap') or op.startswith('v_permlane'): s.cost = 8
        elif cls == 'label': s.cost = 0
        elif op.startswith('s_cbranch'): s.cost = 9
        elif op.startswith('ds_write_b128'): s.cost = 20
        elif cls == 'vmem' and s.store: s.cost = 9
        else: s.cost = 4
    def __repr__(s): return s.text

class B:
    def __init__(s, ins, lat=None, nb=0):
        s.ins = [x if isinstance(x, I) else I(x) for x in ins]
        s.nb = nb; s.svc = sum(x.svc for x in s.ins if x.cls == 'vmem' and not x.cond)
        s.R = set(); s.W = set()
        s.Rx = set(); anyw = set()
        for x in s.ins:
            s.Rx |= (x.R - anyw); anyw |= x.W
        sure = set()
        for x in s.ins:
            s.R |= (x.R - sure); s.W |= x.W
            if x.cond: s.R |= (x.W - sure)
            else: sure |= x.W
        s.cost = sum(0 if x.cond else x.cost for x in s.ins)
        s.cls = 'bundle'; s.lat = lat
        s.kinds = set(x.cls for x in s.ins if not x.cond)

def mk(x): return x if isinstance(x, (I, B)) else I(x)

import subprocess
_SZ = {}
def sizes(prog):
    ins = [y for x in prog for y in (x.ins if isinstance(x, B) else [x])]
    todo = sorted(set(y.text for y in ins if not y.label and y.op != 'WAITFOR' and 'branch' not in y.op and y.text not in _SZ))
    if todo:
        r = subprocess.run(['llvm-mc', '-triple=amdgcn-amd-amdhsa', '-mcpu=gfx950', '-show-encoding'], input='\n'.join(todo), capture_output=True, text=True)
        assert r.returncode == 0, r.stderr
        enc = [l for l in r.stdout.splitlines() if 'encoding:' in l]
        assert len(enc) == len(todo)
        for t, l in zip(todo, enc): _SZ[t] = l.split('encoding:')[1].count('0x')
    for y in ins: y.size = 0 if y.label else _SZ.get(y.text, 4)
SCRATCH = {'scc', 'm0'}
def schedule(prog, lookahead=3000, ds_lat=110, vm_lat=1200, verbose=False):
    prog = [mk(x) for x in prog]
    n = len(prog)
    def kinds(x): return x.kinds if isinstance(x, B) else {x.cls}
    preds = [[] for _ in range(n)]
    lastw = {}; readers = {}
    lastk = {}
    exposed = set()
    for x in prog: exposed |= (x.Rx if isinstance(x, B) else x.R)
    drop = {'exec'} | (SCRATCH - exposed)
    for i, x in enumerate(prog):
        R = x.R - drop; W = x.W - drop
        for r in R:
            if r in lastw:
                p = lastw[r]; y = prog[p]
                lat = y.cost
                ky = kinds(y)
                if r[0] == '@': lat = 1
                elif iss(r) or r in ('scc', 'm0'): lat = y.cost
                elif y.lat is not None: lat = y.lat
                elif 'mfma' in ky and not isinstance(y, B):
                    if x.cls == 'mfma' and r in x.C and set(x.C) == y.W and r not in x.A and r not in x.B: lat = 4 * y.passes
                    else: lat = 4 * y.passes + 28
                elif 'vmem' in ky and r[0] in 'va': lat = vm_lat
                elif 'ds' in ky and r[0] in 'va': lat = ds_lat
                elif x.cls == 'mfma': lat = y.cost + 8
                elif 'trans' in ky: lat = y.cost + 4
                preds[i].append((p, lat))
        for w in W:
            if w in lastw:
                p = lastw[w]; y = prog[p]
                lat = 1
                if y.cls == 'mfma' and not (x.cls == 'mfma'): lat = 4 * y.passes + 28
                preds[i].append((p, lat))
            for p in readers.get(w, ()):
                if p != i:
                    y = prog[p]; lat = 1
                    if y.cls == 'mfma' and w in y.C and x.cls != 'mfma': lat = 4 * y.passes
                    preds[i].append((p, lat))
        for k in ('mfma', 'ds', 'vmem', 'smem'):
            if k in kinds(x):
                if k in lastk: preds[i].append((lastk[k], max(1, prog[lastk[k]].svc) if k == 'vmem' else 1))
                lastk[k] = i
        for r in R: readers.setdefault(r, []).append(i)
        for w in W:
            lastw[w] = i; readers[w] = []
    tail = [0] * n
    succs = [[] for _ in range(n)]
    for i in range(n):
        for p, lat in preds[i]: succs[p].append((i, lat))
    for i in range(n - 1, -1, -1):
        x = prog[i]
        own = 4 * x.passes if x.cls == 'mfma' else x.cost
        t = own
        for sidx, lat in succs[i]:
            l = lat
            if x.cls == 'mfma' and prog[sidx].cls == 'mfma': l = max(l, 4 * x.passes)
            t = max(t, l + tail[sidx])
        tail[i] = t
    sizes(prog)
    done = [None] * n
    npred = [len(set(p for p, _ in preds[i])) for i in range(n)]
    ready_t = [x.nb for x in prog]
    avail = set(i for i in range(n) if npred[i] == 0)
    out = []; first = 0
    st = dict(I=0, V=0, M=0, F=0.0, P=0)
    def sim(x, st, rdy):
        st = dict(st); start = None
        for y in (x.ins if isinstance(x, B) else [x]):
            if y.cond or y.label: continue
            t = max(st['I'], rdy, st['F'] - 24)
            if y.cls in ('valu', 'trans', 'mfma'): t = max(t, st['V'])
            if y.cls == 'mfma': t = max(t, st['P'])
            if y.cls in ('ds', 'vmem'): t = max(t, st['M'])
            if start is None: start = t
            st['F'] = max(st['F'], t - 24) + y.size / 1.55
            if y.cls == 'mfma': st['I'] = t + 4; st['V'] = t + 8; st['M'] = t + 4; st['P'] = t + 4 * y.passes
            elif y.cls in ('valu', 'trans'): st['I'] = t + y.cost; st['V'] = t + y.cost; st['M'] = t + y.cost + 4
            elif y.cls in ('ds', 'vmem'): st['I'] = t + y.cost; st['V'] = t + y.cost + 4; st['M'] = t + y.cost
            else: st['I'] = t + y.cost; st['V'] = max(st['V'], t + y.cost); st['M'] = max(st['M'], t + y.cost)
        return (start if start is not None else st['I']), st
    def cat(x):
        k = kinds(x)
        if 'ds' in k or 'vmem' in k: return 'm'
        if 'valu' in k or 'trans' in k: return 'v'
        return 's'
    cats = [('M' if x.cls == 'mfma' else cat(x)) for x in prog]
    while len(out) < n:
        while first < n and done[first] is not None: first += 1
        cands = [i for i in avail if i < first + lookahead]
        m = [i for i in cands if cats[i] == 'M']
        now = st['I']
        mt = max(ready_t[m[0]], st['P']) if m else None
        key = lambda i: (0 if 'vmem' in kinds(prog[i]) else 1, -tail[i], i)
        bound = mt if mt is not None else None
        def fits(i):
            if bound is None: return True
            return sim(prog[i], st, ready_t[i])[1]['V'] <= bound + 2 or tail[i] > tail[m[0]]
        rdy = lambda c, t: sorted([i for i in cands if cats[i] == c and ready_t[i] <= t], key=key)
        pick = None
        window = st['M'] <= st['I']
        bubble = st['V'] > st['I']
        if window:
            c = [i for i in rdy('m', now) if fits(i)]
            if c: pick = c[0]
        if pick is None and bubble:
            c = [i for i in rdy('s', now) if fits(i)]
            if c: pick = c[0]
        if pick is None and m and mt <= max(st['V'], now) + 2: pick = m[0]
        if pick is None:
            tv = max(now, st['V'])
            c = rdy('v', tv) + rdy('s', now)
            cm = rdy('m', st['M'])
            if cm and (not c or not m or -tail[cm[0]] < min(-tail[j] for j in c) and tail[cm[0]] > tail[m[0]] + 32): c = c + cm[:1]
            c.sort(key=lambda i: (-tail[i], i))
            c2 = [i for i in c if fits(i)]
            if c2: pick = c2[0]
            elif m: pick = m[0]
            else: pick = min(cands, key=lambda i: (ready_t[i], i))
            if m and pick == m[0] and mt > tv + 8:
                o = [i for i in cands if cats[i] != 'M' and ready_t[i] < mt and fits(i)]
                if o: pick = min(o, key=lambda i: (ready_t[i], i))
        x = prog[pick]
        s0, st = sim(x, st, ready_t[pick])
        done[pick] = s0
        out.append(x); avail.discard(pick)
        for sidx in set(q for q, _ in succs[pick]):
            npred[sidx] -= 1
        for sidx, lat in succs[pick]:
            ready_t[sidx] = max(ready_t[sidx], s0 + lat)
            if npred[sidx] == 0 and done[sidx] is None: avail.add(sidx)
    t = int(st['I'])
    done = [int(d) for d in done]
    if verbose:
        print(f'   scheduled {n} items, est {t} cycles')
        ms = sorted((done[i], i) for i in range(n) if prog[i].cls == 'mfma')
        if ms:
            gaps = [(ms[k+1][0] - ms[k][0], k, ms[k][0]) for k in range(len(ms) - 1)]
            print('     first mfma', ms[0][0], 'last', ms[-1][0], 'big gaps (len, idx, t):', sorted([g for g in gaps if g[0] > 60], key=lambda g: g[1])[:30])
        print('     barriers at', [done[i] for i in range(n) if any(y.op == 's_barrier' for y in (prog[i].ins if isinstance(prog[i], B) else [prog[i]]))])
    return out

def flatten(prog):
    o = []
    for x in prog:
        x = mk(x)
        if isinstance(x, B): o += x.ins
        else: o.append(x)
    return o

WAIT = re.compile(r'(vmcnt|lgkmcnt)\((\d+)\)')
def add_waits(prog):
    out = []
    vm = []
    lg = []
    def need(pend, x):
        use = set(r for r in x.R - {'exec', 'scc', 'm0'} if r[0] != '@') | set(r for r in x.W if isv(r) or iss(r))
        k = -1
        for idx, y in enumerate(pend):
            if y.W & use: k = idx
            elif hasattr(x, 'drain') and (y.R & x.drain): k = idx
        if k < 0: return None
        return k
    for x in prog:
        if x.op == 's_waitcnt':
            for name, val in WAIT.findall(x.text):
                val = int(val)
                pend = vm if name == 'vmcnt' else lg
                if x.cond:
                    if val == 0: pend[:] = [y for y in pend if y.cond != x.cond]
                    continue
                keep = []; c = 0
                for y in reversed(pend):
                    if c >= val: break
                    keep.append(y)
                    if not y.cond: c += 1
                keep.reverse()
                if name == 'lgkmcnt' and val > 0 and any(y.cls == 'smem' for y in pend): keep = pend[:]
                pend[:] = keep
            out.append(x); continue
        w = []
        k = need(vm, x)
        if k is not None:
            cnt = sum(1 for y in vm[k + 1:] if not y.cond)
            w.append(f'vmcnt({min(cnt, 63)})')
            if not x.cond: vm[:] = vm[k + 1:]
        k = need(lg, x)
        if k is not None:
            if any(y.cls == 'smem' for y in lg): cnt = 0; k = len(lg) - 1
            else: cnt = sum(1 for y in lg[k + 1:] if not y.cond)
            w.append(f'lgkmcnt({min(cnt, 15)})')
            if not x.cond: lg[:] = lg[k + 1:]
        if w: out.append(I('s_waitcnt ' + ' '.join(w), cond=x.cond))
        if x.op == 'WAITFOR': continue
        out.append(x)
        if x.cls == 'vmem': vm.append(x)
        elif x.cls in ('ds', 'smem'): lg.append(x)
    return out

def isv(r): return r[0] in 'va' and r[1:].isdigit()
def iss(r): return (r[0] == 's' and r[1:].isdigit()) or r == 'vcc'
def add_nops(prog):
    out = []
    def states(y):
        if y.label: return 0
        if y.op == 's_nop': return int(y.ops[0], 0) + 1
        return 1
    for x in prog:
        req = 0
        if not x.label:
            d = 0
            valu_x = x.cls in ('valu', 'trans')
            for y in reversed(out):
                if d >= 20: break
                n = 0
                valu_y = y.cls in ('valu', 'trans')
                yWv = set(r for r in y.W if isv(r)); yWs = set(r for r in y.W if iss(r))
                if valu_y:
                    if x.cls == 'mfma' and (yWv & x.R): n = max(n, 2)
                    if x.cls == 'vmem' and (yWs & x.R): n = max(n, 5)
                    if valu_x and '_dpp' in x.op and (yWv & x.R): n = max(n, 2)
                    if valu_x and (yWs & x.R): n = max(n, 4 if ('readlane' in x.op or 'writelane' in x.op) else 2)
                    if valu_x and ('readfirstlane' in x.op or 'readlane' in x.op) and (yWv & x.R): n = max(n, 1)
                    if y.cls == 'trans' and x.cls == 'valu' and (yWv & x.R): n = max(n, 1)
                    if x.op.startswith('v_permlane') and (yWv & x.R): n = max(n, 2)
                    if 'exec' in y.W and x.cls in ('mfma', 'valu', 'trans'): n = max(n, 5)
                    if 'vcc' in y.W and x.op.startswith('s_cbranch_vcc'): n = max(n, 1)
                    if x.cls == 'salu' and (yWs & x.R): n = max(n, 1)
                if y.cls == 'mfma':
                    P = y.passes
                    if x.cls == 'mfma':
                        if yWv & (set(x.A) | set(x.B)): n = max(n, P + 4)
                        if yWv & set(x.C):
                            if not (set(x.C) == yWv and x.passes == P): n = max(n, P + 2)
                        elif yWv & x.W: n = max(n, P + 2)
                    elif x.cls in ('valu', 'trans', 'vmem', 'ds'):
                        if yWv & (x.R | x.W): n = max(n, P + 4)
                        if valu_x and (set(y.C) & x.W): n = max(n, P - 1)
                if y.cls == 'vmem' and y.wide and (set(y.data) & x.W): n = max(n, 2)
                if y.cls == 'salu' and 'm0' in y.W and 'm0' in x.R and x.cls == 'vmem': n = max(n, 1)
                if y.cls == 'salu' and 'exec' in y.W and valu_x and '_dpp' in x.op: n = max(n, 1)
                req = max(req, n - d)
                if (not y.cond) or (x.cond and y.cond == x.cond): d += states(y)
        while req > 0:
            k = min(req, 16)
            out.append(I(f's_nop {k-1}', cond=x.cond)); req -= k
        out.append(x)
    return out

def emit(prog, outline):
    p = add_nops(add_waits(flatten(prog)))
    main = []; tail = {}
    for x in p:
        if x.cond in outline: tail.setdefault(x.cond, []).append(x)
        else: main.append(x)
    fmt = lambda l: [(x.text if x.label else '    ' + x.text) for x in l]
    o = fmt(main) + ['    s_endpgm']
    for c, l in tail.items():
        o += [outline[c][0] + ':'] + fmt(l) + ['    s_branch ' + outline[c][1]]
    return '\n'.join(o)
```

```python
import sys, struct
from asmlib import *

NAME = 'sequential_preLN__spectral_fnet__swiglu_ffn__prompt'
OPT = dict(stamps=0, sset=0, nx0=8, a8=1, n2=0, n3=8, n4=8, n5=8)
for a in sys.argv[2:]:
    k, v = a.split('='); OPT[k] = int(v)

def fh(x): return '0x%08x' % struct.unpack('<I', struct.pack('<f', x))[0]
def vr(b, n=4): return f'v[{b}:{b+n-1}]'
def ar(b, n=4): return f'a[{b}:{b+n-1}]'
def sr(b, n=4): return f's[{b}:{b+n-1}]'

WS_G = 0; WS_G2 = 0x200000; WS_HC = 0x400000; WS_ACT = 0x600000; WS_MU = 0xB80000; WS_SS = 0xB90000; WS_M = 0xBB0000
WS_ST = 0xC00000; WS_SIZE = 0x1000000
ROWW = 2752
LDS_EX = 155648
SPIN = 100000

SX, SWG, SWU, SWD, SOUT, SWS, SDBG = 8, 12, 16, 20, 24, 28, 32
(sW, sChi, sCg, sS2, sBlk, sPhi, sRho, sCls, sTT, sT0, sXb, sT, sT2, sT3, sT4, sCnt, sActW, sGs, sMus, sHcW, sSsW,
 sSrc, sSrc2, sWoff, sLW, sActR, sCgp, sK, sDo, sWc, sDc, sAc, sC3, sC2, sWst, sHcR, sR, sPf) = range(48, 86)
sM = 86; sSt = 88
sAct3 = 3; sSsR = 6
SCRATCH.update(f's{r}' for r in (sM, sM+1, sR, sCnt, sT2, sT3, sT4)); SCRATCH.add('vcc')

P = []
def e(*xs):
    for x in xs: P.append(mk(x))
SSETS = [['start','A','p1','g','h','p2','end'], ['start','A','p1a','p1','g','gv','h'], ['h','hl','b0','b1','b2','p2','p3m'], ['b2','p2','p3m','red','end','end2','end3']]
def stampi(name, **kw):
    if not OPT['stamps'] or name not in SSETS[OPT['sset']]: return []
    i = SSETS[OPT['sset']].index(name)
    return [I(f'{"s_memrealtime" if OPT["stamps"]==1 else "s_memtime"} s[{sSt+2*i}:{sSt+2*i+1}]', **kw)]
def stamp(name): e(*stampi(name))
_c = [0]; OUT = {}
def _body(body):
    ins = []
    for b in body:
        if isinstance(b, I): b.cond = _c[0]; ins.append(b)
        else: ins.append(I(b, cond=_c[0]))
    return ins
def cond_block(test, body, lat=None):
    _c[0] += 1; L = f'L_c{_c[0]}'
    return B([mk(t) for t in test[:-1]] + [I(f'{test[-1]} {L}')] + _body(body) + [I(L + ':')], lat=lat)
def rare_block(test, body, lat=None, rd=(), wr=()):
    _c[0] += 1; OUT[_c[0]] = (f'L_o{_c[0]}', f'L_b{_c[0]}')
    return B([mk(t) for t in test[:-1]] + [I(f'{test[-1]} L_o{_c[0]}', rd=rd, wr=wr)] + _body(body) + [I(f'L_b{_c[0]}:')], lat=lat)
def srd(d, p, size):
    return [f's_mov_b32 s{d}, s{p}', f's_and_b32 s{d+1}, s{p+1}, 0xffff', f's_mov_b32 s{d+2}, {size:#x}', f's_mov_b32 s{d+3}, 0x20000']
def mf32(d, a, b, c): return f'v_mfma_f32_32x32x16_bf16 {d}, {a}, {b}, {c}'
def mf16(d, a, b, c): return f'v_mfma_f32_16x16x32_bf16 {d}, {a}, {b}, {c}'
def barrier(rd=(), wr=(), drain=(), st=None):
    x = I('s_barrier', rd=rd, wr=wr)
    if drain: x.drain = set(drain)
    if st and stampi(st): return B([x] + stampi(st))
    return x
def bundle_scc(seq):
    seq = [mk(x) for x in seq]
    out = []; i = 0
    while i < len(seq):
        x = seq[i]
        if not isinstance(x, B) and 'scc' in x.W:
            j = i + 1; last = i
            while j < len(seq):
                if 'scc' in (seq[j].Rx if isinstance(seq[j], B) else seq[j].R): last = j
                if 'scc' in seq[j].W: break
                j += 1
            if last > i:
                out.append(B(flatten(seq[i:last + 1]))); i = last + 1; continue
        out.append(x); i += 1
    return out
def maxchain(dst, regs):
    o = []; regs = list(regs)
    if len(regs) == 2: return [f'v_max_u32 v{dst}, v{regs[0]}, v{regs[1]}']
    o.append(f'v_max3_u32 v{dst}, v{regs[0]}, v{regs[1]}, v{regs[2]}'); regs = regs[3:]
    while len(regs) >= 2:
        o.append(f'v_max3_u32 v{dst}, v{dst}, v{regs[0]}, v{regs[1]}'); regs = regs[2:]
    if regs: o.append(f'v_max_u32 v{dst}, v{dst}, v{regs[0]}')
    return o
def retry_body(dst, regs, loads, tag, bit):
    cnt = [f's_add_u32 s40, s40, {1 << bit:#x}'] if OPT['stamps'] else []
    return [f's_mov_b32 s{sCnt}, 0', f'L_r{tag}:'] + cnt + [x for l in loads for x in l] + ['s_waitcnt vmcnt(0)'] + maxchain(dst, regs) + \
           [f'v_cmp_eq_u32 vcc, -1, v{dst}', f's_add_u32 s{sCnt}, s{sCnt}, 1', f's_cmp_gt_u32 s{sCnt}, {SPIN}', f's_cbranch_scc1 L_rx{tag}',
            f's_cbranch_vccnz L_r{tag}', f'L_rx{tag}:']
def validate(dst, regs, loads, tag, bit):
    return maxchain(dst, regs) + [rare_block([f'v_cmp_eq_u32 vcc, -1, v{dst}', 's_cbranch_vccnz'], retry_body(dst, regs, loads, tag, bit), lat=16)]

vL, vL16, vWA0, vWA1, vWA2, vDw, vGs, vMs, vPf = 1, 2, 3, 4, 5, 6, 7, 8, 9
vXt = 120
aX = 0; aB = 64; aOne = 128; aDel = 132; aM = 136; aPo = 252

e('s_cmp_ge_u32 s2, 0x100', 's_cbranch_scc1 L_exit')
stamp('start')
e('s_load_dwordx2 s[4:5], s[0:1], 0', 's_load_dwordx4 s[44:47], s[0:1], 80', 's_load_dwordx8 s[36:43], s[0:1], 48')
e('v_lshrrev_b32 v17, 6, v0', f'v_and_b32 v{vL}, 63, v0', f'v_readfirstlane_b32 s{sW}, v17')
e('s_getpc_b64 s[6:7]', 'L_pc:', f's_bfe_u32 s{sT}, s2, 0x20003', f's_lshl_b32 s{sT}, s{sT}, 13', 'v_and_b32 v18, 15, v0', 'v_lshl_add_u32 v18, v17, 4, v18',
  f'v_lshl_add_u32 v18, v18, 7, s{sT}', 'v_min_u32 v18, L_end-L_pc-4, v18', 's_mov_b64 exec, 0xffff', 'global_load_dword v10, v18, s[6:7]', 's_mov_b64 exec, -1')
e(f's_and_b32 s{sChi}, s2, 7', f's_lshr_b32 s{sCg}, s2, 5', f's_bfe_u32 s{sT}, s2, 0x20003', f's_lshl_b32 s{sS2}, s{sChi}, 2', f's_add_u32 s{sS2}, s{sS2}, s{sT}')
vXo = 17
e(f'v_bfe_u32 v18, v{vL}, 2, 2', f'v_lshlrev_b32 v{vXo}, 15, v18', f'v_lshrrev_b32 v18, 4, v{vL}', f'v_lshl_add_u32 v{vXo}, v18, 6, v{vXo}',
  f'v_and_b32 v18, 3, v{vL}', f'v_lshl_add_u32 v{vXo}, v18, 4, v{vXo}')
e(f's_lshl_b32 s{sXb}, s{sW}, 19', f's_lshl_b32 s{sT}, s{sS2}, 10', f's_add_u32 s{sXb}, s{sXb}, s{sT}')
e(f'v_lshrrev_b32 v19, 3, v{vL}', 'v_lshlrev_b32 v19, 15, v19', f'v_and_b32 v20, 7, v{vL}', 'v_lshl_add_u32 v19, v20, 7, v19',
  f's_lshl_b32 s{sT2}, s{sCg}, 16', f's_add_u32 s{sT2}, s{sT2}, s{sXb}', f'v_lshlrev_b32 v{vL16}, 4, v{vL}')
vJ, vKq, vI, vHb = 18, 19, 20, 21
e('v_mov_b32 v22, v19')
e(f'v_and_b32 v{vJ}, 15, v{vL}', f'v_lshrrev_b32 v{vKq}, 4, v{vL}', f'v_and_b32 v{vI}, 31, v{vL}', f'v_lshrrev_b32 v{vHb}, 5, v{vL}')
if OPT['a8']:
    e(f's_lshr_b32 s{sT}, s{sChi}, 2', f's_lshl_b32 s{sBlk}, s{sT}, 3', f's_bfe_u32 s{sT}, s2, 0x30003', f's_add_u32 s{sBlk}, s{sBlk}, s{sT}',
      f's_and_b32 s{sT}, s{sChi}, 3', f's_lshl_b32 s{sPhi}, s{sT}, 2', f's_lshr_b32 s{sT}, s2, 6', f's_add_u32 s{sPhi}, s{sPhi}, s{sT}')
else:
    e(f's_lshr_b32 s{sT}, s{sChi}, 1', f's_lshl_b32 s{sBlk}, s{sT}, 2', f's_bfe_u32 s{sT}, s2, 0x20003', f's_add_u32 s{sBlk}, s{sBlk}, s{sT}',
      f's_and_b32 s{sT}, s{sChi}, 1', f's_lshl_b32 s{sPhi}, s{sT}, 3', f's_add_u32 s{sPhi}, s{sPhi}, s{sCg}')
e(f's_lshl_b32 s{sCls}, s{sBlk}, 2', f's_lshr_b32 s{sT}, s{sPhi}, 2', f's_add_u32 s{sCls}, s{sCls}, s{sT}',
  f's_and_b32 s{sTT}, s{sPhi}, 3', f's_lshl_b32 s{sTT}, s{sTT}, 2', f's_add_u32 s{sTT}, s{sTT}, s{sW}')
e(f's_lshl_b32 s{sT}, s{sCg}, 6', f's_add_u32 s{sGs}, s{sXb}, s{sT}',
  f's_lshl_b32 s{sMus}, s{sS2}, 8', f's_lshl_b32 s{sT}, s{sW}, 6', f's_add_u32 s{sMus}, s{sMus}, s{sT}', f's_add_u32 s{sMus}, s{sMus}, {WS_MU:#x}',
  f's_cmp_eq_u32 s{sCg}, 1', f's_cselect_b32 s{sMus}, s{sMus}, {WS_SIZE:#x}',
  f's_mul_i32 s{sSsW}, s{sCls}, 17', f's_add_u32 s{sSsW}, s{sSsW}, s{sTT}', f's_lshl_b32 s{sSsW}, s{sSsW}, 7', f's_add_u32 s{sSsW}, s{sSsW}, {WS_SS:#x}',
  f's_lshl_b32 s{sT}, s{sCls}, 4', f's_add_u32 s{sT}, s{sT}, s{sTT}', f's_lshl_b32 s{sHcW}, s{sT}, 11', f's_add_u32 s{sHcW}, s{sHcW}, {WS_HC:#x}')
vS4, vSo = 14, 16
e(f'v_lshrrev_b32 v12, 2, v{vL}', 'v_lshlrev_b32 v12, 15, v12', f'v_and_b32 v13, 3, v{vL}', 'v_lshl_add_u32 v12, v13, 4, v12',
  f'v_lshlrev_b32 v{vS4}, 2, v{vI}',
  f's_cmp_eq_u32 s{sTT}, 0', f's_cselect_b32 s{sT}, 0, {WS_SIZE:#x}', f'v_add_u32 v{vSo}, s{sT}, v{vS4}', f'v_add_u32 v13, 0x80, v{vS4}', f'v_cmp_eq_u32 vcc, 0, v{vHb}',
  f'v_cndmask_b32 v{vSo}, v{vSo}, v13, vcc',
  f'v_lshlrev_b32 v{vMs}, 4, v{vJ}', f'v_lshl_add_u32 v{vMs}, v{vKq}, 2, v{vMs}', f'v_mov_b32 v13, {WS_SIZE:#x}', f'v_cmp_gt_u32 vcc, 4, v{vJ}', f'v_cndmask_b32 v{vMs}, v13, v{vMs}, vcc')
for i in range(4): e(f'v_accvgpr_write_b32 a{aPo+i}, -1')
e('s_waitcnt lgkmcnt(0)')
e(*srd(SX, 4, 2048 * 1024))
e(B(['s_mov_b64 exec, 0xffff', f'buffer_load_dword v11, v22, {sr(SX)}, s{sT2} offen', 's_mov_b64 exec, -1']))
e(*srd(SWS, 46, WS_SIZE))
poi = lambda t, **kw: I(t, wr=['poi'], **kw)
e(poi(f'buffer_store_dwordx4 {ar(aPo)}, v12, {sr(SWS)}, s{sGs} offen sc1'), poi(f'buffer_store_dwordx4 {ar(aPo)}, v12, {sr(SWS)}, s{sGs} offen offset:512 sc1'),
  poi(f'buffer_store_dword a{aPo}, v{vMs}, {sr(SWS)}, s{sMus} offen sc1'), poi(f'buffer_store_dword a{aPo}, v{vSo}, {sr(SWS)}, s{sSsW} offen sc1'))
for i in range(2): e(poi(f'buffer_store_dwordx4 {ar(aPo)}, v{vL16}, {sr(SWS)}, s{sHcW} offen offset:{1024*i} sc1'))
xl = []
for g in range(4):
    for ks in range(4):
        pre = [f's_add_u32 s{sT2}, s{sXb}, {g*131072:#x}'] if ks == 0 else []
        xl.append(pre + [f'buffer_load_dwordx4 {ar(aX+16*g+4*ks)}, v{vXo}, {sr(SX)}, s{sT2} offen offset:{256*ks}'])
NX0 = OPT['nx0']
loadsA = [B(x) for x in xl[:NX0]]
setup = []
def s_(*xs):
    for x in xs: setup.append(mk(x))
s_(*srd(SWG, 36, 512 * ROWW)); s_(*srd(SWU, 38, 512 * ROWW)); s_(*srd(SWD, 40, 1376 * 1024)); s_(*srd(SOUT, 42, 2048 * 1024)); s_(*srd(SDBG, 44, 256))
T0 = [(43 * f + 8) >> 4 for f in range(17)]
NT = [T0[f + 1] - T0[f] for f in range(16)]
assert T0[16] == 43 and set(NT) == {2, 3}
s_(f's_lshr_b32 s{sRho}, s{sPhi}, 3', f's_and_b32 s{sCgp}, s{sPhi}, 7',
   f's_mul_i32 s{sT0}, s{sPhi}, 43', f's_add_u32 s{sT}, s{sT0}, 51', f's_add_u32 s{sT0}, s{sT0}, 8', f's_lshr_b32 s{sT0}, s{sT0}, 4', f's_lshr_b32 s{sT}, s{sT}, 4',
   f's_sub_u32 s{sT4}, s{sT}, s{sT0}', f's_lshl_b32 s{sWoff}, s{sT0}, 6',
   f's_lshl_b32 s{sT}, s{sBlk}, 2', f's_add_u32 s{sT}, s{sT}, s{sW}', f's_mul_i32 s{sActW}, s{sT}, {86*1024}', f's_lshl_b32 s{sHcR}, s{sT}, 15', f's_add_u32 s{sHcR}, s{sHcR}, {WS_HC:#x}',
   f's_mul_i32 s{sSsR}, s{sT}, {17*128}', f's_add_u32 s{sSsR}, s{sSsR}, {WS_SS+128:#x}',
   f's_lshl_b32 s{sT}, s{sT0}, 11', f's_add_u32 s{sActW}, s{sActW}, s{sT}', f's_add_u32 s{sActW}, s{sActW}, {WS_ACT:#x}',
   f's_add_u32 s{sAct3}, s{sActW}, 0x1000', f's_cmp_eq_u32 s{sT4}, 3', f's_cselect_b32 s{sAct3}, s{sAct3}, {WS_SIZE:#x}')
s_(f'v_lshlrev_b32 v{vGs}, 15, v{vJ}', f'v_lshl_add_u32 v{vGs}, v{vKq}, 4, v{vGs}', f'v_lshlrev_b32 v15, 16, v{vI}', f'v_lshl_add_u32 v15, v{vHb}, 3, v15')
xt = []
for u in range(4):
    pre = [f's_lshl_b32 s{sT3}, s{sCls}, 10', f's_lshl_b32 s{sR}, s{sTT}, 6', f's_add_u32 s{sT3}, s{sT3}, s{sR}'] if u == 0 else []
    xt.append(B(pre + [I(f'buffer_load_dwordx2 {vr(vXt+2*u,2)}, v15, {sr(SX)}, s{sT3} offen offset:{16*u}', svc=200)]))
pact = [B([I(f'buffer_store_dwordx4 {ar(aPo)}, v{vL16}, {sr(SWS)}, s{sActW if i < 4 else sAct3} offen offset:{1024*(i&3)} sc1', wr=['poiA'])], lat=1200) for i in range(6)]

gen = []
def g_(*xs):
    for x in xs: gen.append(mk(x))
vCr = 22
vDg = 28
vMsk, vEx, vEf, vBa = 61, 13, 64, 65
T = 32
g_(f's_lshl_b32 s{sT4}, s{sCg}, 4', f'v_add_u32 v{T}, s{sT4}, v{vJ}', f'v_cmp_eq_u32 s[{sM}:{sM+1}], 0, v{T}', f'v_mov_b32 v{T+1}, 0x80',
   f'v_cndmask_b32 v{T}, v{T}, v{T+1}, s[{sM}:{sM+1}]', f'v_mov_b32 v{vMsk}, {fh(16.0)}', f'v_cndmask_b32 v{vMsk}, 0, v{vMsk}, s[{sM}:{sM+1}]',
   f'v_cvt_f32_u32 v{T}, v{T}', f'v_mul_f32 v{vEf}, {fh(-1/512)}, v{T}', f'v_cvt_f32_u32 v{T+1}, v{vKq}', f'v_mul_f32 v{vBa}, {fh(32.0)}, v{T+1}', f'v_mul_f32 v{vBa}, v{vBa}, v{vEf}')
vKp, vFr, vFi = 66, 67, 68
g_(f'v_cndmask_b32 v{vKp}, -1, 0, s[{sM}:{sM+1}]', f'v_mov_b32 v{T+2}, 0x80000000', f'v_mov_b32 v{T+3}, 0xbf803f80', f'v_cndmask_b32 v{vFr}, v{T+2}, v{T+3}, s[{sM}:{sM+1}]',
   f'v_and_b32 v{vFi}, 0x8000, v{vKp}')
rot = [0]
def tmp():
    b = T + 4 + rot[0] * 6; rot[0] = (rot[0] + 1) % 4; return b
for ks in range(4):
    for m in range(4):
        t = tmp()
        for h in range(2):
            g_(f'v_fmamk_f32 v{t+h}, v{vEf}, {fh(float(128*ks+2*m+h))}, v{vBa}', f'v_cos_f32 v{t+2+h}, v{t+h}', f'v_sin_f32 v{t+4+h}, v{t+h}')
        g_(f'v_cvt_pk_bf16_f32 v{t}, v{t+2}, v{t+3}', f'v_cvt_pk_bf16_f32 v{t+1}, v{t+4}, v{t+5}',
           f'v_bitop3_b32 v{t+2}, v{t}, v{vKp}, v{vFr} bitop3:0x6a', f'v_bitop3_b32 v{t+3}, v{t+1}, v{vKp}, v{vFi} bitop3:0x6a')
        for i in range(4): g_(f'v_accvgpr_write_b32 a{aB+16*i+4*ks+m}, v{t+i}')
g_(f'v_mov_b32 v{T}, 0x3f803f80', f'v_cmp_eq_u32 vcc, 0, v{vKq}', f'v_mov_b32 v{T+1}, 0x3f80', f'v_cndmask_b32 v{T+1}, 0, v{T+1}, vcc', f'v_accvgpr_write_b32 a{aDel}, v{T+1}')
for m in range(4): g_(f'v_accvgpr_write_b32 a{aOne+m}, v{T}')
for m in range(1, 4): g_(f'v_accvgpr_write_b32 a{aDel+m}, 0')
for p in (1, 2, 3):
    t = tmp()
    g_(f'v_mul_f32 v{t}, {fh(8.0*p)}, v{vEf}', f'v_cos_f32 v{vCr+p-1}, v{t}', f'v_sin_f32 v{vCr+2+p}, v{t}')
g_(f'v_lshlrev_b32 v{T}, 2, v{vKq}', f'v_sub_u32 v{T}, v{vJ}, v{T}')
for c in range(4): g_(f'v_cmp_eq_u32 vcc, {c}, v{T}', f'v_cndmask_b32 v{vDg+c}, 0, 1.0, vcc')
vTf, vTb, vSg = 69, 70, 71
g_(f's_lshl_b32 s{sT4}, s{sW}, 4', f'v_add_u32 v{T}, s{sT4}, v{vJ}', f'v_cvt_f32_u32 v{vTf}, v{T}', f'v_mul_f32 v{vTf}, {fh(-1/2048)}, v{vTf}',
   f'v_lshlrev_b32 v{T+1}, 5, v{vKq}', f'v_add_u32 v{T+1}, s{sS2}, v{T+1}', f'v_cvt_f32_u32 v{vTb}, v{T+1}', f'v_mul_f32 v{vTb}, v{vTb}, v{vTf}',
   f'v_and_b32 v{T}, 1, v{vJ}', f'v_mul_u32_u24 v{vSg}, 0x8000, v{T}', f'v_lshl_or_b32 v{vSg}, v{vSg}, 16, v{vSg}')
for m in range(4):
    t = tmp()
    for h in range(2):
        jj = 2 * m + h
        g_(f'v_fmamk_f32 v{t+h}, v{vTf}, {fh(float(512*(jj>>2)+128*(jj&3)))}, v{vTb}', f'v_cos_f32 v{t+2+h}, v{t+h}', f'v_sin_f32 v{t+4+h}, v{t+h}')
    g_(f'v_cvt_pk_bf16_f32 v{t}, v{t+2}, v{t+3}', f'v_cvt_pk_bf16_f32 v{t+1}, v{t+4}, v{t+5}', f'v_xor_b32 v{t+2}, 0x80008000, v{t+1}')
    for i in range(3): g_(f'v_accvgpr_write_b32 a{aM+4*i+m}, v{t+i}', f'v_xor_b32 v{t+3+i}, v{vSg}, v{t+i}', f'v_accvgpr_write_b32 a{aM+12+4*i+m}, v{t+3+i}')
g_(f's_lshr_b32 s{sT4}, s{sW}, 1', f's_lshl_b32 s{sT4}, s{sT4}, 12', f's_and_b32 s{sK}, s{sW}, 1', f's_lshl_b32 s{sK}, s{sK}, 3', f's_add_u32 s{sT4}, s{sT4}, s{sK}',
   f's_add_u32 s{sT4}, s{sT4}, {LDS_EX:#x}', f'v_add_u32 v{vEx}, s{sT4}, v{vL16}', f'v_add_u32 v{vWA2}, {LDS_EX:#x}, v{vL16}')
npf = 4 if OPT['a8'] else 8
g_(f'v_mul_u32_u24 v{vPf}, {ROWW}, v{vKq}', f'v_lshl_add_u32 v{vPf}, v{vJ}, 7, v{vPf}',
   f's_and_b32 s{sT4}, s{sPhi}, {16-npf}', f's_mul_i32 s{sT4}, s{sT4}, 43', f's_add_u32 s{sT4}, s{sT4}, 8', f's_lshr_b32 s{sT4}, s{sT4}, 4', f's_lshl_b32 s{sPf}, s{sT4}, 6',
   f's_lshr_b32 s{sT4}, s2, 3', f's_lshl_b32 s{sT4}, s{sT4}, 2', f's_add_u32 s{sT4}, s{sT4}, s{sW}', f's_mul_i32 s{sT4}, s{sT4}, {4*ROWW}', f's_add_u32 s{sPf}, s{sPf}, s{sT4}')
nl = 7 if OPT['a8'] else 12
pm = (1 << nl) - 1; pm |= pm << 16
def wpf(sd, dst): return B([f's_mov_b32 exec_lo, {pm:#x}', f's_mov_b32 exec_hi, {pm:#x}', I(f'buffer_load_dword v{dst}, v{vPf}, {sr(sd)}, s{sPf} offen', svc=16*nl), 's_mov_b64 exec, -1'])
gen = schedule(gen, lookahead=40)
work = bundle_scc(setup + gen)
def weave(loads, work, first, per):
    out = list(loads[:first]); li = first; acc = 0
    for x in work:
        out.append(x); acc += x.cost
        if acc >= per and li < len(loads):
            out.append(loads[li]); li += 1; acc = 0
    return out + list(loads[li:])
e(*weave(loadsA, work, 2, 56))
stamp('A')
if OPT['stamps']: e('s_mov_b32 s40, 0')

Q = []
def q_(*xs):
    for x in xs: Q.append(mk(x))
vAcc = 64
vU = 32
vMu = 48
def arrive(word, rd, wr):
    return B(['v_mov_b32 v0, 1', f's_and_b32 s{sR}, s2, 3', f's_lshl_b32 s{sR}, s{sR}, 6', f's_lshl_b32 s{sCnt}, s{sW}, 8', f's_add_u32 s{sR}, s{sR}, s{sCnt}', 's_mov_b64 exec, 1',
              I(f'buffer_atomic_add v0, v{vL}, {sr(SDBG)}, s{sR} offen offset:{4*word} sc1', rd=rd, wr=wr, svc=16), 's_mov_b64 exec, -1'], lat=8)
for x in xl[NX0:]: q_(B(x[:-1] + [I(x[-1], wr=['@xiss'])], lat=750))
q_(barrier(rd=['poi', '@xiss'], wr=['@eb']))
q_(arrive(0, ['@eb'], ['@eb2']))
q_(wpf(SWG, 10), wpf(SWU, 11))
q_(*xt)
q_(*pact)
q_(f'v_mov_b32 v60, {fh(1e-5)}')
for g in range(4):
    ac = vAcc + 28 * (g & 1)
    for ks in range(4):
        xa = ar(aX + 16 * g + 4 * ks)
        q_(I(f'WAITFOR {xa}', wr=[f'@wx{g}{ks}']))
        ops = [ar(aOne), xa] + [ar(aB + 16 * i + 4 * ks) for i in range(4)] + ([ar(aDel)] if ks == 0 else [])
        for ti, bop in enumerate(ops):
            d = vr(ac + 4 * ti)
            q_(I(mf16(d, xa, bop, '0' if ks == 0 else d), rd=[f'@wx{g}{ks}']))
    on, gr, de = ac, ac + 4, ac + 24
    t = 52 + 4 * (g & 1)
    q_(f'v_mul_f32 v{t}, v{vDg}, v{gr}', f'v_fmac_f32 v{t}, v{vDg+1}, v{gr+1}', f'v_fmac_f32 v{t}, v{vDg+2}, v{gr+2}', f'v_fmac_f32 v{t}, v{vDg+3}, v{gr+3}')
    q_(f'v_add_f32 v{t+1}, v{on}, v{on+1}', f'v_add_f32 v{t+2}, v{on+2}, v{on+3}', f'v_add_f32 v{t+1}, v{t+1}, v{t+2}', f'v_mul_f32 v{vMu+g}, {fh(-1/512)}, v{t+1}',
       f'v_add_f32 v{t+3}, v{vMu+g}, v{de}')
    for rr in (8, 4, 2, 1):
        q_(I(f'v_add_f32_dpp v{t}, v{t}, v{t} row_ror:{rr} row_mask:0xf bank_mask:0xf', lat=13))
    q_(f'v_fmamk_f32 v{t}, v{t}, {fh(1/512)}, v60', f'v_fma_f32 v{t}, -v{vMu+g}, v{vMu+g}, v{t}', f'v_rsq_f32 v{t}, v{t}')
    for tile in range(2):
        re, im = ac + 8 + 8 * tile, ac + 12 + 8 * tile
        ur, ui = vU + 8 * tile + g, vU + 8 * tile + 4 + g
        q_(f'v_sub_f32 v{ur}, v{re}, v{t+3}')
        if tile == 0: q_(f'v_fma_f32 v{ui}, v{vCr}, v{im+1}, v{im}')
        else: q_(f'v_fma_f32 v{ui}, -v{vMsk}, v{t+3}, v{im}', f'v_fmac_f32 v{ui}, v{vCr}, v{im+1}')
        for p in (1, 2, 3):
            q_(f'v_fmac_f32 v{ur}, v{vCr+p-1}, v{re+p}')
            if p > 1: q_(f'v_fmac_f32 v{ui}, v{vCr+p-1}, v{im+p}')
            if tile == 0: q_(f'v_fma_f32 v{ur}, -v{vCr+2+p}, v{im+p}, v{ur}', f'v_fmac_f32 v{ui}, v{vCr+2+p}, v{re+p}')
            else: q_(f'v_fmac_f32 v{ur}, v{vCr+2+p}, v{im+p}', f'v_fma_f32 v{ui}, -v{vCr+2+p}, v{re+p}, v{ui}')
        q_(f'v_mul_f32 v{ur}, v{ur}, v{t}', f'v_mul_f32 v{ui}, v{ui}, v{t}')
for f in range(4):
    q_(f'v_cvt_pk_bf16_f32 v{vU+4*f}, v{vU+4*f}, v{vU+4*f+1}', f'v_cvt_pk_bf16_f32 v{vU+4*f+1}, v{vU+4*f+2}, v{vU+4*f+3}',
       I(f'ds_write_b64 v{vEx}, {vr(vU+4*f,2)} offset:{1024*f}', wr=['EX']))
e(*schedule(Q, verbose=True))
e(barrier(rd=['EX'], st='p1a'))
Q = []
vPQ = 64
for bk in range(2):
    for f in range(4): q_(f'ds_read_b128 {vr(vPQ+16*bk+4*f)}, v{vWA2} offset:{4096*bk+1024*f}')
vGa = 96
for bk in range(2):
    mre, mim, mni = ar(aM + 12 * bk), ar(aM + 12 * bk + 4), ar(aM + 12 * bk + 8)
    for tile in range(2):
        Pf = vr(vPQ + 16 * bk + 8 * tile); dr, di = vr(vGa + 8 * tile), vr(vGa + 8 * tile + 4)
        q_(mf16(dr, Pf, mre, '0' if bk == 0 else dr), mf16(di, Pf, mim, '0' if bk == 0 else di))
    for tile in range(2):
        Qf = vr(vPQ + 16 * bk + 8 * tile + 4); dr, di = vr(vGa + 8 * tile), vr(vGa + 8 * tile + 4)
        q_(mf16(dr, Qf, mni, dr), mf16(di, Qf, mre, di))
q_(f'v_mov_b32 v52, v{vMu}')
for g in range(1, 4): q_(B([f'v_cmp_eq_u32 vcc, {g}, v{vJ}', f'v_cndmask_b32 v52, v52, v{vMu+g}, vcc']))
q_('v_cvt_pk_bf16_f32 v53, v52, v52', 'v_and_b32 v53, 0xffff0000, v53', 'v_sub_f32 v54, v52, v53', 'v_cvt_pk_bf16_f32 v53, v53, v54',
   I(f'buffer_store_dword v53, v{vMs}, {sr(SWS)}, s{sMus} offen sc1', svc=8))
for tile in range(2):
    for c in range(4): q_(f'v_cvt_pk_bf16_f32 v{112+4*tile+c}, v{vGa+8*tile+c}, v{vGa+8*tile+4+c}')
    q_(I(f'buffer_store_dwordx4 {vr(112+4*tile)}, v{vGs}, {sr(SWS)}, s{sGs} offen offset:{512*tile} sc1', svc=8))
e(*schedule(Q, verbose=True))
stamp('p1')

Q = []
T = 96
vH = 32
vGf = 64
vGo, vGo2, vMo, vX0, vTau, vTau2 = 22, 23, 24, 25, 26, 27
vMU = 48
aR = 64; aR2 = 80; aR3 = 100; aOnA = 96
q_(f'v_bfe_u32 v{T}, v{vL}, 4, 1', f'v_lshlrev_b32 v{T+1}, 3, v{T}', f'v_lshl_add_u32 v{T+1}, v{vHb}, 2, v{T+1}', f'v_bfe_u32 v{T}, v{vL}, 2, 2', f'v_add_u32 v{T+1}, v{T+1}, v{T}',
   f'v_mul_u32_u24 v{vDw}, {ROWW}, v{T+1}', f'v_and_b32 v{T}, 3, v{vL}', f'v_lshl_add_u32 v{vDw}, v{T}, 4, v{vDw}',
   B([f's_mul_i32 s{sWc}, s{sW}, {16*ROWW}', f's_add_u32 s{sWc}, s{sWc}, s{sWoff}', f's_mov_b32 s{sWst}, {64*ROWW}', f's_lshl_b32 s{sLW}, s{sW}, 10']))
m0v = [None]
def setm0(val):
    d = None if m0v[0] is None else val - m0v[0]
    m0v[0] = val
    if d is not None and -32768 <= d < 32768: return f's_addk_i32 m0, {d & 0xffff:#x}'
    return f's_add_u32 m0, s{sLW}, {val:#x}'
aU2 = 128
TILES = [(SWG, 0, 0), (SWG, 1, 1), (SWG, 2, 2), (SWU, 0, 3), (SWU, 1, 4), (SWU, 2, None)]
WD = []
for c in range(8):
    for n, (sd, p, ti) in enumerate(TILES):
        ins = [f's_add_u32 s{sWc}, s{sWc}, s{sWst}'] if (n == 0 and c) else []
        if ti is None: ins += [I(f'buffer_load_dwordx4 {ar(aU2+4*c)}, v{vDw}, {sr(sd)}, s{sWc} offen offset:{p*64}', svc=85)]
        else: ins += [setm0((5 * c + ti) * 4096 - p * 64), I(f'buffer_load_dwordx4 v{vDw}, {sr(sd)}, s{sWc} offen offset:{p*64} lds', wr=[f'W{c}'], rd=['@exfree'] if c == 7 else [], svc=85)]
        WD.append(B(ins, lat=900))
N3, N4, N5 = OPT['n3'], OPT['n3'] + OPT['n4'], OPT['n3'] + OPT['n4'] + OPT['n5']
q_(f'v_and_b32 v29, 3, v{vL}', 'v_lshlrev_b32 v29, 6, v29', I(f'buffer_load_dword v28, v29, {sr(SDBG)}, 0 offen sc1', svc=16, lat=800, nb=OPT.get('nbe', 300)))
for b in WD[:N3]: q_(b)
q_(B([f's_sub_u32 s{sT4}, 64, s{sCls}', f's_and_b32 s{sT4}, s{sT4}, 63', f's_cmp_ge_u32 s{sTT}, 8', f's_cselect_b32 s{sSrc}, s{sT4}, s{sCls}', f's_cselect_b32 s{sSrc2}, s{sCls}, s{sT4}',
      f's_cselect_b64 s[{sM}:{sM+1}], -1, 0', f's_lshl_b32 s{sSrc}, s{sSrc}, 15', f's_lshl_b32 s{sSrc2}, s{sSrc2}, 15',
      f's_cmp_eq_u32 s{sCls}, 0', f's_cselect_b32 s{sT4}, 32, 31', f's_lshl_b32 s{sT3}, s{sTT}, 5',
      f'v_sub_u32 v{T+2}, s{sT4}, v{vI}', f'v_cndmask_b32 v{vTau}, v{vI}, v{T+2}, s[{sM}:{sM+1}]', f'v_cndmask_b32 v{vTau2}, v{T+2}, v{vI}, s[{sM}:{sM+1}]',
      f'v_add_u32 v{T+3}, s{sT3}, v{vI}', f'v_sub_u32 v{T+4}, 0x200, v{T+3}', f'v_cndmask_b32 v{T+3}, v{T+3}, v{T+4}, s[{sM}:{sM+1}]']))
q_(f'v_sub_u32 v{T+4}, 0x180, v{T+3}', f'v_and_b32 v{T+5}, 0x7f, v{T+3}', B([f'v_cmp_lt_u32 vcc, 0x80, v{T+3}', f'v_cndmask_b32 v{T+5}, v{T+5}, v{T+4}, vcc']),
   f'v_lshlrev_b32 v{T+5}, 2, v{T+5}', f'v_mov_b32 v{T+4}, {WS_SIZE:#x}', f'v_and_b32 v{T+3}, 0xff, v{T+3}', B([f'v_cmp_eq_u32 vcc, 0, v{T+3}', f'v_cndmask_b32 v{T+5}, v{T+5}, v{T+4}, vcc']),
   f'v_lshl_add_u32 v{vGo}, v{vHb}, 12, v{T+5}', f'v_lshlrev_b32 v{vMo}, 3, v{vI}')
def rmat(base, tau, t0, ph=None):
    o = [f'v_cvt_f32_u32 v{t0}, v{tau}', f'v_mul_f32 v{t0}, {fh(1/32)}, v{t0}', f'v_cvt_f32_u32 v{t0+1}, v{vHb}', f'v_mul_f32 v{t0+1}, 4.0, v{t0+1}', f'v_mul_f32 v{t0+1}, v{t0+1}, v{t0}']
    if ph is not None: o += [f'v_add_f32 v{t0+1}, s{ph}, v{t0+1}']
    for k in range(16):
        t = t0 + 2 + 3 * (k % 3)
        o += [f'v_fmamk_f32 v{t}, v{t0}, {fh(float(8*(k>>2)+(k&3)))}, v{t0+1}', f'v_cos_f32 v{t+1}, v{t}', f'v_sin_f32 v{t+2}, v{t}',
              f'v_cvt_pk_bf16_f32 v{t}, v{t+1}, v{t+2}', f'v_accvgpr_write_b32 a{base+k}, v{t}']
    return o
q_(*rmat(aR, vTau, T + 6))
spec_test = [f's_and_b32 s{sR}, s{sTT}, 7', 's_cbranch_scc1']
q_(cond_block(spec_test, [f's_cmp_eq_u32 s{sTT}, 0', f's_cselect_b32 s{sR}, {fh(0.25)}, 0'] + rmat(aR2, vTau2, 80, sR) + rmat(aR3, vTau, 80, sR) +
              [f'v_lshlrev_b32 v{vGo2}, 12, v{vHb}', f'v_add_u32 v{vGo2}, 0x200, v{vGo2}'], lat=8))
q_(f'v_mov_b32 v53, 0x3f803f80', B([f'v_cmp_eq_u32 vcc, 0, v{vHb}', 'v_cndmask_b32 v53, 0, v53, vcc']), f'v_accvgpr_write_b32 a{aOnA}, v53')
for m in (1, 2, 3): q_(f'v_accvgpr_write_b32 a{aOnA+m}, 0', f'v_mov_b32 v{vMU+m}, 0')
for r in range(16):
    src = vXt + (r >> 1)
    q_(f'v_and_b32 v{vH+r}, 0xffff0000, v{src}' if r & 1 else f'v_lshlrev_b32 v{vH+r}, 16, v{src}')
q_(f'v_mov_b32 v{vX0}, v{vH}')
q_(f'v_lshlrev_b32 v{vWA0}, 9, v{vHb}', f'v_bfe_u32 v54, v{vL}, 2, 2', f'v_lshl_add_u32 v{vWA0}, v54, 6, v{vWA0}',
   f'v_bfe_u32 v54, v{vL}, 4, 1', f'v_lshl_add_u32 v{vWA0}, v54, 5, v{vWA0}', f'v_and_b32 v54, 3, v{vL}', f'v_lshl_add_u32 v{vWA0}, v54, 3, v{vWA0}',
   f'v_add_u32 v{vWA1}, 0x10000, v{vWA0}', f'v_add_u32 v{vWA2}, 0x20000, v{vWA0}')
q_(B([f's_and_b32 s{sMus}, s{sCls}, 31', f's_lshl_b32 s{sMus}, s{sMus}, 8', f's_lshr_b32 s{sT4}, s{sCls}, 5', f's_lshl_b32 s{sT4}, s{sT4}, 2', f's_add_u32 s{sMus}, s{sMus}, s{sT4}', f's_add_u32 s{sMus}, s{sMus}, {WS_MU:#x}']))
def ebcheck(word, vd, va, wr=()):
    return rare_block([f'v_cmp_gt_u32 vcc, 64, v{vd}', 's_cbranch_vccnz'],
        [f's_mov_b32 s{sCnt}, 0', f'L_eb{word}:', 's_sleep 1', f'buffer_load_dword v{vd}, v{va}, {sr(SDBG)}, 0 offen offset:{4*word} sc1', 's_waitcnt vmcnt(0)', f'v_cmp_gt_u32 vcc, 64, v{vd}',
         f's_add_u32 s{sCnt}, s{sCnt}, 1', f's_cmp_gt_u32 s{sCnt}, {SPIN}', f's_cbranch_scc1 L_ebx{word}', f's_cbranch_vccnz L_eb{word}', f'L_ebx{word}:'], lat=8, wr=wr)
q_(ebcheck(0, 28, 29))
e(*schedule(Q, verbose=True))
stamp('g')
Q = []
def gloads(dst, vo, src, tmpreg):
    o = []
    for q in range(4):
        for m in range(4):
            pre = [f's_add_u32 s{tmpreg}, s{src}, {8192*q:#x}'] if (m == 0 and q) else []
            o.append(pre + [f'buffer_load_dword v{dst+4*q+m}, v{vo}, {sr(SWS)}, s{tmpreg if q else src} offen offset:{1024*m} sc1'])
    return o
mul = [f'buffer_load_dword v{vMU}, v{vMo}, {sr(SWS)}, s{sMus} offen sc1']
for x in gloads(vGf, vGo, sSrc, sT2): q_(B(x[:-1] + [I(x[-1], svc=32)], lat=900))
q_(I(mul[0], lat=900, svc=32, wr=['@gi']))
zl = gloads(80, vGo2, sSrc2, sR) + gloads(96, vGo2, sSrc, sR)
zb = cond_block(spec_test, [x for l in zl for x in l], lat=8); zb.R.add('@gi'); zb.W.add('@gi2')
q_(zb)
for i, b in enumerate(WD[N3:N4]):
    if i == 0: b.R.add('@gi2')
    q_(b)
gregs = list(range(vGf, vGf + 16)) + [vMU]
q_(*validate(0, gregs, gloads(vGf, vGo, sSrc, sR) + [mul], 'g', 24))
if stampi('gv'): q_(B(['v_mov_b32 v0, v0'] + stampi('gv')))
H = vr(vH, 16)
q_(mf32(H, ar(aOnA), vr(vMU), H))
for q in range(4): q_(mf32(H, vr(vGf + 4 * q), ar(aR + 4 * q), H))
g2 = list(range(80, 112))
Z = vr(128, 16)
sp = maxchain(0, g2) + ['v_cmp_eq_u32 vcc, -1, v0', 's_cbranch_vccz L_rxs'] + retry_body(0, g2, zl, 's', 24)
sp += [mf32(Z, vr(80 + 4 * q), ar(aR2 + 4 * q), Z if q else '0') for q in range(4)] + [mf32(Z, vr(96 + 4 * q), ar(aR3 + 4 * q), Z) for q in range(4)]
sp += [f's_cmp_eq_u32 s{sTT}, 0', f's_cselect_b32 s{sR}, {fh(1/32)}, 0.5', 's_mov_b64 exec, 0xffffffff', I(f'v_fma_f32 v{vH}, s{sR}, v128, v{vH}'), 's_mov_b64 exec, -1']
q_(cond_block(spec_test, sp, lat=8))
for h in range(2):
    for m in range(4): q_(f'v_cvt_pk_bf16_f32 v{52+4*h+m}, v{vH+8*h+2*m}, v{vH+8*h+2*m+1}')
    q_(I(f'buffer_store_dwordx4 {vr(52+4*h)}, v{vL16}, {sr(SWS)}, s{sHcW} offen offset:{1024*h} sc1', svc=8, rd=['poiA']))
q_(f'v_sub_f32 v{vX0}, v{vX0}, v{vH}')
q_(f'v_mul_f32 v60, v{vH}, v{vH}', f'v_mul_f32 v61, v{vH+1}, v{vH+1}')
for r in range(2, 16): q_(f'v_fmac_f32 v{60+(r&1)}, v{vH+r}, v{vH+r}')
q_('v_add_f32 v60, v60, v61', f'v_permlane32_swap_b32 v60, v{vX0}', B(['s_mov_b64 exec, 0xffffffff', I(f'v_add_f32 v60, v60, v{vX0}'), 's_mov_b64 exec, -1']),
   I(f'buffer_store_dword v60, v{vSo}, {sr(SWS)}, s{sSsW} offen sc1', svc=8))
e(*schedule(Q, verbose=True))
stamp('h')

Q = []
vG = 128
aWB = 160; NWB = 16
def hcl(k, reg): return [f's_add_u32 s{reg}, s{sHcR}, {4096*(k>>2):#x}', f'buffer_load_dwordx4 {vr(vG+4*k)}, v{vL16}, {sr(SWS)}, s{reg} offen offset:{1024*(k&3)} sc1']
for b in WD[N4:N5]: q_(b)
rest = WD[N5:]
HL = []
for k in range(32):
    pre = ([f's_mov_b32 s{sAc}, s{sHcR}'] if k == 0 else [f's_addk_i32 s{sAc}, 0x1000']) if k % 4 == 0 else []
    HL.append(B(pre + [f'buffer_load_dwordx4 {vr(vG+4*k)}, v{vL16}, {sr(SWS)}, s{sAc} offen offset:{1024*(k&3)} sc1'] + (stampi('hl') if k == 0 else []), lat=900))
wi = N5
q_(barrier(wr=['@exfree']))
for c in range(8):
    while wi < 6 * (c + 1): q_(WD[wi]); wi += 1
    q_(*HL[4 * c:4 * c + 4])
vSs = 24
ssl = [[f'buffer_load_dword v{vSs+i}, v22, {sr(SWS)}, s{sSsR} offen offset:{128*i} sc1'] for i in range(8)]
q_(f'v_lshl_add_u32 v22, v{vHb}, 10, v{vS4}')
for x in ssl: q_(I(x[0], svc=32, lat=900))
ncg = 4 if OPT['a8'] else 8
q_(f'v_lshlrev_b32 v{vPf}, 7, v{vL}' if not OPT['a8'] else B([f'v_lshrrev_b32 v23, 2, v{vL}', f'v_lshlrev_b32 v{vPf}, 10, v23', f'v_and_b32 v23, 3, v{vL}', f'v_lshl_add_u32 v{vPf}, v23, 7, v{vPf}']))
q_(B([f's_lshr_b32 s{sPf}, s2, 3', f's_lshl_b32 s{sPf}, s{sPf}, 2', f's_add_u32 s{sPf}, s{sPf}, s{sW}', f's_mul_i32 s{sPf}, s{sPf}, {11*1024}'] +
     ([f's_and_b32 s{sT4}, s{sCgp}, 4', f's_lshl_b32 s{sT4}, s{sT4}, 7', f's_add_u32 s{sPf}, s{sPf}, s{sT4}'] if OPT['a8'] else [])))
if OPT['a8']:
    q_(B(['s_mov_b32 exec_hi, 0xfff', I(f'buffer_load_dword v10, v{vPf}, {sr(SWD)}, s{sPf} offen', svc=180), 's_mov_b64 exec, -1']))
else:
    q_(I(f'buffer_load_dword v10, v{vPf}, {sr(SWD)}, s{sPf} offen', svc=256))
    q_(B([f's_add_u32 s{sPf}, s{sPf}, 0x2000', 's_mov_b64 exec, 0xffffff', I(f'buffer_load_dword v11, v{vPf}, {sr(SWD)}, s{sPf} offen', svc=100), 's_mov_b64 exec, -1']))
q_(B(['s_mov_b64 exec, 1', I(f'buffer_load_dword v12, v{vL}, {sr(SOUT)}, 0 offen', svc=16), 's_mov_b64 exec, -1']))
def lwin(pos, regs): return regs[pos >> 16], pos & 0xffff
wb = [0]; wk = [0]
def wfrag(ti, ks, pub):
    b = aWB + 4 * wb[0]; wb[0] = (wb[0] + 1) % NWB
    va, off = lwin((5 * (ks >> 2) + ti) * 4096 + (ks & 3) * 1024, (vWA0, vWA1, vWA2))
    return b, [I(f'ds_read_b64_tr_b16 {ar(b,2)}, v{va} offset:{off}', rd=[pub, f'L{ti}']),
               I(f'ds_read_b64_tr_b16 {ar(b+2,2)}, v{va} offset:{off+256}', rd=[pub, f'L{ti}'])]
def gemm_steps(kss, tiles, pub):
    for k0 in range(0, len(kss), 2):
        fr = []
        for ks in kss[k0:k0 + 2]:
            for ti, acc in tiles:
                b, rds = wfrag(ti, ks, pub); q_(*rds); fr.append((ks, acc, b))
        wk[0] += 1
        q_(I('WAITFOR ' + ', '.join(ar(b) for _, _, b in fr), wr=[f'@w{wk[0]}']))
        for ks, acc, b in fr: q_(I(mf32(acc, ar(b), vr(vG + 4 * ks), '0' if ks == 0 else acc), rd=[f'@w{wk[0]}']))
A0, A1, A2 = 64, 96, 64
t0 = [(0, vr(A0, 16)), (3, vr(A0 + 16, 16))]
cdone = N5 // 6
c = 0
while c < 8:
    ce = max(c + OPT.get('wgrp', 2), cdone if c == 0 else 0); ce = min(ce, 8)
    q_(barrier(rd=[f'W{i}' for i in range(c, ce)], wr=['@pub']))
    for cc in range(c, ce):
        ks = list(range(4 * cc, 4 * cc + 4))
        q_(*validate(0, [vG + 4 * k for k in ks], [hcl(k, sR) for k in ks], f'h{cc}', 16))
        gemm_steps(ks, t0, '@pub')
    c = ce
vNr, vIr = 16, 17
q_(*validate(0, range(vSs, vSs + 8), ssl, 'ss', 16))
for i in range(0, 8, 2): q_(f'v_add_f32 v{vSs+i}, v{vSs+i}, v{vSs+i+1}')
q_(f'v_add_f32 v{vSs}, v{vSs}, v{vSs+2}', f'v_add_f32 v{vSs+4}, v{vSs+4}, v{vSs+6}', f'v_add_f32 v{vSs}, v{vSs}, v{vSs+4}',
   f'v_mov_b32 v{vSs+1}, v{vSs}', f'v_permlane32_swap_b32 v{vSs+1}, v{vSs+1}', f'v_add_f32 v{vSs}, v{vSs}, v{vSs+1}',
   f'v_mov_b32 v{vSs+1}, {fh(1e-5)}', f'v_fmamk_f32 v{vIr}, v{vSs}, {fh(1/512)}, v{vSs+1}', f'v_rsq_f32 v{vNr}, v{vIr}', f'v_mul_f32 v{vNr}, {fh(-1.4426950408889634)}, v{vNr}')
vTm = 24
et = [0]
def epilogue(p, gacc, uacc):
    pk = 56
    o = []
    for r in range(16):
        t = 32 + 2 * et[0]; et[0] = (et[0] + 1) % 8
        gs, us = gacc + r, uacc + r
        o += [f'v_mul_f32 v{t}, v{vNr}, v{gs}', f'v_exp_f32 v{t}, v{t}', f'v_mul_f32 v{t+1}, v{gs}, v{us}', f'v_fma_f32 v{t}, v{t}, v{vIr}, v{vIr}',
              f'v_rcp_f32 v{t}, v{t}', f'v_mul_f32 v{vTm+(r&7)}, v{t+1}, v{t}']
        if r & 1: o += [f'v_cvt_pk_bf16_f32 v{pk+(r>>1)}, v{vTm+(r&7)-1}, v{vTm+(r&7)}']
        if r & 7 == 7:
            o += [I(f'buffer_store_dwordx4 {vr(pk+4*(r>>3))}, v{vL16}, {sr(SWS)}, s{sActW if p < 2 else sAct3} offen offset:{(2048*p if p < 2 else 0)+1024*(r>>3)} sc1')]
    return [mk(x) for x in o]
def merge_vm(ep, dm, n0):
    o = list(dm[:n0]); rest = list(dm[n0:]); seen = 0
    for x in ep:
        o.append(x)
        if x.cls == 'vmem':
            seen += 1
            if seen == 1: o += rest[:n0]; rest = rest[n0:]
    return o + rest
order = [T0[f] for f in range(16)] + [T0[f] + 1 for f in range(16)] + [T0[f] + 2 for f in range(16) if NT[f] == 3]
assert sorted(order) == list(range(43))
def dunit(n):
    if n < 8: return 5 * n + 3
    if n < 16: return 5 * (n - 8) + 1
    if n < 24: return 5 * (n - 16) + 4
    if n < 32: return 5 * (n - 24) + 2
    if n < 40: return 5 * (n - 32)
    return 5 * (n - 40) + 3
def dpos(n): return 4096 * dunit(n)
def dslot(n): return 'A' if n < 8 else ('B' if n < 24 else 'C')
vDd = vDw
aStg = 0
dcv = [None]
def ddma(ns):
    out = []
    for n in ns:
        d = None if dcv[0] is None else order[n] - dcv[0]
        dcv[0] = order[n]
        so = f's_add_u32 s{sDc}, s{sDc}, s{sC3 if d == 3 else sC2}' if d in (2, 3) else f's_add_u32 s{sDc}, s{sDo}, {order[n]*32768:#x}'
        if n < 24:
            out.append(B([so, setm0(dpos(n)), I(f'buffer_load_dwordx4 v{vDd}, {sr(SWD)}, s{sDc} offen lds', wr=[f'D{dslot(n)}'], rd=[f'@free{dunit(n)%5}'])], lat=900))
        else:
            out.append(B([so, f'buffer_load_dwordx4 {ar(aStg+4*(n-24))}, v{vDd}, {sr(SWD)}, s{sDc} offen'], lat=900))
    return out
q_(f'v_lshrrev_b32 v22, 3, v{vL}', 'v_and_b32 v23, 3, v22', 'v_lshrrev_b32 v22, 2, v22', 'v_lshl_add_u32 v23, v22, 3, v23', f'v_lshlrev_b32 v{vDd}, 10, v23',
   f'v_lshrrev_b32 v22, 3, v{vL}', 'v_and_b32 v22, 2, v22', f'v_and_b32 v23, 7, v{vL}', 'v_xor_b32 v22, v22, v23', f'v_lshl_add_u32 v{vDd}, v22, 4, v{vDd}')
q_(B([f's_lshr_b32 s{sK}, s{sW}, 1', f's_lshl_b32 s{sDo}, s{sK}, 14', f's_and_b32 s{sT4}, s{sW}, 1', f's_lshl_b32 s{sT4}, s{sT4}, 12', f's_add_u32 s{sDo}, s{sDo}, s{sT4}']),
   B([f's_lshl_b32 s{sT4}, s{sCgp}, 7', f's_add_u32 s{sDo}, s{sDo}, s{sT4}']), f's_mov_b32 s{sC3}, {3*32768:#x}', f's_mov_b32 s{sC2}, {2*32768:#x}')
vLW = 48
q_(f'v_add_u32 v{vLW}, s{sLW}, v{vL16}', f'v_add_u32 v{vLW+1}, 0x10000, v{vLW}', f'v_add_u32 v{vLW+2}, 0x20000, v{vLW}')
q_(barrier(wr=['@free0', '@free3', 'L0', 'L3'], drain=['L0', 'L3'], st='b0'))
q_(*merge_vm(epilogue(0, A0, A0 + 16), ddma(range(0, 8)) + ddma(range(24, 43)), 7))
t1 = [(1, vr(A1, 16)), (4, vr(A1 + 16, 16))]
for c in range(8):
    gemm_steps(list(range(4 * c, 4 * c + 4)), t1, '@pub')
    if c < 4:
        for cc in (2 * c, 2 * c + 1):
            va, off = lwin(5 * cc * 4096, (vLW, vLW + 1, vLW + 2))
            q_(I(f'ds_write_b128 v{va}, {ar(aU2+4*cc)} offset:{off}', wr=['U2'], rd=['@free0']))
q_(barrier(rd=['U2', 'DA'], wr=['@free1', '@free4', '@pubd', '@pubDA', 'L1', 'L4'], drain=['L1', 'L4'], st='b1'))
vDA = 10
q_(f'v_lshlrev_b32 v22, 10, v{vHb}', f'v_bfe_u32 v23, v{vL}, 2, 2', 'v_lshl_add_u32 v22, v23, 7, v22', f'v_and_b32 v23, 1, v{vL}', 'v_lshl_add_u32 v22, v23, 6, v22',
   f'v_bfe_u32 v23, v{vL}, 4, 1', 'v_lshl_add_u32 v22, v23, 4, v22', f'v_bfe_u32 v23, v{vL}, 1, 1', 'v_lshl_add_u32 v22, v23, 3, v22',
   f'v_bfe_u32 v23, v{vL}, 3, 1', 'v_lshl_add_u32 v22, v23, 5, v22', f'v_mov_b32 v51, v{vS4}',
   B([f's_lshl_b32 s{sT4}, s{sK}, 11', f'v_add_u32 v{vDA}, s{sT4}, v22']), f'v_xor_b32 v{vDA+3}, 32, v{vDA}')
for ct in range(2):
    for wdw in (1, 2): q_(f'v_add_u32 v{vDA+3*ct+wdw}, {65536*wdw:#x}, v{vDA+3*ct}')
q_(B([f's_and_b32 s{sT4}, s{sW}, 1', f's_lshl_b32 s{sCls}, s{sRho}, 1', f's_add_u32 s{sCls}, s{sCls}, s{sT4}', f's_lshl_b32 s{sT4}, s{sBlk}, 2', f's_add_u32 s{sCls}, s{sCls}, s{sT4}']),
   B([f's_mul_i32 s{sActR}, s{sCls}, {86*1024}', f's_lshl_b32 s{sT4}, s{sK}, 10', f's_add_u32 s{sActR}, s{sActR}, s{sT4}', f's_add_u32 s{sActR}, s{sActR}, {WS_ACT:#x}']))
NR = 32; vAct = 128
def actl(n): return [f's_add_u32 s{sR}, s{sActR}, {order[n]*2048:#x}', f'buffer_load_dwordx4 {vr(vAct+4*(n%NR))}, v{vL16}, {sr(SWS)}, s{sR} offen sc1']
def acti(n):
    d = (order[n] - order[n-1]) * 2048 if n else None
    so = f's_addk_i32 s{sAc}, {d:#x}' if d is not None and 0 < d < 32768 else f's_add_u32 s{sAc}, s{sActR}, {order[n]*2048:#x}'
    return B([so, f'buffer_load_dwordx4 {vr(vAct+4*(n%NR))}, v{vL16}, {sr(SWS)}, s{sAc} offen sc1'], lat=900)
q_(*merge_vm(epilogue(1, A1, A1 + 16), ddma(range(8, 24)), 7))
t2 = [(2, vr(A2, 16)), (0, vr(A2 + 16, 16))]
NA0 = OPT.get('na0', 12)
gemm_steps(list(range(32)), t2, '@pubd')
for n in range(NA0):
    x = acti(n)
    if n == 0: x.R.add('@ebok')
    q_(x)
aDB = 80; NDB = 20
db = [0]
def dfrag(n, ct):
    b = aDB + 4 * db[0]; db[0] = (db[0] + 1) % NDB
    va, off = lwin(dpos(n), (vDA + 3 * ct, vDA + 3 * ct + 1, vDA + 3 * ct + 2))
    tk = [f'@pubD{dslot(n)}', f'LD{dslot(n)}']
    return b, [I(f'ds_read_b64_tr_b16 {ar(b,2)}, v{va} offset:{off}', rd=tk), I(f'ds_read_b64_tr_b16 {ar(b+2,2)}, v{va} offset:{off+512}', rd=tk)]
pre = {}
for n in range(3):
    for ct in range(2):
        b, rds = dfrag(n, ct); pre[(n, ct)] = b; q_(*rds)
q_(barrier(rd=['DB'], wr=['@pubDB', '@freeC', 'L2', 'L0', 'LDA'], drain=['L2', 'L0', 'LDA'], st='b2'))
ep2 = epilogue(2, A2, A2 + 16)
if stampi('p2'): ep2[-1] = B([ep2[-1]] + stampi('p2'))
q_(*merge_vm(ep2, [acti(n) for n in range(NA0, NR)], 4))

vO = 96
vRs = 64
rsl = [[f'buffer_load_dwordx4 {vr(vRs)}, v52, {sr(SWS)}, s{sHcR} offen sc1'], [f'buffer_load_dwordx4 {vr(vRs+4)}, v52, {sr(SWS)}, s{sHcR} offen offset:512 sc1'],
       [f'buffer_load_dword v{vRs+8}, v51, {sr(SWS)}, s{sSsR} offen sc1']]
q_(f'v_lshlrev_b32 v52, 11, v{vHb}', f'v_lshl_add_u32 v52, v{vI}, 4, v52',
   B([f's_lshl_b32 s{sHcR}, s{sCls}, 15', f's_lshl_b32 s{sT4}, s{sCgp}, 12', f's_add_u32 s{sHcR}, s{sHcR}, s{sT4}', f's_lshl_b32 s{sT4}, s{sK}, 10', f's_add_u32 s{sHcR}, s{sHcR}, s{sT4}',
      f's_add_u32 s{sHcR}, s{sHcR}, {WS_HC:#x}']), B([f's_mul_i32 s{sSsR}, s{sCls}, {17*128}', f's_add_u32 s{sSsR}, s{sSsR}, {WS_SS:#x}']))
for x in rsl: q_(I(x[0], lat=900))
n = 0; bi = 0; ws_ = 24
while n < 43:
    ns = list(range(n, min(n + 4, 43))) if n else [0, 1, 2]
    q_(*validate(0, [vAct + 4 * (m % NR) for m in ns], [actl(m) for m in ns], f'a{n}', 8 if n < 31 else 0))
    if n == 19: q_(barrier(rd=['DC'], wr=['@pubDC', 'LDA'], drain=['LDA']))
    for m0_ in range(0, len(ns), 2):
        fr = []
        for m in ns[m0_:m0_ + 2]:
            for ct in range(2):
                if (m, ct) in pre: b = pre[(m, ct)]
                else:
                    b, rds = dfrag(m, ct); q_(*rds)
                fr.append((m, ct, b))
        wk[0] += 1
        q_(I('WAITFOR ' + ', '.join(ar(b) for _, _, b in fr), wr=[f'@w{wk[0]}']))
        for m, ct, b in fr:
            D = vr(vO + 16 * ct, 16)
            q_(I(mf32(D, ar(b), vr(vAct + 4 * (m % NR)), '0' if m == 0 else D), rd=[f'@w{wk[0]}']))
        for _ in range(2 if n else 3):
            if ws_ < 43:
                va, off = lwin(dpos(ws_), (vLW, vLW + 1, vLW + 2))
                q_(I(f'ds_write_b128 v{va}, {ar(aStg+4*(ws_-24))} offset:{off}', wr=['DC'], rd=['@freeC'])); ws_ += 1
    for m in ns:
        if m + NR < 43: q_(acti(m + NR))
    n += len(ns)
assert ws_ == 43
q_(*validate(0, [vRs, vRs + 4, vRs + 8], rsl, 'r', 16))
vRf = 80
for c in range(16):
    src = vRs + 4 * ((c >> 2) & 1) + 2 * (c >> 3) + ((c & 3) >> 1)
    q_(f'v_and_b32 v{vRf+c}, 0xffff0000, v{src}' if c & 1 else f'v_lshlrev_b32 v{vRf+c}, 16, v{src}', f'v_add_f32 v{vRf+c}, v{vRf+c}, v{vRs+8}')
RED = dpos(3)
q_(f'v_lshlrev_b32 v53, 16, v{vI}', f'v_lshl_add_u32 v53, v{vHb}, 6, v53',
   B([f's_lshl_b32 s{sT}, s{sCgp}, 7', f's_lshl_b32 s{sT4}, s{sK}, 5', f's_add_u32 s{sT}, s{sT}, s{sT4}', f's_lshl_b32 s{sT4}, s{sCls}, 10', f's_add_u32 s{sT}, s{sT}, s{sT4}']),
   B([f's_mul_i32 s{sT4}, s{sW}, 20480', f's_add_u32 s{sT4}, s{sT4}, {RED:#x}', f'v_add_u32 v54, s{sT4}, v{vL16}']),
   B([f's_xor_b32 s{sT4}, s{sW}, 2', f's_mul_i32 s{sT4}, s{sT4}, 20480', f's_add_u32 s{sT4}, s{sT4}, {RED:#x}', f'v_add_u32 v55, s{sT4}, v{vL16}']))
e(*schedule(Q, verbose=True))
stamp('p3m')
def red(own, other):
    o = [f'ds_write_b128 v54, {vr(vO+16*other+4*i)} offset:{1024*i}' for i in range(4)]
    o += [f'v_pk_add_f32 {vr(vRf+2*i,2)}, {vr(vRf+2*i,2)}, {vr(vO+16*own+2*i,2)}' for i in range(8)]
    return o
e(cond_block([f's_cmp_lg_u32 s{sK}, 0', 's_cbranch_scc1'], red(0, 1)))
e(cond_block([f's_cmp_eq_u32 s{sK}, 0', 's_cbranch_scc1'], red(1, 0)))
e('s_waitcnt lgkmcnt(0)', 's_barrier')
for i in range(4): e(f'ds_read_b128 {vr(32+4*i)}, v55 offset:{1024*i}')
stamp('red')
for h in range(2):
    for i in range(4 * h, 4 * h + 4): e(f'v_pk_add_f32 {vr(32+2*i,2)}, {vr(32+2*i,2)}, {vr(vRf+2*i,2)}')
    for i in range(4 * h, 4 * h + 4): e(f'v_cvt_pk_bf16_f32 v{56+i}, v{32+2*i}, v{33+2*i}')
    e(f'buffer_store_dwordx4 {vr(56+4*h)}, v53, {sr(SOUT)}, s{sT} offen offset:{16*h}')
if OPT['stamps']:
    e('s_waitcnt vmcnt(0)')
    stamp('end'); stamp('end2'); stamp('end3')
    e('s_waitcnt lgkmcnt(0)', f's_lshl_b32 s{sT}, s2, 2', f's_add_u32 s{sT}, s{sT}, s{sW}', f's_lshl_b32 s{sT}, s{sT}, 5', f's_add_u32 s{sT}, s{sT}, {WS_ST:#x}',
      's_mov_b64 exec, 1', 'v_mov_b32 v21, 0')
    for i in range(7): e(f'v_mov_b32 v20, s{sSt+2*i}', f'buffer_store_dword v20, v21, {sr(SWS)}, s{sT} offen offset:{4*i}')
    e('v_mov_b32 v20, s40', f'buffer_store_dword v20, v21, {sr(SWS)}, s{sT} offen offset:28')
e('L_exit:')

body = emit(P, OUT) + '\nL_end:'
hdr = open('cdna_kernels/' + NAME + '.s.ref').read().split('; Override launch')[0]
src = hdr + f'''; @launch grid=(256,1,1) block=(256,1,1) lds=163840
.amdgcn_target "amdgcn-amd-amdhsa--gfx950"
.text
.globl {NAME}_kernel
.p2align 8
.type {NAME}_kernel,@function
{NAME}_kernel:
{body}
.section .rodata,"a"
.p2align 6
.amdhsa_kernel {NAME}_kernel
  .amdhsa_next_free_vgpr 512
  .amdhsa_next_free_sgpr 102
  .amdhsa_accum_offset 256
  .amdhsa_group_segment_fixed_size 0
  .amdhsa_kernarg_size 96
  .amdhsa_user_sgpr_count 2
  .amdhsa_user_sgpr_kernarg_segment_ptr 1
  .amdhsa_system_sgpr_workgroup_id_x 1
.end_amdhsa_kernel
'''
open(sys.argv[1], 'w').write(src)
print('lines', body.count('\n'))
```

```python
import sys, struct
from asmlib import *

NAME = 'sequential_preLN__spectral_fnet__swiglu_ffn__prompt'
OPT = dict(stamps=0, sset=0, nx0=8, a8=1, n2=0, n3=8, n4=8, n5=8)
for a in sys.argv[2:]:
    k, v = a.split('='); OPT[k] = int(v)

def fh(x): return '0x%08x' % struct.unpack('<I', struct.pack('<f', x))[0]
def vr(b, n=4): return f'v[{b}:{b+n-1}]'
def ar(b, n=4): return f'a[{b}:{b+n-1}]'
def sr(b, n=4): return f's[{b}:{b+n-1}]'

WS_G = 0; WS_G2 = 0x200000; WS_HC = 0x400000; WS_ACT = 0x600000; WS_MU = 0xB80000; WS_SS = 0xB90000; WS_M = 0xBB0000
WS_ST = 0xC00000; WS_SIZE = 0x1000000
ROWW = 2752
LDS_EX = 155648
SPIN = 100000

SX, SWG, SWU, SWD, SOUT, SWS, SDBG = 8, 12, 16, 20, 24, 28, 32
(sW, sChi, sCg, sS2, sBlk, sPhi, sRho, sCls, sTT, sT0, sXb, sT, sT2, sT3, sT4, sCnt, sActW, sGs, sMus, sHcW, sSsW,
 sSrc, sSrc2, sWoff, sLW, sActR, sCgp, sK, sDo, sWc, sDc, sAc, sC3, sC2, sWst, sHcR, sR, sPf) = range(48, 86)
sM = 86; sSt = 88
sAct3 = 3; sSsR = 6
SCRATCH.update(f's{r}' for r in (sM, sM+1, sR, sCnt, sT2, sT3, sT4)); SCRATCH.add('vcc')

P = []
def e(*xs):
    for x in xs: P.append(mk(x))
SSETS = [['start','A','p1','g','h','p2','end'], ['start','A','p1a','p1','g','gv','h'], ['h','hl','b0','b1','b2','p2','p3m'], ['b2','p2','p3m','red','end','end2','end3']]
def stampi(name, **kw):
    if not OPT['stamps'] or name not in SSETS[OPT['sset']]: return []
    i = SSETS[OPT['sset']].index(name)
    return [I(f'{"s_memrealtime" if OPT["stamps"]==1 else "s_memtime"} s[{sSt+2*i}:{sSt+2*i+1}]', **kw)]
def stamp(name): e(*stampi(name))
_c = [0]; OUT = {}
def _body(body):
    ins = []
    for b in body:
        if isinstance(b, I): b.cond = _c[0]; ins.append(b)
        else: ins.append(I(b, cond=_c[0]))
    return ins
def cond_block(test, body, lat=None):
    _c[0] += 1; L = f'L_c{_c[0]}'
    return B([mk(t) for t in test[:-1]] + [I(f'{test[-1]} {L}')] + _body(body) + [I(L + ':')], lat=lat)
def rare_block(test, body, lat=None, rd=(), wr=()):
    _c[0] += 1; OUT[_c[0]] = (f'L_o{_c[0]}', f'L_b{_c[0]}')
    return B([mk(t) for t in test[:-1]] + [I(f'{test[-1]} L_o{_c[0]}', rd=rd, wr=wr)] + _body(body) + [I(f'L_b{_c[0]}:')], lat=lat)
def srd(d, p, size):
    return [f's_mov_b32 s{d}, s{p}', f's_and_b32 s{d+1}, s{p+1}, 0xffff', f's_mov_b32 s{d+2}, {size:#x}', f's_mov_b32 s{d+3}, 0x20000']
def mf32(d, a, b, c): return f'v_mfma_f32_32x32x16_bf16 {d}, {a}, {b}, {c}'
def mf16(d, a, b, c): return f'v_mfma_f32_16x16x32_bf16 {d}, {a}, {b}, {c}'
def barrier(rd=(), wr=(), drain=(), st=None):
    x = I('s_barrier', rd=rd, wr=wr)
    if drain: x.drain = set(drain)
    if st and stampi(st): return B([x] + stampi(st))
    return x
def bundle_scc(seq):
    seq = [mk(x) for x in seq]
    out = []; i = 0
    while i < len(seq):
        x = seq[i]
        if not isinstance(x, B) and 'scc' in x.W:
            j = i + 1; last = i
            while j < len(seq):
                if 'scc' in (seq[j].Rx if isinstance(seq[j], B) else seq[j].R): last = j
                if 'scc' in seq[j].W: break
                j += 1
            if last > i:
                out.append(B(flatten(seq[i:last + 1]))); i = last + 1; continue
        out.append(x); i += 1
    return out
def maxchain(dst, regs):
    o = []; regs = list(regs)
    if len(regs) == 2: return [f'v_max_u32 v{dst}, v{regs[0]}, v{regs[1]}']
    o.append(f'v_max3_u32 v{dst}, v{regs[0]}, v{regs[1]}, v{regs[2]}'); regs = regs[3:]
    while len(regs) >= 2:
        o.append(f'v_max3_u32 v{dst}, v{dst}, v{regs[0]}, v{regs[1]}'); regs = regs[2:]
    if regs: o.append(f'v_max_u32 v{dst}, v{dst}, v{regs[0]}')
    return o
def retry_body(dst, regs, loads, tag, bit):
    cnt = [f's_add_u32 s40, s40, {1 << bit:#x}'] if OPT['stamps'] else []
    return [f's_mov_b32 s{sCnt}, 0', f'L_r{tag}:'] + cnt + [x for l in loads for x in l] + ['s_waitcnt vmcnt(0)'] + maxchain(dst, regs) + \
           [f'v_cmp_eq_u32 vcc, -1, v{dst}', f's_add_u32 s{sCnt}, s{sCnt}, 1', f's_cmp_gt_u32 s{sCnt}, {SPIN}', f's_cbranch_scc1 L_rx{tag}',
            f's_cbranch_vccnz L_r{tag}', f'L_rx{tag}:']
def validate(dst, regs, loads, tag, bit):
    return maxchain(dst, regs) + [rare_block([f'v_cmp_eq_u32 vcc, -1, v{dst}', 's_cbranch_vccnz'], retry_body(dst, regs, loads, tag, bit), lat=16)]

vL, vL16, vWA0, vWA1, vWA2, vDw, vGs, vMs, vPf = 1, 2, 3, 4, 5, 6, 7, 8, 9
vXt = 120
aX = 0; aB = 64; aOne = 128; aDel = 132; aM = 136; aPo = 252

e('s_cmp_ge_u32 s2, 0x100', 's_cbranch_scc1 L_exit')
stamp('start')
e('s_load_dwordx2 s[4:5], s[0:1], 0', 's_load_dwordx4 s[44:47], s[0:1], 80', 's_load_dwordx8 s[36:43], s[0:1], 48')
e('v_lshrrev_b32 v17, 6, v0', f'v_and_b32 v{vL}, 63, v0', f'v_readfirstlane_b32 s{sW}, v17')
e('s_getpc_b64 s[6:7]', 'L_pc:', f's_bfe_u32 s{sT}, s2, 0x20003', f's_lshl_b32 s{sT}, s{sT}, 13', 'v_and_b32 v18, 15, v0', 'v_lshl_add_u32 v18, v17, 4, v18',
  f'v_lshl_add_u32 v18, v18, 7, s{sT}', 'v_min_u32 v18, L_end-L_pc-4, v18', 's_mov_b64 exec, 0xffff', 'global_load_dword v10, v18, s[6:7]', 's_mov_b64 exec, -1')
e(f's_and_b32 s{sChi}, s2, 7', f's_lshr_b32 s{sCg}, s2, 5', f's_bfe_u32 s{sT}, s2, 0x20003', f's_lshl_b32 s{sS2}, s{sChi}, 2', f's_add_u32 s{sS2}, s{sS2}, s{sT}')
vXo = 17
e(f'v_bfe_u32 v18, v{vL}, 2, 2', f'v_lshlrev_b32 v{vXo}, 15, v18', f'v_lshrrev_b32 v18, 4, v{vL}', f'v_lshl_add_u32 v{vXo}, v18, 6, v{vXo}',
  f'v_and_b32 v18, 3, v{vL}', f'v_lshl_add_u32 v{vXo}, v18, 4, v{vXo}')
e(f's_lshl_b32 s{sXb}, s{sW}, 19', f's_lshl_b32 s{sT}, s{sS2}, 10', f's_add_u32 s{sXb}, s{sXb}, s{sT}')
e(f'v_lshrrev_b32 v19, 3, v{vL}', 'v_lshlrev_b32 v19, 15, v19', f'v_and_b32 v20, 7, v{vL}', 'v_lshl_add_u32 v19, v20, 7, v19',
  f's_lshl_b32 s{sT2}, s{sCg}, 16', f's_add_u32 s{sT2}, s{sT2}, s{sXb}', f'v_lshlrev_b32 v{vL16}, 4, v{vL}')
vJ, vKq, vI, vHb = 18, 19, 20, 21
e('v_mov_b32 v22, v19')
e(f'v_and_b32 v{vJ}, 15, v{vL}', f'v_lshrrev_b32 v{vKq}, 4, v{vL}', f'v_and_b32 v{vI}, 31, v{vL}', f'v_lshrrev_b32 v{vHb}, 5, v{vL}')
if OPT['a8']:
    e(f's_lshr_b32 s{sT}, s{sChi}, 2', f's_lshl_b32 s{sBlk}, s{sT}, 3', f's_bfe_u32 s{sT}, s2, 0x30003', f's_add_u32 s{sBlk}, s{sBlk}, s{sT}',
      f's_and_b32 s{sT}, s{sChi}, 3', f's_lshl_b32 s{sPhi}, s{sT}, 2', f's_lshr_b32 s{sT}, s2, 6', f's_add_u32 s{sPhi}, s{sPhi}, s{sT}')
else:
    e(f's_lshr_b32 s{sT}, s{sChi}, 1', f's_lshl_b32 s{sBlk}, s{sT}, 2', f's_bfe_u32 s{sT}, s2, 0x20003', f's_add_u32 s{sBlk}, s{sBlk}, s{sT}',
      f's_and_b32 s{sT}, s{sChi}, 1', f's_lshl_b32 s{sPhi}, s{sT}, 3', f's_add_u32 s{sPhi}, s{sPhi}, s{sCg}')
e(f's_lshl_b32 s{sCls}, s{sBlk}, 2', f's_lshr_b32 s{sT}, s{sPhi}, 2', f's_add_u32 s{sCls}, s{sCls}, s{sT}',
  f's_and_b32 s{sTT}, s{sPhi}, 3', f's_lshl_b32 s{sTT}, s{sTT}, 2', f's_add_u32 s{sTT}, s{sTT}, s{sW}')
e(f's_lshl_b32 s{sT}, s{sCg}, 6', f's_add_u32 s{sGs}, s{sXb}, s{sT}',
  f's_lshl_b32 s{sMus}, s{sS2}, 8', f's_lshl_b32 s{sT}, s{sW}, 6', f's_add_u32 s{sMus}, s{sMus}, s{sT}', f's_add_u32 s{sMus}, s{sMus}, {WS_MU:#x}',
  f's_cmp_eq_u32 s{sCg}, 1', f's_cselect_b32 s{sMus}, s{sMus}, {WS_SIZE:#x}',
  f's_mul_i32 s{sSsW}, s{sCls}, 17', f's_add_u32 s{sSsW}, s{sSsW}, s{sTT}', f's_lshl_b32 s{sSsW}, s{sSsW}, 7', f's_add_u32 s{sSsW}, s{sSsW}, {WS_SS:#x}',
  f's_lshl_b32 s{sT}, s{sCls}, 4', f's_add_u32 s{sT}, s{sT}, s{sTT}', f's_lshl_b32 s{sHcW}, s{sT}, 11', f's_add_u32 s{sHcW}, s{sHcW}, {WS_HC:#x}')
vS4, vSo = 14, 16
e(f'v_lshrrev_b32 v12, 2, v{vL}', 'v_lshlrev_b32 v12, 15, v12', f'v_and_b32 v13, 3, v{vL}', 'v_lshl_add_u32 v12, v13, 4, v12',
  f'v_lshlrev_b32 v{vS4}, 2, v{vI}',
  f's_cmp_eq_u32 s{sTT}, 0', f's_cselect_b32 s{sT}, 0, {WS_SIZE:#x}', f'v_add_u32 v{vSo}, s{sT}, v{vS4}', f'v_add_u32 v13, 0x80, v{vS4}', f'v_cmp_eq_u32 vcc, 0, v{vHb}',
  f'v_cndmask_b32 v{vSo}, v{vSo}, v13, vcc',
  f'v_lshlrev_b32 v{vMs}, 4, v{vJ}', f'v_lshl_add_u32 v{vMs}, v{vKq}, 2, v{vMs}', f'v_mov_b32 v13, {WS_SIZE:#x}', f'v_cmp_gt_u32 vcc, 4, v{vJ}', f'v_cndmask_b32 v{vMs}, v13, v{vMs}, vcc')
for i in range(4): e(f'v_accvgpr_write_b32 a{aPo+i}, -1')
e('s_waitcnt lgkmcnt(0)')
e(*srd(SX, 4, 2048 * 1024))
e(B(['s_mov_b64 exec, 0xffff', f'buffer_load_dword v11, v22, {sr(SX)}, s{sT2} offen', 's_mov_b64 exec, -1']))
e(*srd(SWS, 46, WS_SIZE))
poi = lambda t, **kw: I(t, wr=['poi'], **kw)
e(poi(f'buffer_store_dwordx4 {ar(aPo)}, v12, {sr(SWS)}, s{sGs} offen sc1'), poi(f'buffer_store_dwordx4 {ar(aPo)}, v12, {sr(SWS)}, s{sGs} offen offset:512 sc1'),
  poi(f'buffer_store_dword a{aPo}, v{vMs}, {sr(SWS)}, s{sMus} offen sc1'), poi(f'buffer_store_dword a{aPo}, v{vSo}, {sr(SWS)}, s{sSsW} offen sc1'))
for i in range(2): e(poi(f'buffer_store_dwordx4 {ar(aPo)}, v{vL16}, {sr(SWS)}, s{sHcW} offen offset:{1024*i} sc1'))
xl = []
for g in range(4):
    for ks in range(4):
        pre = [f's_add_u32 s{sT2}, s{sXb}, {g*131072:#x}'] if ks == 0 else []
        xl.append(pre + [f'buffer_load_dwordx4 {ar(aX+16*g+4*ks)}, v{vXo}, {sr(SX)}, s{sT2} offen offset:{256*ks}'])
NX0 = OPT['nx0']
loadsA = [B(x) for x in xl[:NX0]]
setup = []
def s_(*xs):
    for x in xs: setup.append(mk(x))
s_(*srd(SWG, 36, 512 * ROWW)); s_(*srd(SWU, 38, 512 * ROWW)); s_(*srd(SWD, 40, 1376 * 1024)); s_(*srd(SOUT, 42, 2048 * 1024)); s_(*srd(SDBG, 44, 256))
T0 = [(43 * f + 8) >> 4 for f in range(17)]
NT = [T0[f + 1] - T0[f] for f in range(16)]
assert T0[16] == 43 and set(NT) == {2, 3}
s_(f's_lshr_b32 s{sRho}, s{sPhi}, 3', f's_and_b32 s{sCgp}, s{sPhi}, 7',
   f's_mul_i32 s{sT0}, s{sPhi}, 43', f's_add_u32 s{sT}, s{sT0}, 51', f's_add_u32 s{sT0}, s{sT0}, 8', f's_lshr_b32 s{sT0}, s{sT0}, 4', f's_lshr_b32 s{sT}, s{sT}, 4',
   f's_sub_u32 s{sT4}, s{sT}, s{sT0}', f's_lshl_b32 s{sWoff}, s{sT0}, 6',
   f's_lshl_b32 s{sT}, s{sBlk}, 2', f's_add_u32 s{sT}, s{sT}, s{sW}', f's_mul_i32 s{sActW}, s{sT}, {86*1024}', f's_lshl_b32 s{sHcR}, s{sT}, 15', f's_add_u32 s{sHcR}, s{sHcR}, {WS_HC:#x}',
   f's_mul_i32 s{sSsR}, s{sT}, {17*128}', f's_add_u32 s{sSsR}, s{sSsR}, {WS_SS+128:#x}',
   f's_lshl_b32 s{sT}, s{sT0}, 11', f's_add_u32 s{sActW}, s{sActW}, s{sT}', f's_add_u32 s{sActW}, s{sActW}, {WS_ACT:#x}',
   f's_add_u32 s{sAct3}, s{sActW}, 0x1000', f's_cmp_eq_u32 s{sT4}, 3', f's_cselect_b32 s{sAct3}, s{sAct3}, {WS_SIZE:#x}')
s_(f'v_lshlrev_b32 v{vGs}, 15, v{vJ}', f'v_lshl_add_u32 v{vGs}, v{vKq}, 4, v{vGs}', f'v_lshlrev_b32 v15, 16, v{vI}', f'v_lshl_add_u32 v15, v{vHb}, 3, v15')
xt = []
for u in range(4):
    pre = [f's_lshl_b32 s{sT3}, s{sCls}, 10', f's_lshl_b32 s{sR}, s{sTT}, 6', f's_add_u32 s{sT3}, s{sT3}, s{sR}'] if u == 0 else []
    xt.append(B(pre + [I(f'buffer_load_dwordx2 {vr(vXt+2*u,2)}, v15, {sr(SX)}, s{sT3} offen offset:{16*u}', svc=200)]))
pact = [B([I(f'buffer_store_dwordx4 {ar(aPo)}, v{vL16}, {sr(SWS)}, s{sActW if i < 4 else sAct3} offen offset:{1024*(i&3)} sc1', wr=['poiA'])], lat=1200) for i in range(6)]

gen = []
def g_(*xs):
    for x in xs: gen.append(mk(x))
vCr = 22
vDg = 28
vMsk, vEx, vEf, vBa = 61, 13, 64, 65
T = 32
g_(f's_lshl_b32 s{sT4}, s{sCg}, 4', f'v_add_u32 v{T}, s{sT4}, v{vJ}', f'v_cmp_eq_u32 s[{sM}:{sM+1}], 0, v{T}', f'v_mov_b32 v{T+1}, 0x80',
   f'v_cndmask_b32 v{T}, v{T}, v{T+1}, s[{sM}:{sM+1}]', f'v_mov_b32 v{vMsk}, {fh(16.0)}', f'v_cndmask_b32 v{vMsk}, 0, v{vMsk}, s[{sM}:{sM+1}]',
   f'v_cvt_f32_u32 v{T}, v{T}', f'v_mul_f32 v{vEf}, {fh(-1/512)}, v{T}', f'v_cvt_f32_u32 v{T+1}, v{vKq}', f'v_mul_f32 v{vBa}, {fh(32.0)}, v{T+1}', f'v_mul_f32 v{vBa}, v{vBa}, v{vEf}')
vKp, vFr, vFi = 66, 67, 68
g_(f'v_cndmask_b32 v{vKp}, -1, 0, s[{sM}:{sM+1}]', f'v_mov_b32 v{T+2}, 0x80000000', f'v_mov_b32 v{T+3}, 0xbf803f80', f'v_cndmask_b32 v{vFr}, v{T+2}, v{T+3}, s[{sM}:{sM+1}]',
   f'v_and_b32 v{vFi}, 0x8000, v{vKp}')
rot = [0]
def tmp():
    b = T + 4 + rot[0] * 6; rot[0] = (rot[0] + 1) % 4; return b
for ks in range(4):
    for m in range(4):
        t = tmp()
        for h in range(2):
            g_(f'v_fmamk_f32 v{t+h}, v{vEf}, {fh(float(128*ks+2*m+h))}, v{vBa}', f'v_cos_f32 v{t+2+h}, v{t+h}', f'v_sin_f32 v{t+4+h}, v{t+h}')
        g_(f'v_cvt_pk_bf16_f32 v{t}, v{t+2}, v{t+3}', f'v_cvt_pk_bf16_f32 v{t+1}, v{t+4}, v{t+5}',
           f'v_bitop3_b32 v{t+2}, v{t}, v{vKp}, v{vFr} bitop3:0x6a', f'v_bitop3_b32 v{t+3}, v{t+1}, v{vKp}, v{vFi} bitop3:0x6a')
        for i in range(4): g_(f'v_accvgpr_write_b32 a{aB+16*i+4*ks+m}, v{t+i}')
g_(f'v_mov_b32 v{T}, 0x3f803f80', f'v_cmp_eq_u32 vcc, 0, v{vKq}', f'v_mov_b32 v{T+1}, 0x3f80', f'v_cndmask_b32 v{T+1}, 0, v{T+1}, vcc', f'v_accvgpr_write_b32 a{aDel}, v{T+1}')
for m in range(4): g_(f'v_accvgpr_write_b32 a{aOne+m}, v{T}')
for m in range(1, 4): g_(f'v_accvgpr_write_b32 a{aDel+m}, 0')
for p in (1, 2, 3):
    t = tmp()
    g_(f'v_mul_f32 v{t}, {fh(8.0*p)}, v{vEf}', f'v_cos_f32 v{vCr+p-1}, v{t}', f'v_sin_f32 v{vCr+2+p}, v{t}')
g_(f'v_lshlrev_b32 v{T}, 2, v{vKq}', f'v_sub_u32 v{T}, v{vJ}, v{T}')
for c in range(4): g_(f'v_cmp_eq_u32 vcc, {c}, v{T}', f'v_cndmask_b32 v{vDg+c}, 0, 1.0, vcc')
vTf, vTb, vSg = 69, 70, 71
g_(f's_lshl_b32 s{sT4}, s{sW}, 4', f'v_add_u32 v{T}, s{sT4}, v{vJ}', f'v_cvt_f32_u32 v{vTf}, v{T}', f'v_mul_f32 v{vTf}, {fh(-1/2048)}, v{vTf}',
   f'v_lshlrev_b32 v{T+1}, 5, v{vKq}', f'v_add_u32 v{T+1}, s{sS2}, v{T+1}', f'v_cvt_f32_u32 v{vTb}, v{T+1}', f'v_mul_f32 v{vTb}, v{vTb}, v{vTf}',
   f'v_and_b32 v{T}, 1, v{vJ}', f'v_mul_u32_u24 v{vSg}, 0x8000, v{T}', f'v_lshl_or_b32 v{vSg}, v{vSg}, 16, v{vSg}')
for m in range(4):
    t = tmp()
    for h in range(2):
        jj = 2 * m + h
        g_(f'v_fmamk_f32 v{t+h}, v{vTf}, {fh(float(512*(jj>>2)+128*(jj&3)))}, v{vTb}', f'v_cos_f32 v{t+2+h}, v{t+h}', f'v_sin_f32 v{t+4+h}, v{t+h}')
    g_(f'v_cvt_pk_bf16_f32 v{t}, v{t+2}, v{t+3}', f'v_cvt_pk_bf16_f32 v{t+1}, v{t+4}, v{t+5}', f'v_xor_b32 v{t+2}, 0x80008000, v{t+1}')
    for i in range(3): g_(f'v_accvgpr_write_b32 a{aM+4*i+m}, v{t+i}', f'v_xor_b32 v{t+3+i}, v{vSg}, v{t+i}', f'v_accvgpr_write_b32 a{aM+12+4*i+m}, v{t+3+i}')
g_(f's_lshr_b32 s{sT4}, s{sW}, 1', f's_lshl_b32 s{sT4}, s{sT4}, 12', f's_and_b32 s{sK}, s{sW}, 1', f's_lshl_b32 s{sK}, s{sK}, 3', f's_add_u32 s{sT4}, s{sT4}, s{sK}',
   f's_add_u32 s{sT4}, s{sT4}, {LDS_EX:#x}', f'v_add_u32 v{vEx}, s{sT4}, v{vL16}', f'v_add_u32 v{vWA2}, {LDS_EX:#x}, v{vL16}')
npf = 4 if OPT['a8'] else 8
g_(f'v_mul_u32_u24 v{vPf}, {ROWW}, v{vKq}', f'v_lshl_add_u32 v{vPf}, v{vJ}, 7, v{vPf}',
   f's_and_b32 s{sT4}, s{sPhi}, {16-npf}', f's_mul_i32 s{sT4}, s{sT4}, 43', f's_add_u32 s{sT4}, s{sT4}, 8', f's_lshr_b32 s{sT4}, s{sT4}, 4', f's_lshl_b32 s{sPf}, s{sT4}, 6',
   f's_lshr_b32 s{sT4}, s2, 3', f's_lshl_b32 s{sT4}, s{sT4}, 2', f's_add_u32 s{sT4}, s{sT4}, s{sW}', f's_mul_i32 s{sT4}, s{sT4}, {4*ROWW}', f's_add_u32 s{sPf}, s{sPf}, s{sT4}')
nl = 7 if OPT['a8'] else 12
pm = (1 << nl) - 1; pm |= pm << 16
def wpf(sd, dst): return B([f's_mov_b32 exec_lo, {pm:#x}', f's_mov_b32 exec_hi, {pm:#x}', I(f'buffer_load_dword v{dst}, v{vPf}, {sr(sd)}, s{sPf} offen', svc=16*nl), 's_mov_b64 exec, -1'])
gen = schedule(gen, lookahead=40)
work = bundle_scc(setup + gen)
def weave(loads, work, first, per):
    out = list(loads[:first]); li = first; acc = 0
    for x in work:
        out.append(x); acc += x.cost
        if acc >= per and li < len(loads):
            out.append(loads[li]); li += 1; acc = 0
    return out + list(loads[li:])
e(*weave(loadsA, work, 2, 56))
stamp('A')
if OPT['stamps']: e('s_mov_b32 s40, 0')

Q = []
def q_(*xs):
    for x in xs: Q.append(mk(x))
vAcc = 64
vU = 32
vMu = 48
def arrive(word, rd, wr):
    return B(['v_mov_b32 v0, 1', f's_and_b32 s{sR}, s2, 3', f's_lshl_b32 s{sR}, s{sR}, 6', f's_lshl_b32 s{sCnt}, s{sW}, 8', f's_add_u32 s{sR}, s{sR}, s{sCnt}', 's_mov_b64 exec, 1',
              I(f'buffer_atomic_add v0, v{vL}, {sr(SDBG)}, s{sR} offen offset:{4*word} sc1', rd=rd, wr=wr, svc=16), 's_mov_b64 exec, -1'], lat=8)
for x in xl[NX0:]: q_(B(x[:-1] + [I(x[-1], wr=['@xiss'])], lat=750))
q_(barrier(rd=['poi', '@xiss'], wr=['@eb']))
q_(arrive(0, ['@eb'], ['@eb2']))
q_(wpf(SWG, 10), wpf(SWU, 11))
q_(*xt)
q_(*pact)
q_(f'v_mov_b32 v60, {fh(1e-5)}')
for g in range(4):
    ac = vAcc + 28 * (g & 1)
    for ks in range(4):
        xa = ar(aX + 16 * g + 4 * ks)
        q_(I(f'WAITFOR {xa}', wr=[f'@wx{g}{ks}']))
        ops = [ar(aOne), xa] + [ar(aB + 16 * i + 4 * ks) for i in range(4)] + ([ar(aDel)] if ks == 0 else [])
        for ti, bop in enumerate(ops):
            d = vr(ac + 4 * ti)
            q_(I(mf16(d, xa, bop, '0' if ks == 0 else d), rd=[f'@wx{g}{ks}']))
    on, gr, de = ac, ac + 4, ac + 24
    t = 52 + 4 * (g & 1)
    q_(f'v_mul_f32 v{t}, v{vDg}, v{gr}', f'v_fmac_f32 v{t}, v{vDg+1}, v{gr+1}', f'v_fmac_f32 v{t}, v{vDg+2}, v{gr+2}', f'v_fmac_f32 v{t}, v{vDg+3}, v{gr+3}')
    q_(f'v_add_f32 v{t+1}, v{on}, v{on+1}', f'v_add_f32 v{t+2}, v{on+2}, v{on+3}', f'v_add_f32 v{t+1}, v{t+1}, v{t+2}', f'v_mul_f32 v{vMu+g}, {fh(-1/512)}, v{t+1}',
       f'v_add_f32 v{t+3}, v{vMu+g}, v{de}')
    for rr in (8, 4, 2, 1):
        q_(I(f'v_add_f32_dpp v{t}, v{t}, v{t} row_ror:{rr} row_mask:0xf bank_mask:0xf', lat=13))
    q_(f'v_fmamk_f32 v{t}, v{t}, {fh(1/512)}, v60', f'v_fma_f32 v{t}, -v{vMu+g}, v{vMu+g}, v{t}', f'v_rsq_f32 v{t}, v{t}')
    for tile in range(2):
        re, im = ac + 8 + 8 * tile, ac + 12 + 8 * tile
        ur, ui = vU + 8 * tile + g, vU + 8 * tile + 4 + g
        q_(f'v_sub_f32 v{ur}, v{re}, v{t+3}')
        if tile == 0: q_(f'v_fma_f32 v{ui}, v{vCr}, v{im+1}, v{im}')
        else: q_(f'v_fma_f32 v{ui}, -v{vMsk}, v{t+3}, v{im}', f'v_fmac_f32 v{ui}, v{vCr}, v{im+1}')
        for p in (1, 2, 3):
            q_(f'v_fmac_f32 v{ur}, v{vCr+p-1}, v{re+p}')
            if p > 1: q_(f'v_fmac_f32 v{ui}, v{vCr+p-1}, v{im+p}')
            if tile == 0: q_(f'v_fma_f32 v{ur}, -v{vCr+2+p}, v{im+p}, v{ur}', f'v_fmac_f32 v{ui}, v{vCr+2+p}, v{re+p}')
            else: q_(f'v_fmac_f32 v{ur}, v{vCr+2+p}, v{im+p}', f'v_fma_f32 v{ui}, -v{vCr+2+p}, v{re+p}, v{ui}')
        q_(f'v_mul_f32 v{ur}, v{ur}, v{t}', f'v_mul_f32 v{ui}, v{ui}, v{t}')
for f in range(4):
    q_(f'v_cvt_pk_bf16_f32 v{vU+4*f}, v{vU+4*f}, v{vU+4*f+1}', f'v_cvt_pk_bf16_f32 v{vU+4*f+1}, v{vU+4*f+2}, v{vU+4*f+3}',
       I(f'ds_write_b64 v{vEx}, {vr(vU+4*f,2)} offset:{1024*f}', wr=['EX']))
e(*schedule(Q, verbose=True))
e(barrier(rd=['EX'], st='p1a'))
Q = []
vPQ = 64
for bk in range(2):
    for f in range(4): q_(f'ds_read_b128 {vr(vPQ+16*bk+4*f)}, v{vWA2} offset:{4096*bk+1024*f}')
vGa = 96
for bk in range(2):
    mre, mim, mni = ar(aM + 12 * bk), ar(aM + 12 * bk + 4), ar(aM + 12 * bk + 8)
    for tile in range(2):
        Pf = vr(vPQ + 16 * bk + 8 * tile); dr, di = vr(vGa + 8 * tile), vr(vGa + 8 * tile + 4)
        q_(mf16(dr, Pf, mre, '0' if bk == 0 else dr), mf16(di, Pf, mim, '0' if bk == 0 else di))
    for tile in range(2):
        Qf = vr(vPQ + 16 * bk + 8 * tile + 4); dr, di = vr(vGa + 8 * tile), vr(vGa + 8 * tile + 4)
        q_(mf16(dr, Qf, mni, dr), mf16(di, Qf, mre, di))
q_(f'v_mov_b32 v52, v{vMu}')
for g in range(1, 4): q_(B([f'v_cmp_eq_u32 vcc, {g}, v{vJ}', f'v_cndmask_b32 v52, v52, v{vMu+g}, vcc']))
q_('v_cvt_pk_bf16_f32 v53, v52, v52', 'v_and_b32 v53, 0xffff0000, v53', 'v_sub_f32 v54, v52, v53', 'v_cvt_pk_bf16_f32 v53, v53, v54',
   I(f'buffer_store_dword v53, v{vMs}, {sr(SWS)}, s{sMus} offen sc1', svc=8))
for tile in range(2):
    for c in range(4): q_(f'v_cvt_pk_bf16_f32 v{112+4*tile+c}, v{vGa+8*tile+c}, v{vGa+8*tile+4+c}')
    q_(I(f'buffer_store_dwordx4 {vr(112+4*tile)}, v{vGs}, {sr(SWS)}, s{sGs} offen offset:{512*tile} sc1', svc=8))
e(*schedule(Q, verbose=True))
stamp('p1')

Q = []
T = 96
vH = 32
vGf = 64
vGo, vGo2, vMo, vX0, vTau, vTau2 = 22, 23, 24, 25, 26, 27
vMU = 48
aR = 64; aR2 = 80; aR3 = 100; aOnA = 96
q_(f'v_bfe_u32 v{T}, v{vL}, 4, 1', f'v_lshlrev_b32 v{T+1}, 3, v{T}', f'v_lshl_add_u32 v{T+1}, v{vHb}, 2, v{T+1}', f'v_bfe_u32 v{T}, v{vL}, 2, 2', f'v_add_u32 v{T+1}, v{T+1}, v{T}',
   f'v_mul_u32_u24 v{vDw}, {ROWW}, v{T+1}', f'v_and_b32 v{T}, 3, v{vL}', f'v_lshl_add_u32 v{vDw}, v{T}, 4, v{vDw}',
   B([f's_mul_i32 s{sWc}, s{sW}, {16*ROWW}', f's_add_u32 s{sWc}, s{sWc}, s{sWoff}', f's_mov_b32 s{sWst}, {64*ROWW}', f's_lshl_b32 s{sLW}, s{sW}, 10']))
m0v = [None]
def setm0(val):
    d = None if m0v[0] is None else val - m0v[0]
    m0v[0] = val
    if d is not None and -32768 <= d < 32768: return f's_addk_i32 m0, {d & 0xffff:#x}'
    return f's_add_u32 m0, s{sLW}, {val:#x}'
aU2 = 128
TILES = [(SWG, 0, 0), (SWG, 1, 1), (SWG, 2, 2), (SWU, 0, 3), (SWU, 1, 4), (SWU, 2, None)]
WD = []
for c in range(8):
    for n, (sd, p, ti) in enumerate(TILES):
        ins = [f's_add_u32 s{sWc}, s{sWc}, s{sWst}'] if (n == 0 and c) else []
        if ti is None: ins += [I(f'buffer_load_dwordx4 {ar(aU2+4*c)}, v{vDw}, {sr(sd)}, s{sWc} offen offset:{p*64}', svc=85)]
        else: ins += [setm0((5 * c + ti) * 4096 - p * 64), I(f'buffer_load_dwordx4 v{vDw}, {sr(sd)}, s{sWc} offen offset:{p*64} lds', wr=[f'W{c}'], rd=['@exfree'] if c == 7 else [], svc=85)]
        WD.append(B(ins, lat=900))
N3, N4, N5 = OPT['n3'], OPT['n3'] + OPT['n4'], OPT['n3'] + OPT['n4'] + OPT['n5']
q_(f'v_and_b32 v29, 3, v{vL}', 'v_lshlrev_b32 v29, 6, v29', I(f'buffer_load_dword v28, v29, {sr(SDBG)}, 0 offen sc1', svc=16, lat=800, nb=OPT.get('nbe', 300)))
for b in WD[:N3]: q_(b)
q_(B([f's_sub_u32 s{sT4}, 64, s{sCls}', f's_and_b32 s{sT4}, s{sT4}, 63', f's_cmp_ge_u32 s{sTT}, 8', f's_cselect_b32 s{sSrc}, s{sT4}, s{sCls}', f's_cselect_b32 s{sSrc2}, s{sCls}, s{sT4}',
      f's_cselect_b64 s[{sM}:{sM+1}], -1, 0', f's_lshl_b32 s{sSrc}, s{sSrc}, 15', f's_lshl_b32 s{sSrc2}, s{sSrc2}, 15',
      f's_cmp_eq_u32 s{sCls}, 0', f's_cselect_b32 s{sT4}, 32, 31', f's_lshl_b32 s{sT3}, s{sTT}, 5',
      f'v_sub_u32 v{T+2}, s{sT4}, v{vI}', f'v_cndmask_b32 v{vTau}, v{vI}, v{T+2}, s[{sM}:{sM+1}]', f'v_cndmask_b32 v{vTau2}, v{T+2}, v{vI}, s[{sM}:{sM+1}]',
      f'v_add_u32 v{T+3}, s{sT3}, v{vI}', f'v_sub_u32 v{T+4}, 0x200, v{T+3}', f'v_cndmask_b32 v{T+3}, v{T+3}, v{T+4}, s[{sM}:{sM+1}]']))
q_(f'v_sub_u32 v{T+4}, 0x180, v{T+3}', f'v_and_b32 v{T+5}, 0x7f, v{T+3}', B([f'v_cmp_lt_u32 vcc, 0x80, v{T+3}', f'v_cndmask_b32 v{T+5}, v{T+5}, v{T+4}, vcc']),
   f'v_lshlrev_b32 v{T+5}, 2, v{T+5}', f'v_mov_b32 v{T+4}, {WS_SIZE:#x}', f'v_and_b32 v{T+3}, 0xff, v{T+3}', B([f'v_cmp_eq_u32 vcc, 0, v{T+3}', f'v_cndmask_b32 v{T+5}, v{T+5}, v{T+4}, vcc']),
   f'v_lshl_add_u32 v{vGo}, v{vHb}, 12, v{T+5}', f'v_lshlrev_b32 v{vMo}, 3, v{vI}')
def rmat(base, tau, t0, ph=None):
    o = [f'v_cvt_f32_u32 v{t0}, v{tau}', f'v_mul_f32 v{t0}, {fh(1/32)}, v{t0}', f'v_cvt_f32_u32 v{t0+1}, v{vHb}', f'v_mul_f32 v{t0+1}, 4.0, v{t0+1}', f'v_mul_f32 v{t0+1}, v{t0+1}, v{t0}']
    if ph is not None: o += [f'v_add_f32 v{t0+1}, s{ph}, v{t0+1}']
    for k in range(16):
        t = t0 + 2 + 3 * (k % 3)
        o += [f'v_fmamk_f32 v{t}, v{t0}, {fh(float(8*(k>>2)+(k&3)))}, v{t0+1}', f'v_cos_f32 v{t+1}, v{t}', f'v_sin_f32 v{t+2}, v{t}',
              f'v_cvt_pk_bf16_f32 v{t}, v{t+1}, v{t+2}', f'v_accvgpr_write_b32 a{base+k}, v{t}']
    return o
q_(*rmat(aR, vTau, T + 6))
spec_test = [f's_and_b32 s{sR}, s{sTT}, 7', 's_cbranch_scc1']
q_(cond_block(spec_test, [f's_cmp_eq_u32 s{sTT}, 0', f's_cselect_b32 s{sR}, {fh(0.25)}, 0'] + rmat(aR2, vTau2, 80, sR) + rmat(aR3, vTau, 80, sR) +
              [f'v_lshlrev_b32 v{vGo2}, 12, v{vHb}', f'v_add_u32 v{vGo2}, 0x200, v{vGo2}'], lat=8))
q_(f'v_mov_b32 v53, 0x3f803f80', B([f'v_cmp_eq_u32 vcc, 0, v{vHb}', 'v_cndmask_b32 v53, 0, v53, vcc']), f'v_accvgpr_write_b32 a{aOnA}, v53')
for m in (1, 2, 3): q_(f'v_accvgpr_write_b32 a{aOnA+m}, 0', f'v_mov_b32 v{vMU+m}, 0')
for r in range(16):
    src = vXt + (r >> 1)
    q_(f'v_and_b32 v{vH+r}, 0xffff0000, v{src}' if r & 1 else f'v_lshlrev_b32 v{vH+r}, 16, v{src}')
q_(f'v_mov_b32 v{vX0}, v{vH}')
q_(f'v_lshlrev_b32 v{vWA0}, 9, v{vHb}', f'v_bfe_u32 v54, v{vL}, 2, 2', f'v_lshl_add_u32 v{vWA0}, v54, 6, v{vWA0}',
   f'v_bfe_u32 v54, v{vL}, 4, 1', f'v_lshl_add_u32 v{vWA0}, v54, 5, v{vWA0}', f'v_and_b32 v54, 3, v{vL}', f'v_lshl_add_u32 v{vWA0}, v54, 3, v{vWA0}',
   f'v_add_u32 v{vWA1}, 0x10000, v{vWA0}', f'v_add_u32 v{vWA2}, 0x20000, v{vWA0}')
q_(B([f's_and_b32 s{sMus}, s{sCls}, 31', f's_lshl_b32 s{sMus}, s{sMus}, 8', f's_lshr_b32 s{sT4}, s{sCls}, 5', f's_lshl_b32 s{sT4}, s{sT4}, 2', f's_add_u32 s{sMus}, s{sMus}, s{sT4}', f's_add_u32 s{sMus}, s{sMus}, {WS_MU:#x}']))
def ebcheck(word, vd, va, wr=()):
    return rare_block([f'v_cmp_gt_u32 vcc, 64, v{vd}', 's_cbranch_vccnz'],
        [f's_mov_b32 s{sCnt}, 0', f'L_eb{word}:', 's_sleep 1', f'buffer_load_dword v{vd}, v{va}, {sr(SDBG)}, 0 offen offset:{4*word} sc1', 's_waitcnt vmcnt(0)', f'v_cmp_gt_u32 vcc, 64, v{vd}',
         f's_add_u32 s{sCnt}, s{sCnt}, 1', f's_cmp_gt_u32 s{sCnt}, {SPIN}', f's_cbranch_scc1 L_ebx{word}', f's_cbranch_vccnz L_eb{word}', f'L_ebx{word}:'], lat=8, wr=wr)
q_(ebcheck(0, 28, 29))
e(*schedule(Q, verbose=True))
stamp('g')
Q = []
def gloads(dst, vo, src, tmpreg):
    o = []
    for q in range(4):
        for m in range(4):
            pre = [f's_add_u32 s{tmpreg}, s{src}, {8192*q:#x}'] if (m == 0 and q) else []
            o.append(pre + [f'buffer_load_dword v{dst+4*q+m}, v{vo}, {sr(SWS)}, s{tmpreg if q else src} offen offset:{1024*m} sc1'])
    return o
mul = [f'buffer_load_dword v{vMU}, v{vMo}, {sr(SWS)}, s{sMus} offen sc1']
for x in gloads(vGf, vGo, sSrc, sT2): q_(B(x[:-1] + [I(x[-1], svc=32)], lat=900))
q_(I(mul[0], lat=900, svc=32, wr=['@gi']))
zl = gloads(80, vGo2, sSrc2, sR) + gloads(96, vGo2, sSrc, sR)
zb = cond_block(spec_test, [x for l in zl for x in l], lat=8); zb.R.add('@gi'); zb.W.add('@gi2')
q_(zb)
for i, b in enumerate(WD[N3:N4]):
    if i == 0: b.R.add('@gi2')
    q_(b)
gregs = list(range(vGf, vGf + 16)) + [vMU]
q_(*validate(0, gregs, gloads(vGf, vGo, sSrc, sR) + [mul], 'g', 24))
if stampi('gv'): q_(B(['v_mov_b32 v0, v0'] + stampi('gv')))
H = vr(vH, 16)
q_(mf32(H, ar(aOnA), vr(vMU), H))
for q in range(4): q_(mf32(H, vr(vGf + 4 * q), ar(aR + 4 * q), H))
g2 = list(range(80, 112))
Z = vr(128, 16)
sp = maxchain(0, g2) + ['v_cmp_eq_u32 vcc, -1, v0', 's_cbranch_vccz L_rxs'] + retry_body(0, g2, zl, 's', 24)
sp += [mf32(Z, vr(80 + 4 * q), ar(aR2 + 4 * q), Z if q else '0') for q in range(4)] + [mf32(Z, vr(96 + 4 * q), ar(aR3 + 4 * q), Z) for q in range(4)]
sp += [f's_cmp_eq_u32 s{sTT}, 0', f's_cselect_b32 s{sR}, {fh(1/32)}, 0.5', 's_mov_b64 exec, 0xffffffff', I(f'v_fma_f32 v{vH}, s{sR}, v128, v{vH}'), 's_mov_b64 exec, -1']
q_(cond_block(spec_test, sp, lat=8))
for h in range(2):
    for m in range(4): q_(f'v_cvt_pk_bf16_f32 v{52+4*h+m}, v{vH+8*h+2*m}, v{vH+8*h+2*m+1}')
    q_(I(f'buffer_store_dwordx4 {vr(52+4*h)}, v{vL16}, {sr(SWS)}, s{sHcW} offen offset:{1024*h} sc1', svc=8, rd=['poiA']))
q_(f'v_sub_f32 v{vX0}, v{vX0}, v{vH}')
q_(f'v_mul_f32 v60, v{vH}, v{vH}', f'v_mul_f32 v61, v{vH+1}, v{vH+1}')
for r in range(2, 16): q_(f'v_fmac_f32 v{60+(r&1)}, v{vH+r}, v{vH+r}')
q_('v_add_f32 v60, v60, v61', f'v_permlane32_swap_b32 v60, v{vX0}', B(['s_mov_b64 exec, 0xffffffff', I(f'v_add_f32 v60, v60, v{vX0}'), 's_mov_b64 exec, -1']),
   I(f'buffer_store_dword v60, v{vSo}, {sr(SWS)}, s{sSsW} offen sc1', svc=8))
e(*schedule(Q, verbose=True))
stamp('h')

Q = []
vG = 128
aWB = 160; NWB = 16
def hcl(k, reg): return [f's_add_u32 s{reg}, s{sHcR}, {4096*(k>>2):#x}', f'buffer_load_dwordx4 {vr(vG+4*k)}, v{vL16}, {sr(SWS)}, s{reg} offen offset:{1024*(k&3)} sc1']
for b in WD[N4:N5]: q_(b)
rest = WD[N5:]
HL = []
for k in range(32):
    pre = ([f's_mov_b32 s{sAc}, s{sHcR}'] if k == 0 else [f's_addk_i32 s{sAc}, 0x1000']) if k % 4 == 0 else []
    HL.append(B(pre + [f'buffer_load_dwordx4 {vr(vG+4*k)}, v{vL16}, {sr(SWS)}, s{sAc} offen offset:{1024*(k&3)} sc1'] + (stampi('hl') if k == 0 else []), lat=900))
wi = N5
q_(barrier(wr=['@exfree']))
for c in range(8):
    while wi < 6 * (c + 1): q_(WD[wi]); wi += 1
    q_(*HL[4 * c:4 * c + 4])
vSs = 24
ssl = [[f'buffer_load_dword v{vSs+i}, v22, {sr(SWS)}, s{sSsR} offen offset:{128*i} sc1'] for i in range(8)]
q_(f'v_lshl_add_u32 v22, v{vHb}, 10, v{vS4}')
for x in ssl: q_(I(x[0], svc=32, lat=900))
ncg = 4 if OPT['a8'] else 8
q_(f'v_lshlrev_b32 v{vPf}, 7, v{vL}' if not OPT['a8'] else B([f'v_lshrrev_b32 v23, 2, v{vL}', f'v_lshlrev_b32 v{vPf}, 10, v23', f'v_and_b32 v23, 3, v{vL}', f'v_lshl_add_u32 v{vPf}, v23, 7, v{vPf}']))
q_(B([f's_lshr_b32 s{sPf}, s2, 3', f's_lshl_b32 s{sPf}, s{sPf}, 2', f's_add_u32 s{sPf}, s{sPf}, s{sW}', f's_mul_i32 s{sPf}, s{sPf}, {11*1024}'] +
     ([f's_and_b32 s{sT4}, s{sCgp}, 4', f's_lshl_b32 s{sT4}, s{sT4}, 7', f's_add_u32 s{sPf}, s{sPf}, s{sT4}'] if OPT['a8'] else [])))
if OPT['a8']:
    q_(B(['s_mov_b32 exec_hi, 0xfff', I(f'buffer_load_dword v10, v{vPf}, {sr(SWD)}, s{sPf} offen', svc=180), 's_mov_b64 exec, -1']))
else:
    q_(I(f'buffer_load_dword v10, v{vPf}, {sr(SWD)}, s{sPf} offen', svc=256))
    q_(B([f's_add_u32 s{sPf}, s{sPf}, 0x2000', 's_mov_b64 exec, 0xffffff', I(f'buffer_load_dword v11, v{vPf}, {sr(SWD)}, s{sPf} offen', svc=100), 's_mov_b64 exec, -1']))
q_(B(['s_mov_b64 exec, 1', I(f'buffer_load_dword v12, v{vL}, {sr(SOUT)}, 0 offen', svc=16), 's_mov_b64 exec, -1']))
def lwin(pos, regs): return regs[pos >> 16], pos & 0xffff
wb = [0]; wk = [0]
def wfrag(ti, ks, pub):
    b = aWB + 4 * wb[0]; wb[0] = (wb[0] + 1) % NWB
    va, off = lwin((5 * (ks >> 2) + ti) * 4096 + (ks & 3) * 1024, (vWA0, vWA1, vWA2))
    return b, [I(f'ds_read_b64_tr_b16 {ar(b,2)}, v{va} offset:{off}', rd=[pub, f'L{ti}']),
               I(f'ds_read_b64_tr_b16 {ar(b+2,2)}, v{va} offset:{off+256}', rd=[pub, f'L{ti}'])]
def gemm_steps(kss, tiles, pub):
    for k0 in range(0, len(kss), 2):
        fr = []
        for ks in kss[k0:k0 + 2]:
            for ti, acc in tiles:
                b, rds = wfrag(ti, ks, pub); q_(*rds); fr.append((ks, acc, b))
        wk[0] += 1
        q_(I('WAITFOR ' + ', '.join(ar(b) for _, _, b in fr), wr=[f'@w{wk[0]}']))
        for ks, acc, b in fr: q_(I(mf32(acc, ar(b), vr(vG + 4 * ks), '0' if ks == 0 else acc), rd=[f'@w{wk[0]}']))
A0, A1, A2 = 64, 96, 64
t0 = [(0, vr(A0, 16)), (3, vr(A0 + 16, 16))]
cdone = N5 // 6
c = 0
while c < 8:
    ce = max(c + OPT.get('wgrp', 2), cdone if c == 0 else 0); ce = min(ce, 8)
    q_(barrier(rd=[f'W{i}' for i in range(c, ce)], wr=['@pub']))
    for cc in range(c, ce):
        ks = list(range(4 * cc, 4 * cc + 4))
        q_(*validate(0, [vG + 4 * k for k in ks], [hcl(k, sR) for k in ks], f'h{cc}', 16))
        gemm_steps(ks, t0, '@pub')
    c = ce
vNr, vIr = 16, 17
q_(*validate(0, range(vSs, vSs + 8), ssl, 'ss', 16))
for i in range(0, 8, 2): q_(f'v_add_f32 v{vSs+i}, v{vSs+i}, v{vSs+i+1}')
q_(f'v_add_f32 v{vSs}, v{vSs}, v{vSs+2}', f'v_add_f32 v{vSs+4}, v{vSs+4}, v{vSs+6}', f'v_add_f32 v{vSs}, v{vSs}, v{vSs+4}',
   f'v_mov_b32 v{vSs+1}, v{vSs}', f'v_permlane32_swap_b32 v{vSs+1}, v{vSs+1}', f'v_add_f32 v{vSs}, v{vSs}, v{vSs+1}',
   f'v_mov_b32 v{vSs+1}, {fh(1e-5)}', f'v_fmamk_f32 v{vIr}, v{vSs}, {fh(1/512)}, v{vSs+1}', f'v_rsq_f32 v{vNr}, v{vIr}', f'v_mul_f32 v{vNr}, {fh(-1.4426950408889634)}, v{vNr}')
vTm = 24
et = [0]
def epilogue(p, gacc, uacc):
    pk = 56
    o = []
    for r in range(16):
        t = 32 + 2 * et[0]; et[0] = (et[0] + 1) % 8
        gs, us = gacc + r, uacc + r
        o += [f'v_mul_f32 v{t}, v{vNr}, v{gs}', f'v_exp_f32 v{t}, v{t}', f'v_mul_f32 v{t+1}, v{gs}, v{us}', f'v_fma_f32 v{t}, v{t}, v{vIr}, v{vIr}',
              f'v_rcp_f32 v{t}, v{t}', f'v_mul_f32 v{vTm+(r&7)}, v{t+1}, v{t}']
        if r & 1: o += [f'v_cvt_pk_bf16_f32 v{pk+(r>>1)}, v{vTm+(r&7)-1}, v{vTm+(r&7)}']
        if r & 7 == 7:
            o += [I(f'buffer_store_dwordx4 {vr(pk+4*(r>>3))}, v{vL16}, {sr(SWS)}, s{sActW if p < 2 else sAct3} offen offset:{(2048*p if p < 2 else 0)+1024*(r>>3)} sc1')]
    return [mk(x) for x in o]
def merge_vm(ep, dm, n0):
    o = list(dm[:n0]); rest = list(dm[n0:]); seen = 0
    for x in ep:
        o.append(x)
        if x.cls == 'vmem':
            seen += 1
            if seen == 1: o += rest[:n0]; rest = rest[n0:]
    return o + rest
order = [T0[f] for f in range(16)] + [T0[f] + 1 for f in range(16)] + [T0[f] + 2 for f in range(16) if NT[f] == 3]
assert sorted(order) == list(range(43))
def dunit(n):
    if n < 8: return 5 * n + 3
    if n < 16: return 5 * (n - 8) + 1
    if n < 24: return 5 * (n - 16) + 4
    if n < 32: return 5 * (n - 24) + 2
    if n < 40: return 5 * (n - 32)
    return 5 * (n - 40) + 3
def dpos(n): return 4096 * dunit(n)
def dslot(n): return 'A' if n < 8 else ('B' if n < 24 else 'C')
vDd = vDw
aStg = 0
dcv = [None]
def ddma(ns):
    out = []
    for n in ns:
        d = None if dcv[0] is None else order[n] - dcv[0]
        dcv[0] = order[n]
        so = f's_add_u32 s{sDc}, s{sDc}, s{sC3 if d == 3 else sC2}' if d in (2, 3) else f's_add_u32 s{sDc}, s{sDo}, {order[n]*32768:#x}'
        if n < 24:
            out.append(B([so, setm0(dpos(n)), I(f'buffer_load_dwordx4 v{vDd}, {sr(SWD)}, s{sDc} offen lds', wr=[f'D{dslot(n)}'], rd=[f'@free{dunit(n)%5}'])], lat=900))
        else:
            out.append(B([so, f'buffer_load_dwordx4 {ar(aStg+4*(n-24))}, v{vDd}, {sr(SWD)}, s{sDc} offen'], lat=900))
    return out
q_(f'v_lshrrev_b32 v22, 3, v{vL}', 'v_and_b32 v23, 3, v22', 'v_lshrrev_b32 v22, 2, v22', 'v_lshl_add_u32 v23, v22, 3, v23', f'v_lshlrev_b32 v{vDd}, 10, v23',
   f'v_lshrrev_b32 v22, 3, v{vL}', 'v_and_b32 v22, 2, v22', f'v_and_b32 v23, 7, v{vL}', 'v_xor_b32 v22, v22, v23', f'v_lshl_add_u32 v{vDd}, v22, 4, v{vDd}')
q_(B([f's_lshr_b32 s{sK}, s{sW}, 1', f's_lshl_b32 s{sDo}, s{sK}, 14', f's_and_b32 s{sT4}, s{sW}, 1', f's_lshl_b32 s{sT4}, s{sT4}, 12', f's_add_u32 s{sDo}, s{sDo}, s{sT4}']),
   B([f's_lshl_b32 s{sT4}, s{sCgp}, 7', f's_add_u32 s{sDo}, s{sDo}, s{sT4}']), f's_mov_b32 s{sC3}, {3*32768:#x}', f's_mov_b32 s{sC2}, {2*32768:#x}')
vLW = 48
q_(f'v_add_u32 v{vLW}, s{sLW}, v{vL16}', f'v_add_u32 v{vLW+1}, 0x10000, v{vLW}', f'v_add_u32 v{vLW+2}, 0x20000, v{vLW}')
q_(barrier(wr=['@free0', '@free3', 'L0', 'L3'], drain=['L0', 'L3'], st='b0'))
q_(*merge_vm(epilogue(0, A0, A0 + 16), ddma(range(0, 8)) + ddma(range(24, 43)), 7))
t1 = [(1, vr(A1, 16)), (4, vr(A1 + 16, 16))]
for c in range(8):
    gemm_steps(list(range(4 * c, 4 * c + 4)), t1, '@pub')
    if c < 4:
        for cc in (2 * c, 2 * c + 1):
            va, off = lwin(5 * cc * 4096, (vLW, vLW + 1, vLW + 2))
            q_(I(f'ds_write_b128 v{va}, {ar(aU2+4*cc)} offset:{off}', wr=['U2'], rd=['@free0']))
q_(barrier(rd=['U2', 'DA'], wr=['@free1', '@free4', '@pubd', '@pubDA', 'L1', 'L4'], drain=['L1', 'L4'], st='b1'))
vDA = 10
q_(f'v_lshlrev_b32 v22, 10, v{vHb}', f'v_bfe_u32 v23, v{vL}, 2, 2', 'v_lshl_add_u32 v22, v23, 7, v22', f'v_and_b32 v23, 1, v{vL}', 'v_lshl_add_u32 v22, v23, 6, v22',
   f'v_bfe_u32 v23, v{vL}, 4, 1', 'v_lshl_add_u32 v22, v23, 4, v22', f'v_bfe_u32 v23, v{vL}, 1, 1', 'v_lshl_add_u32 v22, v23, 3, v22',
   f'v_bfe_u32 v23, v{vL}, 3, 1', 'v_lshl_add_u32 v22, v23, 5, v22', f'v_mov_b32 v51, v{vS4}',
   B([f's_lshl_b32 s{sT4}, s{sK}, 11', f'v_add_u32 v{vDA}, s{sT4}, v22']), f'v_xor_b32 v{vDA+3}, 32, v{vDA}')
for ct in range(2):
    for wdw in (1, 2): q_(f'v_add_u32 v{vDA+3*ct+wdw}, {65536*wdw:#x}, v{vDA+3*ct}')
q_(B([f's_and_b32 s{sT4}, s{sW}, 1', f's_lshl_b32 s{sCls}, s{sRho}, 1', f's_add_u32 s{sCls}, s{sCls}, s{sT4}', f's_lshl_b32 s{sT4}, s{sBlk}, 2', f's_add_u32 s{sCls}, s{sCls}, s{sT4}']),
   B([f's_mul_i32 s{sActR}, s{sCls}, {86*1024}', f's_lshl_b32 s{sT4}, s{sK}, 10', f's_add_u32 s{sActR}, s{sActR}, s{sT4}', f's_add_u32 s{sActR}, s{sActR}, {WS_ACT:#x}']))
NR = 32; vAct = 128
def actl(n): return [f's_add_u32 s{sR}, s{sActR}, {order[n]*2048:#x}', f'buffer_load_dwordx4 {vr(vAct+4*(n%NR))}, v{vL16}, {sr(SWS)}, s{sR} offen sc1']
def acti(n):
    d = (order[n] - order[n-1]) * 2048 if n else None
    so = f's_addk_i32 s{sAc}, {d:#x}' if d is not None and 0 < d < 32768 else f's_add_u32 s{sAc}, s{sActR}, {order[n]*2048:#x}'
    return B([so, f'buffer_load_dwordx4 {vr(vAct+4*(n%NR))}, v{vL16}, {sr(SWS)}, s{sAc} offen sc1'], lat=900)
q_(*merge_vm(epilogue(1, A1, A1 + 16), ddma(range(8, 24)), 7))
t2 = [(2, vr(A2, 16)), (0, vr(A2 + 16, 16))]
NA0 = OPT.get('na0', 12)
gemm_steps(list(range(32)), t2, '@pubd')
for n in range(NA0):
    x = acti(n)
    if n == 0: x.R.add('@ebok')
    q_(x)
aDB = 80; NDB = 20
db = [0]
def dfrag(n, ct):
    b = aDB + 4 * db[0]; db[0] = (db[0] + 1) % NDB
    va, off = lwin(dpos(n), (vDA + 3 * ct, vDA + 3 * ct + 1, vDA + 3 * ct + 2))
    tk = [f'@pubD{dslot(n)}', f'LD{dslot(n)}']
    return b, [I(f'ds_read_b64_tr_b16 {ar(b,2)}, v{va} offset:{off}', rd=tk), I(f'ds_read_b64_tr_b16 {ar(b+2,2)}, v{va} offset:{off+512}', rd=tk)]
pre = {}
for n in range(3):
    for ct in range(2):
        b, rds = dfrag(n, ct); pre[(n, ct)] = b; q_(*rds)
q_(barrier(rd=['DB'], wr=['@pubDB', '@freeC', 'L2', 'L0', 'LDA'], drain=['L2', 'L0', 'LDA'], st='b2'))
ep2 = epilogue(2, A2, A2 + 16)
if stampi('p2'): ep2[-1] = B([ep2[-1]] + stampi('p2'))
q_(*merge_vm(ep2, [acti(n) for n in range(NA0, NR)], 4))

vO = 96
vRs = 64
rsl = [[f'buffer_load_dwordx4 {vr(vRs)}, v52, {sr(SWS)}, s{sHcR} offen sc1'], [f'buffer_load_dwordx4 {vr(vRs+4)}, v52, {sr(SWS)}, s{sHcR} offen offset:512 sc1'],
       [f'buffer_load_dword v{vRs+8}, v51, {sr(SWS)}, s{sSsR} offen sc1']]
q_(f'v_lshlrev_b32 v52, 11, v{vHb}', f'v_lshl_add_u32 v52, v{vI}, 4, v52',
   B([f's_lshl_b32 s{sHcR}, s{sCls}, 15', f's_lshl_b32 s{sT4}, s{sCgp}, 12', f's_add_u32 s{sHcR}, s{sHcR}, s{sT4}', f's_lshl_b32 s{sT4}, s{sK}, 10', f's_add_u32 s{sHcR}, s{sHcR}, s{sT4}',
      f's_add_u32 s{sHcR}, s{sHcR}, {WS_HC:#x}']), B([f's_mul_i32 s{sSsR}, s{sCls}, {17*128}', f's_add_u32 s{sSsR}, s{sSsR}, {WS_SS:#x}']))
for x in rsl: q_(I(x[0], lat=900))
n = 0; bi = 0; ws_ = 24
while n < 43:
    ns = list(range(n, min(n + 4, 43))) if n else [0, 1, 2]
    q_(*validate(0, [vAct + 4 * (m % NR) for m in ns], [actl(m) for m in ns], f'a{n}', 8 if n < 31 else 0))
    if n == 19: q_(barrier(rd=['DC'], wr=['@pubDC', 'LDA'], drain=['LDA']))
    for m0_ in range(0, len(ns), 2):
        fr = []
        for m in ns[m0_:m0_ + 2]:
            for ct in range(2):
                if (m, ct) in pre: b = pre[(m, ct)]
                else:
                    b, rds = dfrag(m, ct); q_(*rds)
                fr.append((m, ct, b))
        wk[0] += 1
        q_(I('WAITFOR ' + ', '.join(ar(b) for _, _, b in fr), wr=[f'@w{wk[0]}']))
        for m, ct, b in fr:
            D = vr(vO + 16 * ct, 16)
            q_(I(mf32(D, ar(b), vr(vAct + 4 * (m % NR)), '0' if m == 0 else D), rd=[f'@w{wk[0]}']))
        for _ in range(2 if n else 3):
            if ws_ < 43:
                va, off = lwin(dpos(ws_), (vLW, vLW + 1, vLW + 2))
                q_(I(f'ds_write_b128 v{va}, {ar(aStg+4*(ws_-24))} offset:{off}', wr=['DC'], rd=['@freeC'])); ws_ += 1
    for m in ns:
        if m + NR < 43: q_(acti(m + NR))
    n += len(ns)
assert ws_ == 43
q_(*validate(0, [vRs, vRs + 4, vRs + 8], rsl, 'r', 16))
vRf = 80
for c in range(16):
    src = vRs + 4 * ((c >> 2) & 1) + 2 * (c >> 3) + ((c & 3) >> 1)
    q_(f'v_and_b32 v{vRf+c}, 0xffff0000, v{src}' if c & 1 else f'v_lshlrev_b32 v{vRf+c}, 16, v{src}', f'v_add_f32 v{vRf+c}, v{vRf+c}, v{vRs+8}')
RED = dpos(3)
q_(f'v_lshlrev_b32 v53, 16, v{vI}', f'v_lshl_add_u32 v53, v{vHb}, 6, v53',
   B([f's_lshl_b32 s{sT}, s{sCgp}, 7', f's_lshl_b32 s{sT4}, s{sK}, 5', f's_add_u32 s{sT}, s{sT}, s{sT4}', f's_lshl_b32 s{sT4}, s{sCls}, 10', f's_add_u32 s{sT}, s{sT}, s{sT4}']),
   B([f's_mul_i32 s{sT4}, s{sW}, 20480', f's_add_u32 s{sT4}, s{sT4}, {RED:#x}', f'v_add_u32 v54, s{sT4}, v{vL16}']),
   B([f's_xor_b32 s{sT4}, s{sW}, 2', f's_mul_i32 s{sT4}, s{sT4}, 20480', f's_add_u32 s{sT4}, s{sT4}, {RED:#x}', f'v_add_u32 v55, s{sT4}, v{vL16}']))
e(*schedule(Q, verbose=True))
stamp('p3m')
def red(own, other):
    o = [f'ds_write_b128 v54, {vr(vO+16*other+4*i)} offset:{1024*i}' for i in range(4)]
    o += [f'v_pk_add_f32 {vr(vRf+2*i,2)}, {vr(vRf+2*i,2)}, {vr(vO+16*own+2*i,2)}' for i in range(8)]
    return o
e(cond_block([f's_cmp_lg_u32 s{sK}, 0', 's_cbranch_scc1'], red(0, 1)))
e(cond_block([f's_cmp_eq_u32 s{sK}, 0', 's_cbranch_scc1'], red(1, 0)))
e('s_waitcnt lgkmcnt(0)', 's_barrier')
for i in range(4): e(f'ds_read_b128 {vr(32+4*i)}, v55 offset:{1024*i}')
stamp('red')
for h in range(2):
    for i in range(4 * h, 4 * h + 4): e(f'v_pk_add_f32 {vr(32+2*i,2)}, {vr(32+2*i,2)}, {vr(vRf+2*i,2)}')
    for i in range(4 * h, 4 * h + 4): e(f'v_cvt_pk_bf16_f32 v{56+i}, v{32+2*i}, v{33+2*i}')
    e(f'buffer_store_dwordx4 {vr(56+4*h)}, v53, {sr(SOUT)}, s{sT} offen offset:{16*h}')
if OPT['stamps']:
    e('s_waitcnt vmcnt(0)')
    stamp('end'); stamp('end2'); stamp('end3')
    e('s_waitcnt lgkmcnt(0)', f's_lshl_b32 s{sT}, s2, 2', f's_add_u32 s{sT}, s{sT}, s{sW}', f's_lshl_b32 s{sT}, s{sT}, 5', f's_add_u32 s{sT}, s{sT}, {WS_ST:#x}',
      's_mov_b64 exec, 1', 'v_mov_b32 v21, 0')
    for i in range(7): e(f'v_mov_b32 v20, s{sSt+2*i}', f'buffer_store_dword v20, v21, {sr(SWS)}, s{sT} offen offset:{4*i}')
    e('v_mov_b32 v20, s40', f'buffer_store_dword v20, v21, {sr(SWS)}, s{sT} offen offset:28')
if OPT.get('spin'):
    i = OPT['spin']
    e(f's_sub_u32 s{sT}, s{sSt+2*i}, s{sSt}', f's_lshl_b32 s{sT}, s{sT}, 2', f's_add_u32 s{sT}, s{sT}, s{sSt+12}', 'L_spin:', f's_memrealtime s[{sM}:{sM+1}]', 's_waitcnt lgkmcnt(0)',
      f's_sub_u32 s{sT2}, s{sT}, s{sM}', f's_cmp_gt_i32 s{sT2}, 0', 's_cbranch_scc1 L_spin')
e('L_exit:')

body = emit(P, OUT) + '\nL_end:'
hdr = open('cdna_kernels/' + NAME + '.s.ref').read().split('; Override launch')[0]
src = hdr + f'''; @launch grid=(256,1,1) block=(256,1,1) lds=163840
.amdgcn_target "amdgcn-amd-amdhsa--gfx950"
.text
.globl {NAME}_kernel
.p2align 8
.type {NAME}_kernel,@function
{NAME}_kernel:
{body}
.section .rodata,"a"
.p2align 6
.amdhsa_kernel {NAME}_kernel
  .amdhsa_next_free_vgpr 512
  .amdhsa_next_free_sgpr 102
  .amdhsa_accum_offset 256
  .amdhsa_group_segment_fixed_size 0
  .amdhsa_kernarg_size 96
  .amdhsa_user_sgpr_count 2
  .amdhsa_user_sgpr_kernarg_segment_ptr 1
  .amdhsa_system_sgpr_workgroup_id_x 1
.end_amdhsa_kernel
'''
open(sys.argv[1], 'w').write(src)
print('lines', body.count('\n'))
```

```python
import re

REG = re.compile(r'^-?(?:abs\()?([vas])(?:(\d+)|\[(\d+):(\d+)\])\)?$')
def regs_of(op):
    op = op.strip()
    m = REG.match(op)
    if m:
        k = m.group(1)
        if m.group(2) is not None: return [k + m.group(2)]
        return [k + str(i) for i in range(int(m.group(3)), int(m.group(4)) + 1)]
    if op == 'vcc': return ['vcc']
    if op in ('vcc_lo', 'vcc_hi'): return ['vcc']
    if op in ('exec', 'exec_lo', 'exec_hi'): return ['exec']
    if op == 'm0': return ['m0']
    return []

TRANS = ('v_exp_f32', 'v_log_f32', 'v_rcp_f32', 'v_rsq_f32', 'v_sqrt_f32', 'v_sin_f32', 'v_cos_f32')
SCC_W = ('s_add_', 's_addc', 's_sub_', 's_subb', 's_and_', 's_or_', 's_xor_', 's_lshl', 's_lshr', 's_ashr', 's_cmp', 's_min', 's_max',
         's_andn2', 's_not', 's_bfe', 's_addk', 's_bitcmp')
SCC_R = ('s_cselect', 's_addc', 's_subb', 's_cbranch_scc', 's_cmov')

class I:
    def __init__(s, text, rd=(), wr=(), cond=False, lat=None, partial=False, svc=64, nb=0, pri=1):
        s.text = text; s.cond = cond; s.lat = lat; s.svc = svc; s.nb = nb; s.pri = pri
        t = text.split(';')[0].strip()
        s.label = t.endswith(':')
        parts = t.split(None, 1)
        s.op = parts[0] if parts else ''
        ops = []
        if len(parts) > 1 and not s.label:
            body = parts[1]
            ops = [o.strip() for o in body.split(',')]
            last = ops[-1].split()
            s.mods = last[1:]
            ops[-1] = last[0]
        else: s.mods = []
        s.ops = ops
        R, W = [], []
        op = s.op
        cls = 'other'
        allr = lambda l: [r for o in l for r in regs_of(o)]
        if s.label: cls = 'label'
        elif op.startswith('v_mfma'):
            cls = 'mfma'; W = regs_of(ops[0]); R = allr(ops[1:]) + ['exec']
            s.passes = 8 if '32x32x16' in op else 4
            s.A = regs_of(ops[1]); s.B = regs_of(ops[2]); s.C = regs_of(ops[3])
        elif op.startswith('v_'):
            cls = 'trans' if op.replace('_e32', '').replace('_e64', '') in TRANS else 'valu'
            if op.startswith('v_swap') or op.startswith('v_permlane'):
                W = allr(ops[:2]); R = allr(ops[:2])
            elif op.startswith('v_add_co') or op.startswith('v_addc_co') or op.startswith('v_sub_co'):
                W = allr(ops[:2]); R = allr(ops[2:])
            else:
                W = regs_of(ops[0]); R = allr(ops[1:])
                if op.startswith('v_fmac') or op.startswith('v_dot2c') or '_dpp' in op or op.startswith('v_writelane') or partial:
                    R = R + W
            R = R + ['exec']
        elif op.startswith('ds_'):
            cls = 'ds'
            if op.startswith('ds_write') or op == 'ds_add_u32': R = allr(ops)
            else: W = regs_of(ops[0]); R = allr(ops[1:])
            if partial: R = R + W
            R = R + ['exec']
        elif op.startswith('buffer_') or op.startswith('global_'):
            cls = 'vmem'
            if 'lds' in s.mods: R = allr(ops) + ['m0']
            elif '_load' in op: W = regs_of(ops[0]); R = allr(ops[1:])
            elif '_atomic' in op and 'sc0' in s.mods:
                W = regs_of(ops[0]); R = allr(ops) if op.startswith('buffer_') else allr(ops[1:])
            else: R = allr(ops)
            if partial: R = R + W
            R = R + ['exec']
            s.store = ('_store' in op)
            s.wide = s.store and ('x3' in op or 'x4' in op)
            s.data = (regs_of(ops[0]) if op.startswith('buffer_') else regs_of(ops[1])) if s.store else []
        elif op.startswith('s_load') or op.startswith('s_memtime') or op.startswith('s_memrealtime'):
            cls = 'smem'; W = regs_of(ops[0]); R = allr(ops[1:])
        elif op == 'WAITFOR':
            cls = 'ctl'; R = allr(ops)
        elif op in ('s_waitcnt', 's_nop', 's_barrier', 's_sleep', 's_endpgm', 's_setprio', 's_set_gpr_idx_off') or op.startswith('s_branch'):
            cls = 'ctl'
        elif op.startswith('s_cbranch'):
            cls = 'ctl'
            if 'vcc' in op: R = ['vcc']
            if 'exec' in op: R = ['exec']
        elif op.startswith('s_cmp') or op.startswith('s_bitcmp'):
            cls = 'salu'; R = allr(ops)
        elif op.startswith('s_set_gpr_idx_on'):
            cls = 'salu'; R = allr(ops[:1]); W = ['m0']
        elif op.startswith('s_'):
            cls = 'salu'; W = regs_of(ops[0]); R = allr(ops[1:])
            if 'saveexec' in op: W = W + ['exec']; R = R + ['exec']
            if op.startswith('s_addk') or op.startswith('s_mulk') or op.startswith('s_cmov'): R = R + W
        if any(op.startswith(p) for p in SCC_W) or 'saveexec' in op: W = W + ['scc']
        if any(op.startswith(p) for p in SCC_R): R = R + ['scc']
        s.cls = cls
        s.R = set(R) | set(rd); s.W = set(W) | set(wr)
        if cls == 'mfma': s.cost = 8
        elif cls == 'trans' or op.startswith('v_swap') or op.startswith('v_permlane'): s.cost = 8
        elif cls == 'label': s.cost = 0
        elif op.startswith('s_cbranch'): s.cost = 9
        elif op.startswith('ds_write_b128'): s.cost = 20
        elif cls == 'vmem' and s.store: s.cost = 9
        else: s.cost = 4
    def __repr__(s): return s.text

class B:
    def __init__(s, ins, lat=None, nb=0):
        s.ins = [x if isinstance(x, I) else I(x) for x in ins]
        s.pri = min([x.pri for x in s.ins if x.cls == 'vmem' and not x.cond] or [1])
        s.nb = nb; s.svc = sum(x.svc for x in s.ins if x.cls == 'vmem' and not x.cond)
        s.R = set(); s.W = set()
        s.Rx = set(); anyw = set()
        for x in s.ins:
            s.Rx |= (x.R - anyw); anyw |= x.W
        sure = set()
        for x in s.ins:
            s.R |= (x.R - sure); s.W |= x.W
            if x.cond: s.R |= (x.W - sure)
            else: sure |= x.W
        s.cost = sum(0 if x.cond else x.cost for x in s.ins)
        s.cls = 'bundle'; s.lat = lat
        s.kinds = set(x.cls for x in s.ins if not x.cond)

def mk(x): return x if isinstance(x, (I, B)) else I(x)

import subprocess
_SZ = {}
def sizes(prog):
    ins = [y for x in prog for y in (x.ins if isinstance(x, B) else [x])]
    todo = sorted(set(y.text for y in ins if not y.label and y.op != 'WAITFOR' and 'branch' not in y.op and y.text not in _SZ))
    if todo:
        r = subprocess.run(['llvm-mc', '-triple=amdgcn-amd-amdhsa', '-mcpu=gfx950', '-show-encoding'], input='\n'.join(todo), capture_output=True, text=True)
        assert r.returncode == 0, r.stderr
        enc = [l for l in r.stdout.splitlines() if 'encoding:' in l]
        assert len(enc) == len(todo)
        for t, l in zip(todo, enc): _SZ[t] = l.split('encoding:')[1].count('0x')
    for y in ins: y.size = 0 if y.label else _SZ.get(y.text, 4)
SCRATCH = {'scc', 'm0'}
def schedule(prog, lookahead=3000, ds_lat=110, vm_lat=1200, verbose=False, vm_order=True, dump=None):
    prog = [mk(x) for x in prog]
    n = len(prog)
    def kinds(x): return x.kinds if isinstance(x, B) else {x.cls}
    preds = [[] for _ in range(n)]
    lastw = {}; readers = {}
    lastk = {}
    exposed = set()
    for x in prog: exposed |= (x.Rx if isinstance(x, B) else x.R)
    drop = {'exec'} | (SCRATCH - exposed)
    for i, x in enumerate(prog):
        R = x.R - drop; W = x.W - drop
        for r in R:
            if r in lastw:
                p = lastw[r]; y = prog[p]
                lat = y.cost
                ky = kinds(y)
                if r[0] == '@': lat = int(r.split('+')[1]) if '+' in r else 1
                elif iss(r) or r in ('scc', 'm0'): lat = y.cost
                elif y.lat is not None: lat = y.lat
                elif 'mfma' in ky and not isinstance(y, B):
                    if x.cls == 'mfma' and r in x.C and set(x.C) == y.W and r not in x.A and r not in x.B: lat = 4 * y.passes
                    else: lat = 4 * y.passes + 28
                elif 'vmem' in ky and r[0] in 'va': lat = vm_lat
                elif 'ds' in ky and r[0] in 'va': lat = ds_lat
                elif x.cls == 'mfma': lat = y.cost + 8
                elif 'trans' in ky: lat = y.cost + 4
                preds[i].append((p, lat))
        for w in W:
            if w in lastw:
                p = lastw[w]; y = prog[p]
                lat = 1
                if y.cls == 'mfma' and not (x.cls == 'mfma'): lat = 4 * y.passes + 28
                preds[i].append((p, lat))
            for p in readers.get(w, ()):
                if p != i:
                    y = prog[p]; lat = 1
                    if y.cls == 'mfma' and w in y.C and x.cls != 'mfma': lat = 4 * y.passes
                    preds[i].append((p, lat))
        for k in (('mfma', 'ds', 'vmem', 'smem') if vm_order else ('mfma', 'ds', 'smem')):
            if k in kinds(x):
                if k in lastk: preds[i].append((lastk[k], max(1, prog[lastk[k]].svc) if k == 'vmem' else 1))
                lastk[k] = i
        for r in R: readers.setdefault(r, []).append(i)
        for w in W:
            lastw[w] = i; readers[w] = []
    tail = [0] * n
    succs = [[] for _ in range(n)]
    for i in range(n):
        for p, lat in preds[i]: succs[p].append((i, lat))
    for i in range(n - 1, -1, -1):
        x = prog[i]
        own = 4 * x.passes if x.cls == 'mfma' else x.cost
        t = own
        for sidx, lat in succs[i]:
            l = lat
            if x.cls == 'mfma' and prog[sidx].cls == 'mfma': l = max(l, 4 * x.passes)
            if 'vmem' in kinds(x) and 'vmem' in kinds(prog[sidx]): l = max(l, x.svc)
            t = max(t, l + tail[sidx])
        tail[i] = t
    for i in range(n - 1, -1, -1):
        bo = getattr(prog[i], 'boost', 0)
        if bo: tail[i] += bo
    sizes(prog)
    done = [None] * n
    npred = [len(set(p for p, _ in preds[i])) for i in range(n)]
    ready_t = [x.nb for x in prog]
    avail = set(i for i in range(n) if npred[i] == 0)
    out = []; first = 0
    st = dict(I=0, V=0, M=0, F=0.0, P=0, X=0)
    def sim(x, st, rdy):
        st = dict(st); start = None
        for y in (x.ins if isinstance(x, B) else [x]):
            if y.cond or y.label: continue
            t = max(st['I'], rdy, st['F'] - 24)
            if y.cls in ('valu', 'trans', 'mfma'): t = max(t, st['V'])
            if y.cls == 'mfma': t = max(t, st['P'])
            if y.cls in ('ds', 'vmem'): t = max(t, st['M'])
            if y.cls == 'vmem': t = max(t, st['X']); st['X'] = t + y.svc
            if start is None: start = t
            st['F'] = max(st['F'], t - 24) + y.size / 1.55
            if y.cls == 'mfma': st['I'] = t + 4; st['V'] = t + 8; st['M'] = t + 4; st['P'] = t + 4 * y.passes
            elif y.cls in ('valu', 'trans'): st['I'] = t + y.cost; st['V'] = t + y.cost; st['M'] = t + y.cost + 4
            elif y.cls in ('ds', 'vmem'): st['I'] = t + y.cost; st['V'] = t + y.cost + 4; st['M'] = t + y.cost
            else: st['I'] = t + y.cost; st['V'] = max(st['V'], t + y.cost); st['M'] = max(st['M'], t + y.cost)
        return (start if start is not None else st['I']), st
    def cat(x):
        k = kinds(x)
        if 'ds' in k or 'vmem' in k: return 'm'
        if 'valu' in k or 'trans' in k: return 'v'
        return 's'
    cats = [('M' if x.cls == 'mfma' else cat(x)) for x in prog]
    isvm = ['vmem' in kinds(x) for x in prog]
    while len(out) < n:
        while first < n and done[first] is not None: first += 1
        cands = [i for i in avail if i < first + lookahead]
        now = st['I']
        vm = [i for i in cands if isvm[i]]
        if vm:
            horizon = max(now, st['X'], min(ready_t[i] for i in vm)) + 24
            best = min((i for i in vm if ready_t[i] <= horizon), key=lambda i: (prog[i].pri, -tail[i], i))
            cands = [i for i in cands if not isvm[i] or i == best]
        m = [i for i in cands if cats[i] == 'M']
        mt = max(ready_t[m[0]], st['P']) if m else None
        key = lambda i: (0 if 'vmem' in kinds(prog[i]) else 1, -tail[i], i)
        bound = mt if mt is not None else None
        def fits(i):
            if bound is None: return True
            return sim(prog[i], st, ready_t[i])[1]['V'] <= bound + 2 or tail[i] > tail[m[0]]
        rt = lambda i: max(ready_t[i], st['X'] - prog[i].cost + 4) if isvm[i] else ready_t[i]
        rdy = lambda c, t: sorted([i for i in cands if cats[i] == c and rt(i) <= t], key=key)
        pick = None
        window = st['M'] <= st['I']
        bubble = st['V'] > st['I']
        if window:
            c = [i for i in rdy('m', now) if fits(i) or (isvm[i] and st['P'] > now)]
            if c: pick = c[0]
        if pick is None and bubble:
            c = [i for i in rdy('s', now) if fits(i)]
            if c: pick = c[0]
        if pick is None and m and mt <= max(st['V'], now) + 2: pick = m[0]
        if pick is None:
            tv = max(now, st['V'])
            c = rdy('v', tv) + rdy('s', now)
            cm = rdy('m', st['M'])
            if cm and (not c or not m or -tail[cm[0]] < min(-tail[j] for j in c) and tail[cm[0]] > tail[m[0]] + 32): c = c + cm[:1]
            c.sort(key=lambda i: (-tail[i], i))
            c2 = [i for i in c if fits(i)]
            if c2: pick = c2[0]
            elif m: pick = m[0]
            else: pick = min(cands, key=lambda i: (rt(i), -tail[i], i))
            if m and pick == m[0] and mt > tv + 8:
                o = [i for i in cands if cats[i] != 'M' and rt(i) < mt and fits(i)]
                if o: pick = min(o, key=lambda i: (rt(i), -tail[i], i))
        x = prog[pick]
        s0, st = sim(x, st, ready_t[pick])
        done[pick] = s0
        out.append(x); avail.discard(pick)
        for sidx in set(q for q, _ in succs[pick]):
            npred[sidx] -= 1
        for sidx, lat in succs[pick]:
            ready_t[sidx] = max(ready_t[sidx], s0 + lat)
            if npred[sidx] == 0 and done[sidx] is None: avail.add(sidx)
    t = int(st['I'])
    done = [int(d) for d in done]
    if dump:
        for i in sorted(range(n), key=lambda i: done[i]):
            x = prog[i]
            ins = x.ins if isinstance(x, B) else [x]
            v = [y for y in ins if (y.cls == 'vmem' and not y.cond) or y.op == 's_barrier']
            if v: dump.write(f'{done[i]:6d} {v[0].text}\n')
    if verbose:
        print(f'   scheduled {n} items, est {t} cycles')
        ms = sorted((done[i], i) for i in range(n) if prog[i].cls == 'mfma')
        if ms:
            gaps = [(ms[k+1][0] - ms[k][0], k, ms[k][0]) for k in range(len(ms) - 1)]
            print('     first mfma', ms[0][0], 'last', ms[-1][0], 'big gaps (len, idx, t):', sorted([g for g in gaps if g[0] > 60], key=lambda g: g[1])[:30])
        print('     barriers at', [done[i] for i in range(n) if any(y.op == 's_barrier' for y in (prog[i].ins if isinstance(prog[i], B) else [prog[i]]))])
    return out

def flatten(prog):
    o = []
    for x in prog:
        x = mk(x)
        if isinstance(x, B): o += x.ins
        else: o.append(x)
    return o

WAIT = re.compile(r'(vmcnt|lgkmcnt)\((\d+)\)')
def add_waits(prog):
    out = []
    vm = []
    lg = []
    def need(pend, x):
        use = set(r for r in x.R - {'exec', 'scc', 'm0'} if r[0] != '@') | set(r for r in x.W if isv(r) or iss(r))
        k = -1
        for idx, y in enumerate(pend):
            if y.W & use: k = idx
            elif hasattr(x, 'drain') and (y.R & x.drain): k = idx
        if k < 0: return None
        return k
    for x in prog:
        if x.op == 's_waitcnt':
            for name, val in WAIT.findall(x.text):
                val = int(val)
                pend = vm if name == 'vmcnt' else lg
                if x.cond:
                    if val == 0: pend[:] = [y for y in pend if y.cond != x.cond]
                    continue
                keep = []; c = 0
                for y in reversed(pend):
                    if c >= val: break
                    keep.append(y)
                    if not y.cond: c += 1
                keep.reverse()
                if name == 'lgkmcnt' and val > 0 and any(y.cls == 'smem' for y in pend): keep = pend[:]
                pend[:] = keep
            out.append(x); continue
        w = []
        k = need(vm, x)
        if k is not None:
            cnt = sum(1 for y in vm[k + 1:] if not y.cond)
            w.append(f'vmcnt({min(cnt, 63)})')
            if not x.cond: vm[:] = vm[k + 1:]
        k = need(lg, x)
        if k is not None:
            if any(y.cls == 'smem' for y in lg): cnt = 0; k = len(lg) - 1
            else: cnt = sum(1 for y in lg[k + 1:] if not y.cond)
            w.append(f'lgkmcnt({min(cnt, 15)})')
            if not x.cond: lg[:] = lg[k + 1:]
        if w: out.append(I('s_waitcnt ' + ' '.join(w), cond=x.cond))
        if x.op == 'WAITFOR': continue
        out.append(x)
        if x.cls == 'vmem': vm.append(x)
        elif x.cls in ('ds', 'smem'): lg.append(x)
    return out

def isv(r): return r[0] in 'va' and r[1:].isdigit()
def iss(r): return (r[0] == 's' and r[1:].isdigit()) or r == 'vcc'
def add_nops(prog):
    out = []
    def states(y):
        if y.label: return 0
        if y.op == 's_nop': return int(y.ops[0], 0) + 1
        return 1
    for x in prog:
        req = 0
        if not x.label:
            d = 0
            valu_x = x.cls in ('valu', 'trans')
            for y in reversed(out):
                if d >= 20: break
                n = 0
                valu_y = y.cls in ('valu', 'trans')
                yWv = set(r for r in y.W if isv(r)); yWs = set(r for r in y.W if iss(r))
                if valu_y:
                    if x.cls == 'mfma' and (yWv & x.R): n = max(n, 2)
                    if x.cls == 'vmem' and (yWs & x.R): n = max(n, 5)
                    if valu_x and '_dpp' in x.op and (yWv & x.R): n = max(n, 2)
                    if valu_x and (yWs & x.R): n = max(n, 4 if ('readlane' in x.op or 'writelane' in x.op) else 2)
                    if valu_x and ('readfirstlane' in x.op or 'readlane' in x.op) and (yWv & x.R): n = max(n, 1)
                    if y.cls == 'trans' and x.cls == 'valu' and (yWv & x.R): n = max(n, 1)
                    if x.op.startswith('v_permlane') and (yWv & x.R): n = max(n, 2)
                    if 'exec' in y.W and x.cls in ('mfma', 'valu', 'trans'): n = max(n, 5)
                    if 'vcc' in y.W and x.op.startswith('s_cbranch_vcc'): n = max(n, 1)
                    if x.cls == 'salu' and (yWs & x.R): n = max(n, 1)
                if y.cls == 'mfma':
                    P = y.passes
                    if x.cls == 'mfma':
                        if yWv & (set(x.A) | set(x.B)): n = max(n, P + 4)
                        if yWv & set(x.C):
                            if not (set(x.C) == yWv and x.passes == P): n = max(n, P + 2)
                        elif yWv & x.W: n = max(n, P + 2)
                    elif x.cls in ('valu', 'trans', 'vmem', 'ds'):
                        if yWv & (x.R | x.W): n = max(n, P + 4)
                        if valu_x and (set(y.C) & x.W): n = max(n, P - 1)
                if y.cls == 'vmem' and y.wide and (set(y.data) & x.W): n = max(n, 2)
                if y.cls == 'salu' and 'm0' in y.W and 'm0' in x.R and x.cls == 'vmem': n = max(n, 1)
                if y.cls == 'salu' and 'exec' in y.W and valu_x and '_dpp' in x.op: n = max(n, 1)
                req = max(req, n - d)
                if (not y.cond) or (x.cond and y.cond == x.cond): d += states(y)
        while req > 0:
            k = min(req, 16)
            out.append(I(f's_nop {k-1}', cond=x.cond)); req -= k
        out.append(x)
    return out

def emit(prog, outline):
    p = add_nops(add_waits(flatten(prog)))
    main = []; tail = {}
    for x in p:
        if x.cond in outline: tail.setdefault(x.cond, []).append(x)
        else: main.append(x)
    fmt = lambda l: [(x.text if x.label else '    ' + x.text) for x in l]
    o = fmt(main) + ['    s_endpgm']
    for c, l in tail.items():
        o += [outline[c][0] + ':'] + fmt(l) + ['    s_branch ' + outline[c][1]]
    return '\n'.join(o)
```

```python
import sys, struct
from asmlib import *

NAME = 'sequential_preLN__spectral_fnet__swiglu_ffn__prompt'
OPT = dict(stamps=0, sset=0, pre=40, thr=8, lv=1300, dsl=200, wchk=4, dg=4, bo=4, wdq=-1, xper=60, paq=2, dh=0)
GO = [1, 2, 3, 5, 6, 7, 0, 4]
for a in sys.argv[2:]:
    k, v = a.split('='); OPT[k] = int(v)

def fh(x): return '0x%08x' % struct.unpack('<I', struct.pack('<f', x))[0]
def vr(b, n=4): return f'v[{b}:{b+n-1}]'
def sr(b, n=4): return f's[{b}:{b+n-1}]'

WS_G = 0; WS_HC = 0x400000; WS_ACT = 0x600000; WS_FL = 0xB60000; WS_SS = 0xB90000; WS_ST = 0xC00000; WS_SIZE = 0x1000000
FL_CNT = WS_FL; FL_REL = WS_FL + 2048; FL_A = WS_FL + 4096
ROWW = 2752
U = 4096
LDS_SY = 39 * U; LDS_MU = LDS_SY + 256; LDS_EX = 37 * U; LDS_XT = 35 * U; LDS_M = 29 * U
SPIN = 100000

SX, SWG, SWU, SWD, SOUT, SWS, SDBG = 8, 12, 16, 20, 24, 28, 32
(sW, sChi, sCg, sS2, sCb, sPhi, sRho, sCls, sTT, sT0, sXb, sT, sT2, sT3, sT4, sCnt, sActW, sGs, sHcW, sSsW,
 sSrc, sSrc2, sWoff, sLW, sActR, sCgp, sK, sDo, sWc, sDc, sAc, sC3, sC2, sWst, sHcR, sR, sPf, sPd) = range(48, 86)
sM = 86; sSt = 88
sAct3 = 3; sSsR = 6; sGq = 7; sFlW = 4; sFlR = 5
SCRATCH.update(f's{r}' for r in (sM, sM+1, sR, sCnt, sT2, sT3, sT4)); SCRATCH.add('vcc')

P = []
def e(*xs):
    for x in xs: P.append(mk(x))
SSETS = [['start','A','p1','g','h','p2','end'], ['start','A','p1a','p1','g','gv','h'], ['h','hl','b0','b1','b2','p2','p3m'], ['b2','p2','p3m','red','end','end2','end3']]
HSET = ['start','hb0','hb1','hw4','hw7','hd1','hend']
def stampi(name, **kw):
    st = HSET if name[0] == 'h' and len(name) > 2 else SSETS[OPT['sset']]
    if not OPT['stamps'] or name not in st: return []
    i = st.index(name)
    return [I(f'{"s_memrealtime" if OPT["stamps"]==1 else "s_memtime"} s[{sSt+2*i}:{sSt+2*i+1}]', **kw)]
def stamp(name): e(*stampi(name))
_c = [0]; OUT = {}
def _body(body):
    ins = []
    for b in body:
        if isinstance(b, I): b.cond = _c[0]; ins.append(b)
        else: ins.append(I(b, cond=_c[0]))
    return ins
def cond_block(test, body, lat=None):
    _c[0] += 1; L = f'L_c{_c[0]}'
    return B([mk(t) for t in test[:-1]] + [I(f'{test[-1]} {L}')] + _body(body) + [I(L + ':')], lat=lat)
def rare_block(test, body, lat=None, rd=(), wr=()):
    _c[0] += 1; OUT[_c[0]] = (f'L_o{_c[0]}', f'L_b{_c[0]}')
    return B([mk(t) for t in test[:-1]] + [I(f'{test[-1]} L_o{_c[0]}', rd=rd, wr=wr)] + _body(body) + [I(f'L_b{_c[0]}:')], lat=lat)
def srd(d, p, size):
    return [f's_mov_b32 s{d}, s{p}', f's_and_b32 s{d+1}, s{p+1}, 0xffff', f's_mov_b32 s{d+2}, {size:#x}', f's_mov_b32 s{d+3}, 0x20000']
def mf32(d, a, b, c): return f'v_mfma_f32_32x32x16_bf16 {d}, {a}, {b}, {c}'
def mf16(d, a, b, c): return f'v_mfma_f32_16x16x32_bf16 {d}, {a}, {b}, {c}'
def barrier(rd=(), wr=(), st=None):
    x = I('s_barrier', rd=rd, wr=wr)
    if st and stampi(st): return B([x] + stampi(st))
    return x
def bundle_scc(seq):
    seq = [mk(x) for x in seq]
    out = []; i = 0
    while i < len(seq):
        x = seq[i]
        if not isinstance(x, B) and 'scc' in x.W:
            j = i + 1; last = i
            while j < len(seq):
                if 'scc' in (seq[j].Rx if isinstance(seq[j], B) else seq[j].R): last = j
                if 'scc' in seq[j].W: break
                j += 1
            if last > i:
                out.append(B(flatten(seq[i:last + 1]))); i = last + 1; continue
        out.append(x); i += 1
    return out
_l = [0]
def spin(load, wait, test, bit=None, sleep=0):
    _l[0] += 1; n = _l[0]
    cnt = [f's_add_u32 s40, s40, {1 << bit:#x}'] if (OPT['stamps'] and bit is not None) else []
    return [f's_mov_b32 s{sCnt}, 0', f'L_s{n}:'] + cnt + ([f's_sleep {sleep}'] if sleep else []) + load + [wait] + test + \
           [f's_add_u32 s{sCnt}, s{sCnt}, 1', f's_cmp_gt_u32 s{sCnt}, {SPIN}', f's_cbranch_scc1 L_x{n}', f's_cbranch_vccnz L_s{n}', f'L_x{n}:']
def maxchain(dst, regs):
    o = []; regs = list(regs)
    o.append(f'v_max3_u32 v{dst}, v{regs[0]}, v{regs[1]}, v{regs[2]}'); regs = regs[3:]
    while len(regs) >= 2:
        o.append(f'v_max3_u32 v{dst}, v{dst}, v{regs[0]}, v{regs[1]}'); regs = regs[2:]
    if regs: o.append(f'v_max_u32 v{dst}, v{dst}, v{regs[0]}')
    return o
def validate(dst, regs, loads, bit):
    t = f'v_cmp_eq_u32 vcc, -1, v{dst}'
    return maxchain(dst, regs) + [rare_block([t, 's_cbranch_vccnz'], spin(loads, 's_waitcnt vmcnt(0)', maxchain(dst, regs) + [t], bit, OPT['bo']), lat=16)]
def lwin(pos, regs): return regs[pos >> 16], pos & 0xffff

vL, vL16, vWA0, vWA1, vWA2, vSy, vGs, vSw = 1, 2, 3, 4, 5, 6, 7, 8
vS4, vSo, vXo, vJ, vKq, vI, vHb = 14, 16, 17, 18, 19, 20, 21
T0 = [(43 * f + 8) >> 4 for f in range(17)]
NT = [T0[f + 1] - T0[f] for f in range(16)]
order = [T0[f] for f in range(16)] + [T0[f] + 1 for f in range(16)] + [T0[f] + 2 for f in range(16) if NT[f] == 3]
assert sorted(order) == list(range(43))
LOC = {(c, ti): 5 * c + ti for c in range(8) for ti in range(5)}
PASS = [(0, 3), (1, 4), (2, 5)]
fill = [('w', 7, 4)] + [('w', c, 5) for c in range(8)] + [('d', n) for n in range(43)]
DU = {}; PLAN = []; fi = 0
for q in range(12):
    p, cs = q // 4, (2 * (q % 4), 2 * (q % 4) + 1)
    units = [LOC[(c, ti)] for c in cs for ti in PASS[p]]
    if q == 11: units += [DU[n] for n in range(4)]
    step = []
    for u_ in units:
        it = fill[fi]; fi += 1
        if it[0] == 'w': LOC[(it[1], it[2])] = u_
        else: DU[it[1]] = u_
        step.append((it, u_))
    PLAN.append(step)
assert fi == len(fill)
DQ = {it[1]: q for q, st_ in enumerate(PLAN) for it, _ in st_ if it[0] == 'd'}
def wunit(c, ti): return LOC[(c, ti)]
def dpos(n): return U * DU[n]

e('s_cmp_ge_u32 s2, 0x100', 's_cbranch_scc1 L_exit')
stamp('start')
e('s_load_dwordx2 s[4:5], s[0:1], 0', 's_load_dwordx8 s[36:43], s[0:1], 48', 's_load_dwordx4 s[44:47], s[0:1], 80')
e('v_lshrrev_b32 v17, 6, v0', f'v_and_b32 v{vL}, 63, v0', f'v_readfirstlane_b32 s{sW}, v17', f'v_and_b32 v{vJ}, 15, v0', f'v_lshrrev_b32 v{vKq}, 4, v{vL}')
e(f's_and_b32 s{sChi}, s2, 7', f's_lshr_b32 s{sCg}, s2, 5', f's_bfe_u32 s{sT}, s2, 0x20003', f's_lshl_b32 s{sS2}, s{sChi}, 2', f's_add_u32 s{sS2}, s{sS2}, s{sT}')
e('s_getpc_b64 s[6:7]', 'L_pc:', f's_lshr_b32 s{sT2}, s2, 3', f's_lshl_b32 s{sT2}, s{sT2}, 10', f'v_lshl_add_u32 v23, v17, 7, s{sT2}', 'v_min_u32 v23, L_end-L_pc-4, v23',
  's_mov_b64 exec, 1', 'global_load_dword v10, v23, s[6:7]', 's_mov_b64 exec, -1')
e(f's_cmp_ge_u32 s{sW}, 4', 's_cbranch_scc1 L_helper')
def common_idx():
    return [f'v_and_b32 v{vI}, 31, v{vL}', f'v_lshrrev_b32 v{vHb}, 5, v{vL}', f'v_lshlrev_b32 v{vL16}, 4, v{vL}', f'v_mov_b32 v{vSy}, {LDS_SY:#x}',
      f's_and_b32 s{sPhi}, s{sChi}, 3', f's_lshl_b32 s{sPhi}, s{sPhi}, 2', f's_lshr_b32 s{sT}, s2, 6', f's_add_u32 s{sPhi}, s{sPhi}, s{sT}',
      f's_bfe_u32 s{sT}, s2, 0x10005', f's_lshl_b32 s{sT}, s{sT}, 5', f's_add_u32 s{sCls}, s{sS2}, s{sT}', f's_and_b32 s{sCb}, s{sCls}, 0x33',
      f's_and_b32 s{sTT}, s{sPhi}, 3', f's_lshl_b32 s{sTT}, s{sTT}, 2', f's_add_u32 s{sTT}, s{sTT}, s{sW}', f's_and_b32 s{sCgp}, s{sPhi}, 7',
      f's_mul_i32 s{sT0}, s{sPhi}, 43', f's_add_u32 s{sT0}, s{sT0}, 8', f's_lshr_b32 s{sT0}, s{sT0}, 4',
      f's_mul_i32 s{sSsW}, s{sCls}, 17', f's_add_u32 s{sSsW}, s{sSsW}, s{sTT}', f's_lshl_b32 s{sSsW}, s{sSsW}, 7', f's_add_u32 s{sSsW}, s{sSsW}, {WS_SS:#x}',
      f'v_lshlrev_b32 v{vS4}, 2, v{vI}', f's_cmp_eq_u32 s{sTT}, 0', f's_cselect_b32 s{sT}, 0, {WS_SIZE:#x}', f'v_add_u32 v{vSo}, s{sT}, v{vS4}', f'v_add_u32 v9, 0x80, v{vS4}',
      B([f'v_cmp_eq_u32 vcc, 0, v{vHb}', f'v_cndmask_b32 v{vSo}, v{vSo}, v9, vcc']),
      f's_lshl_b32 s{sT3}, s{sW}, 2', f's_add_u32 s{sT3}, s{sT3}, s{sCb}',
      f's_lshl_b32 s{sFlR}, s{sCb}, 11', f's_add_u32 s{sFlR}, s{sFlR}, {FL_A:#x}', f's_lshl_b32 s{sFlW}, s{sPhi}, 7', f's_add_u32 s{sFlW}, s{sFlW}, s{sFlR}',
      f's_lshl_b32 s{sGs}, s{sW}, 19', f's_lshl_b32 s{sT}, s{sS2}, 10', f's_add_u32 s{sGs}, s{sGs}, s{sT}', f's_lshl_b32 s{sT}, s{sCg}, 7', f's_add_u32 s{sGs}, s{sGs}, s{sT}',
      f's_lshl_b32 s{sT}, s{sCls}, 4', f's_add_u32 s{sT}, s{sT}, s{sTT}', f's_lshl_b32 s{sHcW}, s{sT}, 11', f's_add_u32 s{sHcW}, s{sHcW}, {WS_HC:#x}',
      f's_mul_i32 s{sActW}, s{sT3}, {86*1024}', f's_lshl_b32 s{sT}, s{sT0}, 11', f's_add_u32 s{sActW}, s{sActW}, s{sT}', f's_add_u32 s{sActW}, s{sActW}, {WS_ACT:#x}',
      f's_mul_i32 s{sT}, s{sPhi}, 43', f's_add_u32 s{sT}, s{sT}, 51', f's_lshr_b32 s{sT}, s{sT}, 4', f's_sub_u32 s{sT}, s{sT}, s{sT0}',
      f's_add_u32 s{sAct3}, s{sActW}, 0x1000', f's_cmp_eq_u32 s{sT}, 3', f's_cselect_b32 s{sAct3}, s{sAct3}, {WS_SIZE:#x}']

e('s_setprio 2')
vX = 192; vB = 128; vOne = 120; vDel = 124
e(f'v_bfe_u32 v22, v{vL}, 2, 2', f'v_lshlrev_b32 v{vXo}, 15, v22', f'v_lshl_add_u32 v{vXo}, v{vKq}, 6, v{vXo}', f'v_and_b32 v22, 3, v{vL}', f'v_lshl_add_u32 v{vXo}, v22, 4, v{vXo}')
e(f's_lshl_b32 s{sXb}, s{sW}, 19', f's_lshl_b32 s{sT}, s{sS2}, 10', f's_add_u32 s{sXb}, s{sXb}, s{sT}')
e(f'v_lshrrev_b32 v15, 3, v{vL}', 'v_lshlrev_b32 v15, 15, v15', f'v_and_b32 v22, 7, v{vL}', 'v_lshl_add_u32 v15, v22, 7, v15',
  f's_lshl_b32 s{sT2}, s{sCg}, 16', f's_add_u32 s{sT2}, s{sT2}, s{sXb}')
gen = []
def g_(*xs):
    for x in xs: gen.append(mk(x))
vCr = 22; vDg = 28
vMsk, vEx, vEf, vBa = 61, 13, 64, 65
T = 32
g_(f's_lshl_b32 s{sT4}, s{sCg}, 4', f'v_add_u32 v{T}, s{sT4}, v{vJ}', f'v_cmp_eq_u32 s[{sM}:{sM+1}], 0, v{T}', f'v_mov_b32 v{T+1}, 0x80',
   f'v_cndmask_b32 v{T}, v{T}, v{T+1}, s[{sM}:{sM+1}]', f'v_mov_b32 v{vMsk}, {fh(16.0)}', f'v_cndmask_b32 v{vMsk}, 0, v{vMsk}, s[{sM}:{sM+1}]',
   f'v_cvt_f32_u32 v{T}, v{T}', f'v_mul_f32 v{vEf}, {fh(-1/512)}, v{T}', f'v_cvt_f32_u32 v{T+1}, v{vKq}', f'v_mul_f32 v{vBa}, {fh(32.0)}, v{T+1}', f'v_mul_f32 v{vBa}, v{vBa}, v{vEf}')
vKp, vFr, vFi, vSg = 66, 67, 68, 71
g_(f'v_cndmask_b32 v{vKp}, -1, 0, s[{sM}:{sM+1}]', f'v_mov_b32 v{T+2}, 0x80000000', f'v_mov_b32 v{T+3}, 0xbf803f80', f'v_cndmask_b32 v{vFr}, v{T+2}, v{T+3}, s[{sM}:{sM+1}]',
   f'v_and_b32 v{vFi}, 0x8000, v{vKp}', f'v_and_b32 v{T}, 1, v{vJ}', f'v_mul_u32_u24 v{vSg}, 0x8000, v{T}', f'v_lshl_or_b32 v{vSg}, v{vSg}, 16, v{vSg}')
rot = [0]
def tmp():
    b = T + 4 + rot[0] * 6; rot[0] = (rot[0] + 1) % 4; return b
for ks in range(2):
    for m in range(4):
        t = tmp(); d = vB + 4 * ks + m
        for h in range(2):
            g_(f'v_fmamk_f32 v{t+h}, v{vEf}, {fh(float(128*ks+2*m+h))}, v{vBa}', f'v_cos_f32 v{t+2+h}, v{t+h}', f'v_sin_f32 v{t+4+h}, v{t+h}')
        g_(f'v_cvt_pk_bf16_f32 v{d}, v{t+2}, v{t+3}', f'v_cvt_pk_bf16_f32 v{d+16}, v{t+4}, v{t+5}',
           f'v_bitop3_b32 v{d+32}, v{d}, v{vKp}, v{vFr} bitop3:0x6a', f'v_bitop3_b32 v{d+48}, v{d+16}, v{vKp}, v{vFi} bitop3:0x6a')
        for i in range(4): g_(f'v_xor_b32 v{d+16*i+8}, v{vSg}, v{d+16*i}')
g_(B([f'v_cmp_eq_u32 vcc, 0, v{vKq}', f'v_mov_b32 v{T+1}, 0x3f80', f'v_cndmask_b32 v{vDel}, 0, v{T+1}, vcc']))
for m in range(4): g_(f'v_mov_b32 v{vOne+m}, 0x3f803f80' if m == 0 else f'v_mov_b32 v{vOne+m}, v{vOne}')
for m in range(1, 4): g_(f'v_mov_b32 v{vDel+m}, 0')
for p in (1, 2, 3):
    t = tmp()
    g_(f'v_mul_f32 v{t}, {fh(8.0*p)}, v{vEf}', f'v_cos_f32 v{vCr+p-1}, v{t}', f'v_sin_f32 v{vCr+2+p}, v{t}')
g_(f'v_lshlrev_b32 v{T}, 2, v{vKq}', f'v_sub_u32 v{T}, v{vJ}, v{T}')
for c in range(4): g_(f'v_cmp_eq_u32 vcc, {c}, v{T}', f'v_cndmask_b32 v{vDg+c}, 0, 1.0, vcc')
gen = schedule(gen, lookahead=40)
e(*gen[:OPT['pre']])
e('s_waitcnt lgkmcnt(0)')
e(*srd(SX, 4, 2048 * 1024))
e(B(['s_mov_b64 exec, 0xffff', f'buffer_load_dword v11, v15, {sr(SX)}, s{sT2} offen', 's_mov_b64 exec, -1']))
xl = []
for g in range(4):
    for ks in range(4):
        pre = [f's_add_u32 s{sT2}, s{sXb}, {g*131072:#x}'] if ks == 0 else []
        xl.append(B(pre + [f'buffer_load_dwordx4 {vr(vX+16*g+4*ks)}, v{vXo}, {sr(SX)}, s{sT2} offen offset:{256*ks}'], lat=500))
setup = srd(SWS, 46, WS_SIZE) + srd(SOUT, 42, 2048 * 1024) + srd(SDBG, 44, 256) + common_idx()
setup += [f's_lshr_b32 s{sRho}, s{sPhi}, 3', f's_lshl_b32 s{sHcR}, s{sT3}, 15', f's_add_u32 s{sHcR}, s{sHcR}, {WS_HC:#x}',
   f's_mul_i32 s{sSsR}, s{sT3}, {17*128}', f's_add_u32 s{sSsR}, s{sSsR}, {WS_SS+128:#x}',
   f'v_lshlrev_b32 v{vGs}, 15, v{vJ}', f'v_lshl_add_u32 v{vGs}, v{vKq}, 4, v{vGs}',
   f's_lshr_b32 s{sK}, s{sW}, 1', f's_lshl_b32 s{sT}, s{sK}, 12', f's_and_b32 s{sT3}, s{sW}, 1', f's_lshl_b32 s{sT3}, s{sT3}, 3', f's_add_u32 s{sT}, s{sT}, s{sT3}',
   f's_add_u32 s{sT}, s{sT}, {LDS_EX:#x}', f'v_add_u32 v{vEx}, s{sT}, v{vL16}', f'v_add_u32 v{vWA2}, {LDS_EX:#x}, v{vL16}',
   f's_mul_i32 s{sT}, s{sW}, 6144', f's_add_u32 s{sT}, s{sT}, {LDS_M:#x}', f'v_add_u32 v{vWA1}, s{sT}, v{vL16}',
   f's_lshl_b32 s{sT}, s{sW}, 2', f's_add_u32 s{sT}, s{sT}, {LDS_SY+16:#x}', f'v_mov_b32 v{vSw}, s{sT}',
   f'v_lshlrev_b32 v12, 11, v{vKq}', f'v_bfe_u32 v9, v{vL}, 3, 1', 'v_lshl_add_u32 v12, v9, 6, v12', f'v_and_b32 v9, 3, v{vL}', 'v_lshl_add_u32 v12, v9, 4, v12',
   f's_lshl_b32 s{sT}, s{sW}, 9', f's_add_u32 s{sT}, s{sT}, {LDS_XT:#x}', f'v_add_u32 v12, s{sT}, v12',
   f's_lshl_b32 s{sT}, s{sW}, 6', f's_add_u32 s{sT}, s{sT}, {LDS_MU:#x}', f'v_lshl_add_u32 v62, v{vKq}, 2, s{sT}']
def weave(loads, work, first, per):
    out = list(loads[:first]); li = first; acc = 0
    for x in work:
        out.append(x); acc += x.cost
        if acc >= per and li < len(loads):
            out.append(loads[li]); li += 1; acc = 0
    return out + list(loads[li:])
work = bundle_scc(gen[OPT['pre']:] + setup)
XD = OPT.get('xd', 0)
e(*work[:XD]); e(*weave(xl + [B(['s_barrier'])], work[XD:], 2, OPT['xper']))
stamp('A')
if OPT['stamps']: e('s_mov_b32 s40, 0')

Q = []
def q_(*xs):
    for x in xs: Q.append(mk(x))
vAcc = 64; vU = 32; vMu = 48
q_(f'v_mov_b32 v60, {fh(1e-5)}')
for g in range(4):
    ac = vAcc + 28 * (g & 1)
    for ks in range(4):
        xa = vr(vX + 16 * g + 4 * ks)
        q_(I(f'WAITFOR {xa}', wr=[f'@wx{g}{ks}'], nb=max(0, 100*(4*g+ks)-60)))
        ops = [vr(vOne), xa] + [vr(vB + 16 * i + 4 * ks) for i in range(4)] + ([vr(vDel)] if ks == 0 else [])
        for ti, bop in enumerate(ops):
            d = vr(ac + 4 * ti)
            q_(I(mf16(d, xa, bop, '0' if ks == 0 else d), rd=[f'@wx{g}{ks}']))
    on, gr, de = ac, ac + 4, ac + 24
    t = 52 + 4 * (g & 1)
    q_(f'v_mul_f32 v{t}, v{vDg}, v{gr}', f'v_fmac_f32 v{t}, v{vDg+1}, v{gr+1}', f'v_fmac_f32 v{t}, v{vDg+2}, v{gr+2}', f'v_fmac_f32 v{t}, v{vDg+3}, v{gr+3}')
    q_(f'v_add_f32 v{t+1}, v{on}, v{on+1}', f'v_add_f32 v{t+2}, v{on+2}, v{on+3}', f'v_add_f32 v{t+1}, v{t+1}, v{t+2}', f'v_mul_f32 v{vMu+g}, {fh(-1/512)}, v{t+1}',
       f'v_add_f32 v{t+3}, v{vMu+g}, v{de}')
    for rr in (8, 4, 2, 1):
        q_(I(f'v_add_f32_dpp v{t}, v{t}, v{t} row_ror:{rr} row_mask:0xf bank_mask:0xf', lat=13))
    q_(f'v_fmamk_f32 v{t}, v{t}, {fh(1/512)}, v60', f'v_fma_f32 v{t}, -v{vMu+g}, v{vMu+g}, v{t}', f'v_rsq_f32 v{t}, v{t}')
    for tile in range(2):
        re, im = ac + 8 + 8 * tile, ac + 12 + 8 * tile
        ur, ui = vU + 8 * tile + g, vU + 8 * tile + 4 + g
        q_(f'v_sub_f32 v{ur}, v{re}, v{t+3}')
        if tile == 0: q_(f'v_fma_f32 v{ui}, v{vCr}, v{im+1}, v{im}')
        else: q_(f'v_fma_f32 v{ui}, -v{vMsk}, v{t+3}, v{im}', f'v_fmac_f32 v{ui}, v{vCr}, v{im+1}')
        for p in (1, 2, 3):
            q_(f'v_fmac_f32 v{ur}, v{vCr+p-1}, v{re+p}')
            if p > 1: q_(f'v_fmac_f32 v{ui}, v{vCr+p-1}, v{im+p}')
            if tile == 0: q_(f'v_fma_f32 v{ur}, -v{vCr+2+p}, v{im+p}, v{ur}', f'v_fmac_f32 v{ui}, v{vCr+2+p}, v{re+p}')
            else: q_(f'v_fmac_f32 v{ur}, v{vCr+2+p}, v{im+p}', f'v_fma_f32 v{ui}, -v{vCr+2+p}, v{re+p}, v{ui}')
        q_(f'v_mul_f32 v{ur}, v{ur}, v{t}', f'v_mul_f32 v{ui}, v{ui}, v{t}')
for f in range(4):
    q_(f'v_cvt_pk_bf16_f32 v{vU+4*f}, v{vU+4*f}, v{vU+4*f+1}', f'v_cvt_pk_bf16_f32 v{vU+4*f+1}, v{vU+4*f+2}, v{vU+4*f+3}',
       I(f'ds_write_b64 v{vEx}, {vr(vU+4*f,2)} offset:{1024*f}', wr=['EX'], lat=60))
q_(barrier(rd=['EX'], wr=['@ex'], st='p1a'))
vPQ = 64; vM = 128; vGa = 96
for bk in range(2):
    q_(I(f'ds_read_b128 {vr(vPQ+16*bk)}, v{vWA2} offset:{4096*bk}', rd=['@ex'], lat=110))
    for i in range(3): q_(I(f'ds_read_b128 {vr(vM+12*bk+4*i)}, v{vWA1} offset:{3072*bk+1024*i}', rd=['@ex'], lat=110))
    for f in (2, 1, 3): q_(I(f'ds_read_b128 {vr(vPQ+16*bk+4*f)}, v{vWA2} offset:{4096*bk+1024*f}', rd=['@ex'], lat=110))
for bk in range(2):
    mre, mim, mni = vr(vM + 12 * bk), vr(vM + 12 * bk + 4), vr(vM + 12 * bk + 8)
    for tile in range(2):
        Pf = vr(vPQ + 16 * bk + 8 * tile); dr, di = vr(vGa + 8 * tile), vr(vGa + 8 * tile + 4)
        q_(mf16(dr, Pf, mre, '0' if bk == 0 else dr), mf16(di, Pf, mim, '0' if bk == 0 else di))
    for tile in range(2):
        Qf = vr(vPQ + 16 * bk + 8 * tile + 4); dr, di = vr(vGa + 8 * tile), vr(vGa + 8 * tile + 4)
        q_(mf16(dr, Qf, mni, dr), mf16(di, Qf, mre, di))
for tile in range(2):
    for c in range(4): q_(f'v_cvt_pk_bf16_f32 v{112+4*tile+c}, v{vGa+8*tile+c}, v{vGa+8*tile+4+c}')
    q_(I(f'buffer_store_dwordx4 {vr(112+4*tile)}, v{vGs}, {sr(SWS)}, s{sGs} offen offset:{64*tile} sc1', svc=8))
e(*schedule(Q, verbose=True))
stamp('p1')
e(f's_bitcmp1_b32 s{sCls}, 5', 's_mov_b32 exec_lo, 0x0f0f0f0f', 's_cselect_b32 exec_lo, 0xf0f0f0f0, exec_lo', 's_mov_b32 exec_hi, exec_lo', f's_and_b32 s{sT}, s{sPhi}, 3')
for ks in range(4):
    e(cond_block([f's_cmp_lg_u32 s{sT}, {ks}', 's_cbranch_scc1'], [f'ds_write_b128 v12, {vr(vX+16*g+4*ks)} offset:{128*g}' for g in range(4)]))
e('s_mov_b64 exec, -1')
for g in range(4): e(f'ds_write_b32 v62, v{vMu+g} offset:{16*g}')
e('v_mov_b32 v28, 1', 's_mov_b64 exec, 1', f'ds_add_u32 v{vSy}, v28 offset:32', 's_mov_b64 exec, -1')
Q = []
T = 96
vH = 32; vGf = 64; vXt = 120
vGo, vGo2, vX0, vTau, vTau2 = 22, 23, 25, 26, 27
vR = 160; vR2 = 176; vR3 = 192
q_(B([f's_sub_u32 s{sT4}, 64, s{sCls}', f's_and_b32 s{sT4}, s{sT4}, 63', f's_cmp_ge_u32 s{sTT}, 8', f's_cselect_b32 s{sSrc}, s{sT4}, s{sCls}', f's_cselect_b32 s{sSrc2}, s{sCls}, s{sT4}',
      f's_cselect_b64 s[{sM}:{sM+1}], -1, 0', f's_lshl_b32 s{sSrc}, s{sSrc}, 15', f's_lshl_b32 s{sSrc2}, s{sSrc2}, 15',
      f's_cmp_eq_u32 s{sCls}, 0', f's_cselect_b32 s{sT4}, 32, 31', f's_lshl_b32 s{sCnt}, s{sTT}, 5',
      f'v_sub_u32 v{T+2}, s{sT4}, v{vI}', f'v_cndmask_b32 v{vTau}, v{vI}, v{T+2}, s[{sM}:{sM+1}]', f'v_cndmask_b32 v{vTau2}, v{T+2}, v{vI}, s[{sM}:{sM+1}]',
      f'v_add_u32 v{T+3}, s{sCnt}, v{vI}', f'v_sub_u32 v{T+4}, 0x200, v{T+3}', f'v_cndmask_b32 v{T+3}, v{T+3}, v{T+4}, s[{sM}:{sM+1}]']))
q_(f'v_sub_u32 v{T+4}, 0x180, v{T+3}', f'v_and_b32 v{T+5}, 0x7f, v{T+3}', B([f'v_cmp_lt_u32 vcc, 0x80, v{T+3}', f'v_cndmask_b32 v{T+5}, v{T+5}, v{T+4}, vcc']),
   f'v_bfe_u32 v{T+6}, v{T+5}, 4, 3', f'v_lshrrev_b32 v{T+7}, 7, v{T+5}', f'v_lshl_add_u32 v{T+6}, v{T+6}, 1, v{T+7}', f'v_and_b32 v{T+5}, 15, v{T+5}',
   f'v_lshl_add_u32 v{T+5}, v{T+6}, 4, v{T+5}', f'v_lshlrev_b32 v{T+5}, 2, v{T+5}', f'v_mov_b32 v{T+4}, {WS_SIZE:#x}', f'v_and_b32 v{T+3}, 0xff, v{T+3}', B([f'v_cmp_eq_u32 vcc, 0, v{T+3}', f'v_cndmask_b32 v{T+5}, v{T+5}, v{T+4}, vcc']),
   f'v_lshl_add_u32 v{vGo}, v{vHb}, 12, v{T+5}')
def rmat(base, tau, t0, ph=None):
    o = [f'v_cvt_f32_u32 v{t0}, v{tau}', f'v_mul_f32 v{t0}, {fh(1/32)}, v{t0}', f'v_cvt_f32_u32 v{t0+1}, v{vHb}', f'v_mul_f32 v{t0+1}, 4.0, v{t0+1}', f'v_mul_f32 v{t0+1}, v{t0+1}, v{t0}',
         f'v_and_b32 v{t0+2}, 1, v{tau}', f'v_mul_u32_u24 v{t0+2}, 0x8000, v{t0+2}', f'v_lshl_or_b32 v{t0+2}, v{t0+2}, 16, v{t0+2}']
    if ph is not None: o += [f'v_add_f32 v{t0+1}, s{ph}, v{t0+1}']
    for k in range(8):
        t = t0 + 3 + 3 * (k % 3)
        o += [f'v_fmamk_f32 v{t}, v{t0}, {fh(float(8*(k>>2)+(k&3)))}, v{t0+1}', f'v_cos_f32 v{t+1}, v{t}', f'v_sin_f32 v{t+2}, v{t}',
              f'v_cvt_pk_bf16_f32 v{base+k}, v{t+1}, v{t+2}', f'v_xor_b32 v{base+8+k}, v{t0+2}, v{base+k}']
    return o
q_(*rmat(vR, vTau, 64))
q_(f'v_lshlrev_b32 v9, 6, v{vI}', f'v_lshl_add_u32 v9, v{vHb}, 3, v9', B([f's_lshl_b32 s{sT4}, s{sW}, 11', f's_add_u32 s{sT4}, s{sT4}, {LDS_XT:#x}', f'v_add_u32 v9, s{sT4}, v9']),
   B([f's_lshr_b32 s{sT4}, s{sCls}, 5', f's_lshl_b32 s{sT4}, s{sT4}, 2', f's_add_u32 s{sT4}, s{sT4}, {LDS_MU:#x}', f'v_lshl_add_u32 v24, v{vI}, 3, s{sT4}']))
e(*schedule(Q))
e('s_waitcnt lgkmcnt(0)')
spec_test = [f's_and_b32 s{sR}, s{sTT}, 7', 's_cbranch_scc1']
e(cond_block(spec_test, [f's_cmp_eq_u32 s{sTT}, 0', f's_cselect_b32 s{sR}, {fh(0.25)}, 0'] + rmat(vR2, vTau2, 80, sR) + rmat(vR3, vTau, 80, sR) +
             [f'v_lshlrev_b32 v{vGo2}, 12, v{vHb}', f'v_add_u32 v{vGo2}, 64, v{vGo2}']))
e(*[I(x) for x in spin([f'ds_read_b32 v29, v{vSy} offset:32'], 's_waitcnt lgkmcnt(0)', ['v_cmp_gt_u32 vcc, 4, v29'])])
for u in range(4): e(f'ds_read_b64 {vr(vXt+2*u,2)}, v9 offset:{16*u}')
e('ds_read_b32 v24, v24')
e(f'v_lshlrev_b32 v{vWA0}, 9, v{vHb}', f'v_bfe_u32 v54, v{vL}, 2, 2', f'v_lshl_add_u32 v{vWA0}, v54, 6, v{vWA0}',
  f'v_bfe_u32 v54, v{vL}, 4, 1', f'v_lshl_add_u32 v{vWA0}, v54, 5, v{vWA0}', f'v_and_b32 v54, 3, v{vL}', f'v_lshl_add_u32 v{vWA0}, v54, 3, v{vWA0}',
  f'v_add_u32 v{vWA1}, 0x10000, v{vWA0}', f'v_add_u32 v{vWA2}, 0x20000, v{vWA0}', 'v_mov_b32 v28, 1', 's_waitcnt lgkmcnt(0)', f'ds_write_b32 v{vSw}, v28')
for r in range(16):
    src = vXt + (r >> 1)
    e(f'v_and_b32 v{vH+r}, 0xffff0000, v{src}' if r & 1 else f'v_lshlrev_b32 v{vH+r}, 16, v{src}')
e(f'v_mov_b32 v{vX0}, v{vH}')
for r in range(16): e(f'v_add_f32 v{vH+r}, v{vH+r}, v24')
e(cond_block([f's_cmp_lg_u32 s{sW}, 3', 's_cbranch_scc1'],
   [f'v_and_b32 v29, 3, v{vL}', 'v_lshlrev_b32 v29, 6, v29'] +
   spin([f'buffer_load_dword v30, v29, {sr(SDBG)}, 0 offen sc1'], 's_waitcnt vmcnt(0)', ['v_cmp_gt_u32 vcc, 64, v30'], 28, OPT['dg']) + [f'ds_write_b32 v{vSy}, v28 offset:36']))
e(*[I(x) for x in spin([f'ds_read_b32 v29, v{vSy} offset:36'], 's_waitcnt lgkmcnt(0)', ['v_cmp_ne_u32 vcc, 1, v29'])])
stamp('g')
def gloads(dst, vo, src, tmpreg):
    o = []
    for q in range(4):
        for m in range(4):
            if m == 0 and q: o.append(f's_add_u32 s{tmpreg}, s{src}, {8192*q:#x}')
            o.append(f'buffer_load_dword v{dst+4*q+m}, v{vo}, {sr(SWS)}, s{tmpreg if q else src} offen offset:{1024*m} sc1')
    return o
e(*gloads(vGf, vGo, sSrc, sGq))
e(cond_block(spec_test, gloads(80, vGo2, sSrc2, sR) + gloads(96, vGo2, sSrc, sR)))
H = vr(vH, 16); Z = vr(128, 16)
fl = f'buffer_load_dword v30, v{vJ}, {sr(SWS)}, s{sFlR} offen sc1'
e(f'ds_read_b32 v31, v{vSy} offset:44', f'v_lshlrev_b32 v{vJ}, 7, v{vJ}', fl)
e(*validate(29, range(vGf, vGf + 16), gloads(vGf, vGo, sSrc, sR), 24))
stamp('gv')
for q in range(4): e(mf32(H, vr(vGf + 4 * q), vr(vR + 4 * q), H))
zt = maxchain(29, range(80, 112)) + ['v_cmp_eq_u32 vcc, -1, v29']
sp = zt + ['s_cbranch_vccz L_zok'] + spin(gloads(80, vGo2, sSrc2, sR) + gloads(96, vGo2, sSrc, sR), 's_waitcnt vmcnt(0)', zt, 24, OPT['bo']) + ['L_zok:'] + [mf32(Z, vr(80 + 4 * q), vr(vR2 + 4 * q), Z if q else '0') for q in range(4)] + [mf32(Z, vr(96 + 4 * q), vr(vR3 + 4 * q), Z) for q in range(4)]
sp += [f's_cmp_eq_u32 s{sTT}, 0', f's_cselect_b32 s{sR}, {fh(1/32)}, 0.5', 's_mov_b64 exec, 0xffffffff', I(f'v_fma_f32 v{vH}, s{sR}, v128, v{vH}'), 's_mov_b64 exec, -1']
e(cond_block(spec_test, sp))
e(rare_block(['v_cmp_gt_u32 vcc, 4, v31', 's_cbranch_vccnz'], spin([f'ds_read_b32 v31, v{vSy} offset:44'], 's_waitcnt lgkmcnt(0)', ['v_cmp_gt_u32 vcc, 4, v31'], 20)))
for h in range(2):
    for m in range(4): e(f'v_cvt_pk_bf16_f32 v{52+4*h+m}, v{vH+8*h+2*m}, v{vH+8*h+2*m+1}')
    e(f'buffer_store_dwordx4 {vr(52+4*h)}, v{vL16}, {sr(SWS)}, s{sHcW} offen offset:{1024*h} sc1')
stamp('h')
e(f'v_sub_f32 v{vX0}, v{vX0}, v{vH}', f'v_mul_f32 v60, v{vH}, v{vH}', f'v_mul_f32 v61, v{vH+1}, v{vH+1}')
for r in range(2, 16): e(f'v_fmac_f32 v{60+(r&1)}, v{vH+r}, v{vH+r}')
e('v_add_f32 v60, v60, v61', f'v_permlane32_swap_b32 v60, v{vX0}', 's_mov_b64 exec, 0xffffffff', f'v_add_f32 v60, v60, v{vX0}', 's_mov_b64 exec, -1')
e(f'buffer_store_dword v60, v{vSo}, {sr(SWS)}, s{sSsW} offen sc1')
vDA = 10
e(f'v_lshl_add_u32 v9, v{vHb}, 10, v{vS4}', f'v_mov_b32 v{vGs}, v{vS4}',
  f'v_lshlrev_b32 v22, 10, v{vHb}', f'v_bfe_u32 v23, v{vL}, 2, 2', 'v_lshl_add_u32 v22, v23, 7, v22', f'v_and_b32 v23, 1, v{vL}', 'v_lshl_add_u32 v22, v23, 6, v22',
  f'v_bfe_u32 v23, v{vL}, 4, 1', 'v_lshl_add_u32 v22, v23, 4, v22', f'v_bfe_u32 v23, v{vL}, 1, 1', 'v_lshl_add_u32 v22, v23, 3, v22',
  f'v_bfe_u32 v23, v{vL}, 3, 1', 'v_lshl_add_u32 v22, v23, 5, v22', f's_lshl_b32 s{sT4}, s{sK}, 11', f'v_add_u32 v{vDA}, s{sT4}, v22', f'v_xor_b32 v{vDA+3}, 32, v{vDA}')
for ct in range(2):
    for wdw in (1, 2): e(f'v_add_u32 v{vDA+3*ct+wdw}, {65536*wdw:#x}, v{vDA+3*ct}')
e(f's_and_b32 s{sT4}, s{sW}, 1', f's_lshl_b32 s{sCls}, s{sRho}, 1', f's_add_u32 s{sCls}, s{sCls}, s{sT4}', f's_lshl_b32 s{sCls}, s{sCls}, 2', f's_add_u32 s{sCls}, s{sCls}, s{sCb}',
  f's_mul_i32 s{sActR}, s{sCls}, {86*1024}', f's_lshl_b32 s{sT4}, s{sK}, 10', f's_add_u32 s{sActR}, s{sActR}, s{sT4}', f's_add_u32 s{sActR}, s{sActR}, {WS_ACT:#x}',
  )
vFo = vJ
e(rare_block(['v_cmp_gt_u32 vcc, 1, v30', 's_cbranch_vccnz'], spin([fl], 's_waitcnt vmcnt(0)', ['v_cmp_gt_u32 vcc, 1, v30'], 28, OPT['bo'])))
e('s_waitcnt vmcnt(0)')
fl = fl.replace('v30', 'v31')
if OPT.get('dh'): e(f's_sleep {OPT["dh"]}')
Q = []
vG = 128; vWB = 32; NWB = 8
for k in range(32):
    pre = ([f's_add_u32 s{sAc}, s{sHcR}, {GO[0]*4096:#x}'] if k == 0 else [f's_addk_i32 s{sAc}, {((GO[k//4]-GO[k//4-1])*4096) & 0xffff:#x}']) if k % 4 == 0 else []
    q_(B(pre + [I(f'buffer_load_dwordx4 {vr(vG+4*k)}, v{vL16}, {sr(SWS)}, s{sAc} offen offset:{1024*(k&3)} sc1', wr=['@hl', f'@hl{k}'])] + (stampi('hl') if k == 0 else []), lat=900))
vSs = 96
ssl = [f'buffer_load_dword v{vSs+i}, v9, {sr(SWS)}, s{sSsR} offen offset:{128*i} sc1' for i in range(8)]

vCk = 24
def hcheck(level, tok, rd=()):
    t = [f'v_min3_u32 v{vCk}, v{vCk}, v{vCk+1}, v{vCk+2}', f'v_min_u32 v{vCk}, v{vCk}, v{vCk+3}', f'v_cmp_gt_u32 vcc, {level}, v{vCk}']
    return [I(f'ds_read_b128 {vr(vCk)}, v{vSy}', lat=130, rd=rd), t[0], t[1],
            rare_block([t[2], 's_cbranch_vccnz'], spin([f'ds_read_b128 {vr(vCk)}, v{vSy}'], 's_waitcnt lgkmcnt(0)', t, 20), lat=8, wr=[tok])]
def csignal(level, toks, st):
    x = I(f'ds_write_b32 v{vSw}, v28', wr=toks); x.drain = set(toks)
    return B([f'v_mov_b32 v28, {level}', x] + (stampi(st) if st else []))
wb = [0]; wk = [0]
def nbuf():
    b = vWB + 4 * wb[0]; wb[0] = (wb[0] + 1) % NWB; return b
def wfrag(unit, ks, pub, tk):
    b = nbuf()
    va, off = lwin(unit * U + (ks & 3) * 1024, (vWA0, vWA1, vWA2))
    return b, [I(f'ds_read_b64_tr_b16 {vr(b,2)}, v{va} offset:{off}', rd=[pub, tk]), I(f'ds_read_b64_tr_b16 {vr(b+2,2)}, v{va} offset:{off+256}', rd=[pub, tk])]
def gemm_steps(kss, tiles, pub, tk, first=False):
    for ks in kss:
        fr = []
        for ti, acc in tiles:
            b, rds = wfrag(wunit(ks >> 2, ti), ks, pub, tk); q_(*rds); fr.append((acc, b))
        wk[0] += 1
        q_(I('WAITFOR ' + ', '.join(vr(b) for _, b in fr) + (f', {vr(vG+4*ks)}' if first else ''), wr=[f'@w{wk[0]}']))
        for acc, b in fr: q_(I(mf32(acc, vr(b), vr(vG + 4 * ks), '0' if ks == 0 else acc), rd=[f'@w{wk[0]}']))
A0, A1, A2 = 64, 96, 64
t0 = [(0, vr(A0, 16)), (3, vr(A0 + 16, 16))]
WCH = {1: [8], 2: [5, 8], 3: [4, 6, 8], 4: [2, 4, 6, 8]}[OPT['wchk']]
LEAD = OPT.get('lead', 3)
starts = [0] + WCH[:-1]
for ks in range(32):
    for st_, ce in zip(starts, WCH):
        if ks == max(0, 4 * st_ - LEAD): q_(*hcheck(ce, f'@pub{ce}'))
    if ks % 4 == 0:
        q_(*validate(29, [vG + 4 * k for k in range(ks, ks + 4)], [f's_add_u32 s{sR}, s{sHcR}, {4096*GO[ks//4]:#x}'] +
                     [f'buffer_load_dwordx4 {vr(vG+4*k)}, v{vL16}, {sr(SWS)}, s{sR} offen offset:{1024*(k&3)} sc1' for k in range(ks, ks + 4)], 16))
    if ks == 0:
        for x in ssl: q_(I(x, svc=32, lat=900, rd=['@hl19'], pri=0))
    gemm_steps([ks], t0, f'@pub{min(ce for ce in WCH if 4 * ce > ks)}', f'L{ks//8}')
    if ks % 8 == 7: q_(csignal(2 + ks // 8, [f'L{ks//8}'], 'b0' if ks == 31 else ''))
vNr, vIr = 16, 17
q_(f'v_max3_u32 v29, v{vSs}, v{vSs+1}, v{vSs+2}', f'v_max3_u32 v29, v29, v{vSs+3}, v{vSs+4}', f'v_max3_u32 v29, v29, v{vSs+5}, v{vSs+6}', f'v_max_u32 v29, v29, v{vSs+7}')
q_(rare_block(['v_cmp_eq_u32 vcc, -1, v29', 's_cbranch_vccnz'], spin(ssl, 's_waitcnt vmcnt(0)',
    [f'v_max3_u32 v29, v{vSs}, v{vSs+1}, v{vSs+2}', f'v_max3_u32 v29, v29, v{vSs+3}, v{vSs+4}', f'v_max3_u32 v29, v29, v{vSs+5}, v{vSs+6}', f'v_max_u32 v29, v29, v{vSs+7}', 'v_cmp_eq_u32 vcc, -1, v29']), lat=8))
for i in range(0, 8, 2): q_(f'v_add_f32 v{vSs+i}, v{vSs+i}, v{vSs+i+1}')
q_(f'v_add_f32 v{vSs}, v{vSs}, v{vSs+2}', f'v_add_f32 v{vSs+4}, v{vSs+4}, v{vSs+6}', f'v_add_f32 v{vSs}, v{vSs}, v{vSs+4}',
   f'v_mov_b32 v{vSs+1}, v{vSs}', f'v_permlane32_swap_b32 v{vSs+1}, v{vSs+1}', f'v_add_f32 v{vSs}, v{vSs}, v{vSs+1}',
   f'v_mov_b32 v{vSs+1}, {fh(1e-5)}', f'v_fmamk_f32 v{vIr}, v{vSs}, {fh(1/512)}, v{vSs+1}', f'v_rsq_f32 v{vNr}, v{vIr}', f'v_mul_f32 v{vNr}, {fh(-1.4426950408889634)}, v{vNr}')
def epilogue(p, g, u):
    for r in range(16):
        q_(f'v_mul_f32 v{u+r}, v{g+r}, v{u+r}', f'v_mul_f32 v{g+r}, v{vNr}, v{g+r}', f'v_exp_f32 v{g+r}, v{g+r}', f'v_fma_f32 v{g+r}, v{g+r}, v{vIr}, v{vIr}',
           f'v_rcp_f32 v{g+r}, v{g+r}', f'v_mul_f32 v{u+r}, v{u+r}, v{g+r}')
        if r & 1: q_(f'v_cvt_pk_bf16_f32 v{g+8*(r>>3)+((r&7)>>1)}, v{u+r-1}, v{u+r}')
        if r & 7 == 7:
            q_(B([I(f'buffer_store_dwordx4 {vr(g+8*(r>>3))}, v{vL16}, {sr(SWS)}, s{sActW if p < 2 else sAct3} offen offset:{(2048*p if p < 2 else 0)+1024*(r>>3)} sc1', wr=[f'@as{p}+{OPT["lv"]}', f'@as{p}'], rd=['@pub11'], pri=0)] +
                 (stampi('p2') if p == 2 and r == 15 else [])))
t1 = [(1, vr(A1, 16)), (4, vr(A1 + 16, 16))]
for ks in range(32):
    if ks == OPT.get('c11', 20): q_(*hcheck(11, '@pub11')); epilogue(0, A0, A0 + 16)
    gemm_steps([ks], t1, '@pub8' if ks < 28 else '@pub11', f'L{4+ks//8}')
    if ks % 8 == 7:
        x = csignal(6 + ks // 8, [f'L{4+ks//8}'], 'b1' if ks == 31 else '')
        q_(x)
epilogue(1, A1, A1 + 16)
t2 = [(2, vr(A2, 16)), (5, vr(A2 + 16, 16))]
for ks in range(32):
    if ks == 0:
        q_(I(fl, lat=700, rd=['@as0'], pri=0), rare_block(['v_cmp_gt_u32 vcc, 2, v31', 's_cbranch_vccnz'], spin([fl], 's_waitcnt vmcnt(0)', ['v_cmp_gt_u32 vcc, 2, v31'], 28, OPT['bo']), lat=8, wr=['@pub13']))
    if ks == 26: q_(*hcheck(17, '@pub17'))
    gemm_steps([ks], t2, '@pub11', f'L{8+ks//8}')
    if ks % 8 == 7 and ks < 31: q_(csignal(10 + ks // 8, [f'L{8+ks//8}'], ''))
NR = 32; vAct = 128
def acti(n):
    d = (order[n] - order[n-1]) * 2048 if n else None
    so = f's_addk_i32 s{sAc}, {d:#x}' if d is not None and 0 < d < 32768 else f's_add_u32 s{sAc}, s{sActR}, {order[n]*2048:#x}'
    return B([so, I(f'buffer_load_dwordx4 {vr(vAct+4*(n%NR))}, v{vL16}, {sr(SWS)}, s{sAc} offen sc1', svc=70, rd=['@pub13', f'@as{n//16}+{OPT["lv"]}'])], lat=900)
for n in range(16): q_(acti(n))
for n in range(16, 32): q_(acti(n))
def dfrag(n, ct):
    b = nbuf()
    va, off = lwin(dpos(n), (vDA + 3 * ct, vDA + 3 * ct + 1, vDA + 3 * ct + 2))
    tk = ['@pub17' if DQ[n] <= 8 else '@pub20', 'L11' if n < 4 else 'LD']
    return b, [I(f'ds_read_b64_tr_b16 {vr(b,2)}, v{va} offset:{off}', rd=tk), I(f'ds_read_b64_tr_b16 {vr(b+2,2)}, v{va} offset:{off+512}', rd=tk)]
pre = {}
for n in range(4):
    for ct in range(2):
        b, rds = dfrag(n, ct); pre[(n, ct)] = b; q_(*rds)
q_(csignal(13, ['L11'], 'b2'))
epilogue(2, A2, A2 + 16)
vO = 96; vRs = 64; vRf = 80
q_(f'v_lshlrev_b32 v9, 11, v{vHb}', f'v_lshl_add_u32 v9, v{vI}, 4, v9',
   B([f's_lshl_b32 s{sHcR}, s{sCls}, 15', f's_lshl_b32 s{sT4}, s{sCgp}, 12', f's_add_u32 s{sHcR}, s{sHcR}, s{sT4}', f's_lshl_b32 s{sT4}, s{sK}, 10', f's_add_u32 s{sHcR}, s{sHcR}, s{sT4}',
      f's_add_u32 s{sHcR}, s{sHcR}, {WS_HC:#x}']), B([f's_mul_i32 s{sSsR}, s{sCls}, {17*128}', f's_add_u32 s{sSsR}, s{sSsR}, {WS_SS:#x}']))
ml = f'buffer_load_dword v{vRs+8}, v{vGs}, {sr(SWS)}, s{sSsR} offen sc1'
q_(I(f'buffer_load_dwordx4 {vr(vRs)}, v9, {sr(SWS)}, s{sHcR} offen sc1', lat=900, rd=['@pub13']), I(f'buffer_load_dwordx4 {vr(vRs+4)}, v9, {sr(SWS)}, s{sHcR} offen offset:512 sc1', lat=900, rd=['@pub13']),
   I(ml, lat=900, rd=['@pub13']))
for n in range(43):
    if n == min(m for m in range(43) if DQ[m] > 8) - LEAD: q_(*hcheck(20, '@pub20'))
    if n % 4 == 0:
        ns = range(n, min(n + 4, 43))
        q_(*validate(29, [vAct + 4 * (m % NR) for m in ns], [x for m in ns for x in (f's_add_u32 s{sR}, s{sActR}, {order[m]*2048:#x}',
                     f'buffer_load_dwordx4 {vr(vAct+4*(m%NR))}, v{vL16}, {sr(SWS)}, s{sR} offen sc1')], 8 if n < 32 else 0))
    fr = []
    for ct in range(2):
        if (n, ct) in pre: b = pre[(n, ct)]
        else:
            b, rds = dfrag(n, ct); q_(*rds)
        fr.append((ct, b))
    wk[0] += 1
    q_(I('WAITFOR ' + ', '.join(vr(b) for _, b in fr) + f', {vr(vAct+4*(n%NR))}', wr=[f'@w{wk[0]}']))
    for ct, b in fr:
        D = vr(vO + 16 * ct, 16)
        q_(I(mf32(D, vr(b), vr(vAct + 4 * (n % NR)), '0' if n == 0 else D), rd=[f'@w{wk[0]}']))
    if n + NR < 43: q_(acti(n + NR))
q_(*validate(30, [vRs, vRs + 4, vRs + 8], [f'buffer_load_dwordx4 {vr(vRs)}, v9, {sr(SWS)}, s{sHcR} offen sc1', f'buffer_load_dwordx4 {vr(vRs+4)}, v9, {sr(SWS)}, s{sHcR} offen offset:512 sc1', ml], None))
for c in range(16):
    src = vRs + 4 * ((c >> 2) & 1) + 2 * (c >> 3) + ((c & 3) >> 1)
    q_(f'v_and_b32 v{vRf+c}, 0xffff0000, v{src}' if c & 1 else f'v_lshlrev_b32 v{vRf+c}, 16, v{src}', f'v_add_f32 v{vRf+c}, v{vRf+c}, v{vRs+8}')
RU = [DU[n] for n in range(4, 8)]
rtab = sum(u_ << (8 * i) for i, u_ in enumerate(RU))
q_(f'v_lshlrev_b32 v19, 16, v{vI}', f'v_lshl_add_u32 v19, v{vHb}, 6, v19',
   B([f's_lshl_b32 s{sT}, s{sCgp}, 7', f's_lshl_b32 s{sT4}, s{sK}, 5', f's_add_u32 s{sT}, s{sT}, s{sT4}', f's_lshl_b32 s{sT4}, s{sCls}, 10', f's_add_u32 s{sT}, s{sT}, s{sT4}']),
   B([f's_lshl_b32 s{sT4}, s{sW}, 3', f's_lshr_b32 s{sT4}, {rtab:#x}, s{sT4}', f's_and_b32 s{sT4}, s{sT4}, 0xff', f's_lshl_b32 s{sT4}, s{sT4}, 12', f'v_add_u32 v22, s{sT4}, v{vL16}']),
   B([f's_xor_b32 s{sT4}, s{sW}, 2', f's_lshl_b32 s{sT4}, s{sT4}, 3', f's_lshr_b32 s{sT4}, {rtab:#x}, s{sT4}', f's_and_b32 s{sT4}, s{sT4}, 0xff', f's_lshl_b32 s{sT4}, s{sT4}, 12', f'v_add_u32 v23, s{sT4}, v{vL16}']))
Q.insert(max(i for i, x in enumerate(Q) if x.cls == 'mfma') - 40, mk(barrier(rd=['@pub20', f'@w{wk[0]-10}'], wr=['@late'])))
Q[max(i for i, x in enumerate(Q) if x.cls == 'mfma')].R.add('@late')
e(*schedule(Q, verbose=True, ds_lat=OPT['dsl'], vm_order=False, dump=open(sys.argv[1] + '.plan', 'w')))
stamp('p3m')
def red(own, other):
    o = [f'ds_write_b128 v22, {vr(vO+16*other+4*i)} offset:{1024*i}' for i in range(4)]
    o += [f'v_pk_add_f32 {vr(vRf+2*i,2)}, {vr(vRf+2*i,2)}, {vr(vO+16*own+2*i,2)}' for i in range(8)]
    return o
e(cond_block([f's_cmp_lg_u32 s{sK}, 0', 's_cbranch_scc1'], red(0, 1)))
e(cond_block([f's_cmp_eq_u32 s{sK}, 0', 's_cbranch_scc1'], red(1, 0)))
e('s_waitcnt lgkmcnt(0)', 's_barrier')
for i in range(4): e(f'ds_read_b128 {vr(32+4*i)}, v23 offset:{1024*i}')
stamp('red')
for h in range(2):
    for i in range(4 * h, 4 * h + 4): e(f'v_pk_add_f32 {vr(32+2*i,2)}, {vr(32+2*i,2)}, {vr(vRf+2*i,2)}')
    for i in range(4 * h, 4 * h + 4): e(f'v_cvt_pk_bf16_f32 v{56+i}, v{32+2*i}, v{33+2*i}')
    e(f'buffer_store_dwordx4 {vr(56+4*h)}, v19, {sr(SOUT)}, s{sT} offen offset:{16*h}')
def dump_stamps(base):
    e('s_waitcnt lgkmcnt(0)', f's_lshl_b32 s{sT}, s2, 2', f's_add_u32 s{sT}, s{sT}, s{sW}', f's_lshl_b32 s{sT}, s{sT}, 5', f's_add_u32 s{sT}, s{sT}, {base:#x}',
      's_mov_b64 exec, 1', 'v_mov_b32 v21, 0')
    for i in range(7): e(f'v_mov_b32 v20, s{sSt+2*i}', f'buffer_store_dword v20, v21, {sr(SWS)}, s{sT} offen offset:{4*i}')
    e('v_mov_b32 v20, s40', f'buffer_store_dword v20, v21, {sr(SWS)}, s{sT} offen offset:28')
if OPT['stamps']:
    e('s_waitcnt vmcnt(0)')
    stamp('end'); stamp('end2'); stamp('end3')
    dump_stamps(WS_ST)
e('L_exit:')
def add_trace(P, regs, lo_pred, hi_pred, pred, base, fname):
    flat = add_waits(flatten(P))
    lo = [i for i, x in enumerate(flat) if lo_pred(x)][0]; hi = [i for i, x in enumerate(flat) if hi_pred(x)][-1]
    out = []; names = []
    def tp(label):
        n = len(names)
        if n >= 64 * len(regs): return []
        names.append(label)
        return [I('s_memrealtime s[90:91]'), I('s_waitcnt lgkmcnt(0)'), I(f'v_writelane_b32 v{regs[n//64]}, s90, {n%64}')]
    nm = 0
    for i, x in enumerate(flat):
        if i == hi:
            out += tp('end')
            out += [I(f's_lshl_b32 s90, s2, 2'), I(f's_add_u32 s90, s90, s{sW}'), I('s_lshl_b32 s90, s90, 10'), I(f's_add_u32 s90, s90, {base:#x}'), I(f'v_lshlrev_b32 v{vL}, 2, v{vL}')]
            for k, r in enumerate(regs): out.append(I(f'buffer_store_dword v{r}, v{vL}, {sr(SWS)}, s90 offen offset:{256*k}', cond=9999))
        out.append(x)
        if x.cls == 'mfma' and not x.cond: nm += 1
        if i == lo: out += tp('begin')
        elif lo < i < hi and not x.cond and pred(x, nm): out += tp(f'[{nm}] ' + x.text[:70])
    open(fname, 'w').write('\n'.join(names))
    return out
if OPT.get('trace'):
    P = add_trace(P, (0,), lambda x: x.op == 's_setprio', lambda x: x.text == 'L_exit:',
                  lambda x, nm: x.op == 's_barrier' or (x.label and x.text[:3] in ('L_x', 'L_b')) or (x.cls == 'vmem' and x.store) or (x.cls == 'mfma' and nm > 120 and (nm - 120) % 32 == 0), WS_ST, sys.argv[1] + '.names')
bodyC = emit(P, OUT)

P = []; OUT = {}
e('L_helper:', f's_sub_u32 s{sW}, s{sW}, 4')
vDw, vDd, vPf, vPd, vPo = 3, 4, 5, 7, 252
e('v_mov_b32 v28, 0', f'v_lshlrev_b32 v22, 2, v{vJ}', f'v_add_u32 v22, {LDS_SY:#x}, v22', 'ds_write_b32 v22, v28')
e(f's_lshr_b32 s{sT2}, s2, 3', f's_lshl_b32 s{sT2}, s{sT2}, 2', f's_add_u32 s{sT2}, s{sT2}, s{sW}',
  f'v_mul_u32_u24 v{vPf}, {ROWW}, v{vKq}', f'v_lshl_add_u32 v{vPf}, v{vJ}, 7, v{vPf}',
  f's_and_b32 s{sT}, s{sChi}, 3', f's_mul_i32 s{sT}, s{sT}, 172', f's_add_u32 s{sT}, s{sT}, 8', f's_lshr_b32 s{sT}, s{sT}, 4', f's_lshl_b32 s{sPf}, s{sT}, 6',
  f's_mul_i32 s{sT}, s{sT2}, {4*ROWW}', f's_add_u32 s{sPf}, s{sPf}, s{sT}', f's_mul_i32 s{sPd}, s{sT2}, {11*1024}')
for i in range(4): e(f'v_mov_b32 v{vPo+i}, -1')
e(f'v_lshrrev_b32 v17, 2, v{vL}', f'v_lshlrev_b32 v{vPd}, 10, v17', f'v_and_b32 v22, 3, v{vL}', f'v_lshl_add_u32 v{vPd}, v22, 7, v{vPd}',
  f'v_lshrrev_b32 v17, 3, v{vL}', 'v_lshlrev_b32 v17, 15, v17', f'v_and_b32 v22, 7, v{vL}', 'v_lshl_add_u32 v17, v22, 4, v17', 'v_add_u32 v12, 0x40000, v17')
e('s_waitcnt lgkmcnt(0)')
e(*srd(SWG, 36, 512 * ROWW)); e(*srd(SWS, 46, WS_SIZE)); e(*srd(SWU, 38, 512 * ROWW)); e(*srd(SWD, 40, 1376 * 1024)); e(*srd(SDBG, 44, 256))
e(*common_idx())
wpf = lambda sd, d: ['s_mov_b32 exec_lo, 0x007f007f', 's_mov_b32 exec_hi, 0x007f007f', f'buffer_load_dword v{d}, v{vPf}, {sr(sd)}, s{sPf} offen', 's_mov_b64 exec, -1']
vTf, vTb, vSg, vM = 24, 25, 26, 64
G = [f's_lshl_b32 s{sT4}, s{sW}, 4', f'v_add_u32 v32, s{sT4}, v{vJ}', f'v_cvt_f32_u32 v{vTf}, v32', f'v_mul_f32 v{vTf}, {fh(-1/2048)}, v{vTf}',
     f'v_lshlrev_b32 v33, 5, v{vKq}', f'v_add_u32 v33, s{sS2}, v33', f'v_cvt_f32_u32 v{vTb}, v33', f'v_mul_f32 v{vTb}, v{vTb}, v{vTf}',
     f'v_and_b32 v32, 1, v{vJ}', f'v_mul_u32_u24 v{vSg}, 0x8000, v32', f'v_lshl_or_b32 v{vSg}, v{vSg}, 16, v{vSg}']
for m in range(4):
    t = 36 + 6 * m; d = vM + m
    for h in range(2):
        jj = 2 * m + h
        G += [f'v_fmamk_f32 v{t+h}, v{vTf}, {fh(float(512*(jj>>2)+128*(jj&3)))}, v{vTb}', f'v_cos_f32 v{t+2+h}, v{t+h}', f'v_sin_f32 v{t+4+h}, v{t+h}']
    G += [f'v_cvt_pk_bf16_f32 v{d}, v{t+2}, v{t+3}', f'v_cvt_pk_bf16_f32 v{d+4}, v{t+4}, v{t+5}', f'v_xor_b32 v{d+8}, 0x80008000, v{d+4}']
    G += [f'v_xor_b32 v{d+12+4*i}, v{vSg}, v{d+4*i}' for i in range(3)]
e(*schedule(G, lookahead=40))
e(f's_mul_i32 s{sT}, s{sW}, 6144', f's_add_u32 s{sT}, s{sT}, {LDS_M:#x}', f'v_add_u32 v22, s{sT}, v{vL16}')
for i in range(6): e(f'ds_write_b128 v22, {vr(vM+4*i)} offset:{1024*i}')
e(f's_lshl_b32 s{sT}, s{sW}, 2', f's_add_u32 s{sT}, s{sT}, {LDS_SY:#x}', f'v_mov_b32 v{vSw}, s{sT}',
  f's_and_b32 s{sT}, s{sCgp}, 4', f's_lshl_b32 s{sT}, s{sT}, 7', f's_add_u32 s{sPd}, s{sPd}, s{sT}')
e(f'v_bfe_u32 v22, v{vL}, 4, 1', 'v_lshlrev_b32 v23, 3, v22', f'v_lshl_add_u32 v23, v{vHb}, 2, v23', f'v_bfe_u32 v22, v{vL}, 2, 2', 'v_add_u32 v23, v23, v22',
  f'v_mul_u32_u24 v{vDw}, {ROWW}, v23', f'v_and_b32 v22, 3, v{vL}', f'v_lshl_add_u32 v{vDw}, v22, 4, v{vDw}',
  f's_lshl_b32 s{sWoff}, s{sT0}, 6', f's_mul_i32 s{sWc}, s{sW}, {16*ROWW}', f's_add_u32 s{sWoff}, s{sWc}, s{sWoff}', f's_mov_b32 s{sWc}, s{sWoff}', f's_mov_b32 s{sWst}, {64*ROWW}', f's_lshl_b32 s{sLW}, s{sW}, 10',
  f'v_lshrrev_b32 v22, 3, v{vL}', 'v_and_b32 v23, 3, v22', 'v_lshrrev_b32 v24, 2, v22', 'v_lshl_add_u32 v23, v24, 3, v23', f'v_lshlrev_b32 v{vDd}, 10, v23',
  'v_and_b32 v22, 2, v22', f'v_and_b32 v23, 7, v{vL}', 'v_xor_b32 v22, v22, v23', f'v_lshl_add_u32 v{vDd}, v22, 4, v{vDd}',
  f's_lshr_b32 s{sDo}, s{sW}, 1', f's_lshl_b32 s{sDo}, s{sDo}, 14', f's_and_b32 s{sT}, s{sW}, 1', f's_lshl_b32 s{sT}, s{sT}, 12', f's_add_u32 s{sDo}, s{sDo}, s{sT}',
  f's_lshl_b32 s{sT}, s{sCgp}, 7', f's_add_u32 s{sDo}, s{sDo}, s{sT}')
e('s_waitcnt lgkmcnt(0)', 's_barrier')
stamp('hb0')
e(f'buffer_store_dwordx4 {vr(vPo)}, v17, {sr(SWS)}, s{sGs} offen sc1', f'buffer_store_dwordx4 {vr(vPo)}, v12, {sr(SWS)}, s{sGs} offen sc1',
  's_mov_b64 exec, 1', I(f'buffer_store_dword v28, v{vL}, {sr(SWS)}, s{sFlW} offen sc1', wr=['init']))
e(*wpf(SWG, 30))
if not OPT.get('pfo'): e(*wpf(SWU, 31))
def last_of_four(word, rd, body):
    e('v_mov_b32 v28, 1', 's_mov_b64 exec, 1', I(f'ds_add_rtn_u32 v29, v{vSy}, v28 offset:{word}', rd=rd), 's_waitcnt lgkmcnt(0)', 'v_cmp_ne_u32 vcc, 3, v29')
    e(cond_block(['s_cbranch_vccnz'], body))
    e('s_mov_b64 exec, -1')
e(f's_and_b32 s{sR}, s2, 3', f's_lshl_b32 s{sR}, s{sR}, 6', f's_lshl_b32 s{sT}, s{sW}, 8', f's_add_u32 s{sR}, s{sR}, s{sT}', 'v_mov_b32 v28, 1')
e(I('s_barrier', rd=['init']))
e('s_mov_b64 exec, 1', f'buffer_atomic_add v28, v{vL}, {sr(SDBG)}, s{sR} offen sc1', 's_mov_b64 exec, -1')
stamp('hb1')
wdp = ['s_mov_b32 exec_hi, 0xfff', f'buffer_load_dword v15, v{vPd}, {sr(SWD)}, s{sPd} offen', 's_mov_b64 exec, -1']
e(I('s_nop 0', rd=['v31']))
e(*[I(x) for x in spin([f'ds_read_b32 v29, v{vSy} offset:32'], 's_waitcnt lgkmcnt(0)', ['v_cmp_gt_u32 vcc, 4, v29'], None, 1)])
PO = [I(f'buffer_store_dwordx4 {vr(vPo)}, v{vL16}, {sr(SWS)}, s{sHcW} offen sc1'), I(f'buffer_store_dwordx4 {vr(vPo)}, v{vL16}, {sr(SWS)}, s{sHcW} offen offset:1024 sc1'),
      I(f'buffer_store_dword v{vPo}, v{vSo}, {sr(SWS)}, s{sSsW} offen sc1', wr=['poiH'])]
PA = [I(f'buffer_store_dwordx4 {vr(vPo)}, v{vL16}, {sr(SWS)}, s{sActW if i < 4 else sAct3} offen offset:{1024*(i&3)} sc1', wr=['poiA']) for i in range(6)]
def cwait(level):
    t = ['v_min3_u32 v24, v24, v25, v26', 'v_min_u32 v24, v24, v27', f'v_cmp_gt_u32 vcc, {level}, v24']
    e(*[I(x) for x in spin([f'ds_read_b128 v[24:27], v{vSy} offset:16'], 's_waitcnt lgkmcnt(0)', t, None, 1)])
def publish(level, rd):
    e(f'v_mov_b32 v28, {level}', I(f'ds_write_b32 v{vSw}, v28', rd=rd))
m0v = [None]
def setm0(val):
    d = None if m0v[0] is None else val - m0v[0]
    m0v[0] = val
    if d is not None and -32768 <= d < 32768: return f's_addk_i32 m0, {d & 0xffff:#x}'
    return f's_add_u32 m0, s{sLW}, {val:#x}'
TILES = [(SWG, 0, 0), (SWG, 1, 1), (SWG, 2, 2), (SWU, 0, 3), (SWU, 1, 4)]
pend = list(WCH)
e(*PO)
if OPT['wdq'] < 0: e(*wdp)
for c in range(8):
    if c == 5: stamp('hw4'); cwait(1)
    for n, (sd, p, ti) in enumerate(TILES):
        adv = [f's_add_u32 s{sWc}, s{sWoff}, {GO[c]*64*ROWW:#x}'] if n == 0 else []
        if (c, ti) == (7, 4): continue
        e(setm0((5 * c + ti) * U - p * 64), *adv, I(f'buffer_load_dwordx4 v{vDw}, {sr(sd)}, s{sWc} offen offset:{p*64} lds', wr=[f'W{c}']))
        if n in (2, 4): e(f's_waitcnt vmcnt({OPT["thr"]})')
    if c == 0: last_of_four(44, ['poiH'], [f'buffer_store_dword v28, v{vL}, {sr(SWS)}, s{sFlW} offen sc1'])
    if pend and pend[0] == c:
        publish(c, [f'W{c-1}']); pend.pop(0)
publish(8, ['W7'])
stamp('hw7')
for q, step in enumerate(PLAN):
    cwait(2 + q)
    if q == OPT['wdq']: e(*wdp)
    if q == 4: stamp('hd1')
    if q and 8 + q in (11, 17): publish(8 + q, [f'S{q-1}', 'poiA'])
    if q == 3: last_of_four(48, [], ['v_mov_b32 v28, 2', f'buffer_store_dword v28, v{vL}, {sr(SWS)}, s{sFlW} offen sc1'])
    for it, u_ in step:
        if it[0] == 'w': so, sd, vo = f's_add_u32 s{sDc}, s{sWoff}, {GO[it[1]]*64*ROWW + (it[2]-3)*64:#x}', SWU, vDw
        else: so, sd, vo = f's_add_u32 s{sDc}, s{sDo}, {order[it[1]]*32768:#x}', SWD, vDd
        e(setm0(u_ * U), so, I(f'buffer_load_dwordx4 v{vo}, {sr(sd)}, s{sDc} offen lds', wr=[f'S{q}']))
    if q == OPT['paq']: e(*PA)
publish(20, ['S11'])
if OPT['stamps']:
    stamp('hend'); e('s_mov_b32 s40, 0'); dump_stamps(WS_ST + 0x8000)
e('L_hend:')
if OPT.get('trace'):
    P = add_trace(P, (250, 251), lambda x: x.text == 'L_helper:', lambda x: x.text == 'L_hend:',
                  lambda x, nm: x.op == 's_barrier' or (x.label and x.text[:3] in ('L_x', 'L_c')) or (x.op == 's_waitcnt' and 'vmcnt' in x.text) or x.op == 'ds_write_b32', WS_ST + 0x100000, sys.argv[1] + '.hnames')
bodyH = emit(P, OUT)

hdr = open('cdna_kernels/' + NAME + '.s.ref').read().split('; Override launch')[0]
src = hdr + f'''; @launch grid=(256,1,1) block=(512,1,1) lds=163840
.amdgcn_target "amdgcn-amd-amdhsa--gfx950"
.text
.globl {NAME}_kernel
.p2align 8
.type {NAME}_kernel,@function
{NAME}_kernel:
{bodyC}
{bodyH}
L_end:
.section .rodata,"a"
.p2align 6
.amdhsa_kernel {NAME}_kernel
  .amdhsa_next_free_vgpr 256
  .amdhsa_next_free_sgpr 102
  .amdhsa_accum_offset 256
  .amdhsa_group_segment_fixed_size 0
  .amdhsa_kernarg_size 96
  .amdhsa_user_sgpr_count 2
  .amdhsa_user_sgpr_kernarg_segment_ptr 1
  .amdhsa_system_sgpr_workgroup_id_x 1
.end_amdhsa_kernel
'''
open(sys.argv[1], 'w').write(src)
print('lines', src.count('\n'))
```

```python
import sys, struct
from asmlib import *

NAME = 'sequential_preLN__spectral_fnet__swiglu_ffn__prompt'
OPT = dict(stamps=0, sset=0, pre=40, thr=8, lv=1300, dsl=200, wchk=4, dg=4, bo=4, wdq=-1, xper=60, paq=2, dh=0, c11=27, cfl=8, rot=1, early=0, ackw=0, zero3=1)
for a in sys.argv[2:]:
    k, v = a.split('='); OPT[k] = int(v)

def fh(x): return '0x%08x' % struct.unpack('<I', struct.pack('<f', x))[0]
def vr(b, n=4): return f'v[{b}:{b+n-1}]'
def sr(b, n=4): return f's[{b}:{b+n-1}]'

WS_G = 0; WS_HC = 0x400000; WS_ACT = 0x600000; WS_FL = 0x260000; WS_SS = 0x290000; WS_ST = 0xC00000; WS_SIZE = 0x1000000
FL_CNT = WS_FL; FL_REL = WS_FL + 2048; FL_A = WS_FL + 4096
ROWW = 2752
U = 4096
LDS_SY = 39 * U; LDS_MU = LDS_SY + 256; LDS_EX = 37 * U; LDS_XT = 35 * U; LDS_M = 29 * U
SPIN = 100000

SX, SWG, SWU, SWD, SOUT, SWS, SDBG = 8, 12, 16, 20, 24, 28, 32
(sW, sChi, sCg, sS2, sCb, sPhi, sRho, sCls, sTT, sT0, sXb, sT, sT2, sT3, sT4, sCnt, sActW, sGs, sHcW, sSsW,
 sSrc, sSrc2, sWoff, sLW, sActR, sCgp, sK, sDo, sWc, sDc, sAc, sC3, sC2, sWst, sHcR, sR, sPf, sPd) = range(48, 86)
sM = 86; sSt = 88
sAct3 = 3; sSsR = 6; sGq = 7; sFlW = 4; sFlR = 5
sRo = 36; sAct1 = 37; sTab = 38; sAq = 42
SCRATCH.update(f's{r}' for r in (sM, sM+1, sR, sCnt, sT2, sT3, sT4)); SCRATCH.add('vcc')

P = []
def e(*xs):
    for x in xs: P.append(mk(x))
SSETS = [['start','A','p1','g','h','p2','end'], ['start','A','p1a','p1','g','gv','h'], ['h','hl','b0','b1','b2','p2','p3m'], ['b2','p2','p3m','red','end','end2','end3']]
HSET = ['start','hb0','hb1','hw4','hw7','hd1','hend']
def stampi(name, **kw):
    st = HSET if name[0] == 'h' and len(name) > 2 else SSETS[OPT['sset']]
    if not OPT['stamps'] or name not in st: return []
    i = st.index(name)
    return [I(f'{"s_memrealtime" if OPT["stamps"]==1 else "s_memtime"} s[{sSt+2*i}:{sSt+2*i+1}]', **kw)]
def stamp(name): e(*stampi(name))
_c = [0]; OUT = {}
def _body(body):
    ins = []
    for b in body:
        if isinstance(b, I): b.cond = _c[0]; ins.append(b)
        else: ins.append(I(b, cond=_c[0]))
    return ins
def cond_block(test, body, lat=None):
    _c[0] += 1; L = f'L_c{_c[0]}'
    return B([mk(t) for t in test[:-1]] + [I(f'{test[-1]} {L}')] + _body(body) + [I(L + ':')], lat=lat)
def rare_block(test, body, lat=None, rd=(), wr=()):
    _c[0] += 1; OUT[_c[0]] = (f'L_o{_c[0]}', f'L_b{_c[0]}')
    return B([mk(t) for t in test[:-1]] + [I(f'{test[-1]} L_o{_c[0]}', rd=rd, wr=wr)] + _body(body) + [I(f'L_b{_c[0]}:')], lat=lat)
def srd(d, p, size):
    return [f's_mov_b32 s{d}, s{p}', f's_and_b32 s{d+1}, s{p+1}, 0xffff', f's_mov_b32 s{d+2}, {size:#x}', f's_mov_b32 s{d+3}, 0x20000']
def mf32(d, a, b, c): return f'v_mfma_f32_32x32x16_bf16 {d}, {a}, {b}, {c}'
def mf16(d, a, b, c): return f'v_mfma_f32_16x16x32_bf16 {d}, {a}, {b}, {c}'
def barrier(rd=(), wr=(), st=None):
    x = I('s_barrier', rd=rd, wr=wr)
    if st and stampi(st): return B([x] + stampi(st))
    return x
def bundle_scc(seq):
    seq = [mk(x) for x in seq]
    out = []; i = 0
    while i < len(seq):
        x = seq[i]
        if not isinstance(x, B) and 'scc' in x.W:
            j = i + 1; last = i
            while j < len(seq):
                if 'scc' in (seq[j].Rx if isinstance(seq[j], B) else seq[j].R): last = j
                if 'scc' in seq[j].W: break
                j += 1
            if last > i:
                out.append(B(flatten(seq[i:last + 1]))); i = last + 1; continue
        out.append(x); i += 1
    return out
_l = [0]
def spin(load, wait, test, bit=None, sleep=0):
    _l[0] += 1; n = _l[0]
    cnt = [f's_add_u32 s40, s40, {1 << bit:#x}'] if (OPT['stamps'] and bit is not None) else []
    return [f's_mov_b32 s{sCnt}, 0', f'L_s{n}:'] + cnt + ([f's_sleep {sleep}'] if sleep else []) + load + [wait] + test + \
           [f's_add_u32 s{sCnt}, s{sCnt}, 1', f's_cmp_gt_u32 s{sCnt}, {SPIN}', f's_cbranch_scc1 L_x{n}', f's_cbranch_vccnz L_s{n}', f'L_x{n}:']
def maxchain(dst, regs):
    o = []; regs = list(regs)
    o.append(f'v_max3_u32 v{dst}, v{regs[0]}, v{regs[1]}, v{regs[2]}'); regs = regs[3:]
    while len(regs) >= 2:
        o.append(f'v_max3_u32 v{dst}, v{dst}, v{regs[0]}, v{regs[1]}'); regs = regs[2:]
    if regs: o.append(f'v_max_u32 v{dst}, v{dst}, v{regs[0]}')
    return o
def boosted(l, v=5000):
    l = [mk(x) for x in l]
    for x in l: x.boost = v
    return l
def validate(dst, regs, loads, bit):
    t = f'v_cmp_eq_u32 vcc, -1, v{dst}'
    return maxchain(dst, regs) + [rare_block([t, 's_cbranch_vccnz'], spin(loads, 's_waitcnt vmcnt(0)', maxchain(dst, regs) + [t], bit, OPT['bo']), lat=16)]
def lwin(pos, regs): return regs[pos >> 16], pos & 0xffff

vL, vL16, vWA0, vWA1, vWA2, vSy, vGs, vSw = 1, 2, 3, 4, 5, 6, 7, 8
vS4, vSo, vXo, vJ, vKq, vI, vHb = 14, 16, 17, 18, 19, 20, 21
T0 = [(43 * f + 8) >> 4 for f in range(17)]
NT = [T0[f + 1] - T0[f] for f in range(16)]
order = [T0[f] for f in range(16)] + [T0[f] + 1 for f in range(16)] + [T0[f] + 2 for f in range(16) if NT[f] == 3]
assert sorted(order) == list(range(43))
TAB = sum(f << (4 * i) for i, f in enumerate(f for f in range(16) if NT[f] == 3))
LOC = {(c, ti): 5 * c + ti for c in range(8) for ti in range(5)}
PASS = [(0, 3), (1, 4), (2, 5)]
fill = [('w', 7, 4)] + [('w', c, 5) for c in range(8)] + [('d', n) for n in range(43)]
DU = {}; PLAN = []; fi = 0
for q in range(12):
    p, cs = q // 4, (2 * (q % 4), 2 * (q % 4) + 1)
    units = [LOC[(c, ti)] for c in cs for ti in PASS[p]]
    if q == 11: units += [DU[n] for n in range(4)]
    step = []
    for u_ in units:
        it = fill[fi]; fi += 1
        if it[0] == 'w': LOC[(it[1], it[2])] = u_
        else: DU[it[1]] = u_
        step.append((it, u_))
    PLAN.append(step)
assert fi == len(fill)
DQ = {it[1]: q for q, st_ in enumerate(PLAN) for it, _ in st_ if it[0] == 'd'}
def wunit(c, ti): return LOC[(c, ti)]
def dpos(n): return U * DU[n]

e('s_cmp_ge_u32 s2, 0x100', 's_cbranch_scc1 L_exit')
stamp('start')
e('s_load_dwordx2 s[4:5], s[0:1], 0', 's_load_dwordx8 s[36:43], s[0:1], 48', 's_load_dwordx4 s[44:47], s[0:1], 80')
e('v_lshrrev_b32 v17, 6, v0', f'v_and_b32 v{vL}, 63, v0', f'v_readfirstlane_b32 s{sW}, v17', f'v_and_b32 v{vJ}, 15, v0', f'v_lshrrev_b32 v{vKq}, 4, v{vL}')
e(f's_and_b32 s{sChi}, s2, 7', f's_lshr_b32 s{sCg}, s2, 5', f's_bfe_u32 s{sT}, s2, 0x20003', f's_lshl_b32 s{sS2}, s{sChi}, 2', f's_add_u32 s{sS2}, s{sS2}, s{sT}')
e('s_getpc_b64 s[6:7]', 'L_pc:', f's_lshr_b32 s{sT2}, s2, 3', f's_lshl_b32 s{sT2}, s{sT2}, 10', f'v_lshl_add_u32 v23, v17, 7, s{sT2}', 'v_min_u32 v23, L_end-L_pc-4, v23',
  's_mov_b64 exec, 1', 'global_load_dword v10, v23, s[6:7]', 's_mov_b64 exec, -1')
e(f's_cmp_ge_u32 s{sW}, 4', 's_cbranch_scc1 L_helper')
def common_idx():
    return [f'v_and_b32 v{vI}, 31, v{vL}', f'v_lshrrev_b32 v{vHb}, 5, v{vL}', f'v_lshlrev_b32 v{vL16}, 4, v{vL}', f'v_mov_b32 v{vSy}, {LDS_SY:#x}',
      f's_and_b32 s{sPhi}, s{sChi}, 3', f's_lshl_b32 s{sPhi}, s{sPhi}, 2', f's_lshr_b32 s{sT}, s2, 6', f's_add_u32 s{sPhi}, s{sPhi}, s{sT}',
      f's_bfe_u32 s{sT}, s2, 0x10005', f's_lshl_b32 s{sT}, s{sT}, 5', f's_add_u32 s{sCls}, s{sS2}, s{sT}', f's_and_b32 s{sCb}, s{sCls}, 0x33',
      f's_and_b32 s{sTT}, s{sPhi}, 3', f's_lshl_b32 s{sTT}, s{sTT}, 2', f's_add_u32 s{sTT}, s{sTT}, s{sW}', f's_and_b32 s{sCgp}, s{sPhi}, 7',
      f's_mul_i32 s{sT0}, s{sPhi}, 43', f's_add_u32 s{sT0}, s{sT0}, 8', f's_lshr_b32 s{sT0}, s{sT0}, 4',
      f's_mul_i32 s{sSsW}, s{sCls}, 17', f's_add_u32 s{sSsW}, s{sSsW}, s{sTT}', f's_lshl_b32 s{sSsW}, s{sSsW}, 7', f's_add_u32 s{sSsW}, s{sSsW}, {WS_SS:#x}',
      f'v_lshlrev_b32 v{vS4}, 2, v{vI}', f's_cmp_eq_u32 s{sTT}, 0', f's_cselect_b32 s{sT}, 0, {WS_SIZE:#x}', f'v_add_u32 v{vSo}, s{sT}, v{vS4}', f'v_add_u32 v9, 0x80, v{vS4}',
      B([f'v_cmp_eq_u32 vcc, 0, v{vHb}', f'v_cndmask_b32 v{vSo}, v{vSo}, v9, vcc']),
      f's_lshl_b32 s{sT3}, s{sW}, 2', f's_add_u32 s{sT3}, s{sT3}, s{sCb}',
      f's_lshl_b32 s{sFlR}, s{sCb}, 11', f's_add_u32 s{sFlR}, s{sFlR}, {FL_A:#x}', f's_lshl_b32 s{sFlW}, s{sPhi}, 7', f's_add_u32 s{sFlW}, s{sFlW}, s{sFlR}',
      f's_lshl_b32 s{sGs}, s{sW}, 19', f's_lshl_b32 s{sT}, s{sS2}, 10', f's_add_u32 s{sGs}, s{sGs}, s{sT}', f's_lshl_b32 s{sT}, s{sCg}, 7', f's_add_u32 s{sGs}, s{sGs}, s{sT}',
      f's_lshl_b32 s{sT}, s{sCls}, 4', f's_add_u32 s{sT}, s{sT}, s{sTT}', f's_lshl_b32 s{sHcW}, s{sT}, 11', f's_add_u32 s{sHcW}, s{sHcW}, {WS_HC:#x}',
      f's_mul_i32 s{sActW}, s{sT3}, {96*1024}', f's_lshl_b32 s{sT}, s{sPhi}, 11', f's_add_u32 s{sActW}, s{sActW}, s{sT}', f's_add_u32 s{sActW}, s{sActW}, {WS_ACT:#x}',
      f's_add_u32 s{sAct1}, s{sActW}, 0x8000', f's_lshr_b32 s{sRo}, s2, 6' if OPT['rot'] else f's_mov_b32 s{sRo}, 0',
      f's_mul_i32 s{sT}, s{sRo}, 12', f's_mov_b32 s{sTab}, {TAB & 0xffffffff:#x}', f's_mov_b32 s{sTab+1}, {TAB >> 32:#x}', f's_lshr_b64 s[{sM}:{sM+1}], s[{sTab}:{sTab+1}], s{sT}',
      f's_sub_u32 s{sT}, 44, s{sT}', f's_lshl_b64 s[{sTab}:{sTab+1}], s[{sTab}:{sTab+1}], s{sT}', f's_or_b64 s[{sTab}:{sTab+1}], s[{sTab}:{sTab+1}], s[{sM}:{sM+1}]',
      f's_mul_i32 s{sT}, s{sPhi}, 43', f's_add_u32 s{sT}, s{sT}, 51', f's_lshr_b32 s{sT}, s{sT}, 4', f's_sub_u32 s{sT}, s{sT}, s{sT0}',
      f's_add_u32 s{sAct3}, s{sActW}, 0x10000', f's_cmp_eq_u32 s{sT}, 3', f's_cselect_b32 s{sAct3}, s{sAct3}, {WS_SIZE:#x}', f's_cselect_b32 s{sC3}, 0, {0x400000 if OPT["zero3"] else 0:#x}']

e('s_setprio 2')
vX = 192; vB = 128; vOne = 120; vDel = 124
e(f'v_bfe_u32 v22, v{vL}, 2, 2', f'v_lshlrev_b32 v{vXo}, 15, v22', f'v_lshl_add_u32 v{vXo}, v{vKq}, 6, v{vXo}', f'v_and_b32 v22, 3, v{vL}', f'v_lshl_add_u32 v{vXo}, v22, 4, v{vXo}')
e(f's_lshl_b32 s{sXb}, s{sW}, 19', f's_lshl_b32 s{sT}, s{sS2}, 10', f's_add_u32 s{sXb}, s{sXb}, s{sT}')
e(f'v_lshrrev_b32 v15, 3, v{vL}', 'v_lshlrev_b32 v15, 15, v15', f'v_and_b32 v22, 7, v{vL}', 'v_lshl_add_u32 v15, v22, 7, v15',
  f's_lshl_b32 s{sT2}, s{sCg}, 16', f's_add_u32 s{sT2}, s{sT2}, s{sXb}')
gen = []
def g_(*xs):
    for x in xs: gen.append(mk(x))
vCr = 22; vDg = 28
vMsk, vEx, vEf, vBa = 61, 13, 64, 65
T = 32
g_(f's_lshl_b32 s{sT4}, s{sCg}, 4', f'v_add_u32 v{T}, s{sT4}, v{vJ}', f'v_cmp_eq_u32 s[{sM}:{sM+1}], 0, v{T}', f'v_mov_b32 v{T+1}, 0x80',
   f'v_cndmask_b32 v{T}, v{T}, v{T+1}, s[{sM}:{sM+1}]', f'v_mov_b32 v{vMsk}, {fh(16.0)}', f'v_cndmask_b32 v{vMsk}, 0, v{vMsk}, s[{sM}:{sM+1}]',
   f'v_cvt_f32_u32 v{T}, v{T}', f'v_mul_f32 v{vEf}, {fh(-1/512)}, v{T}', f'v_cvt_f32_u32 v{T+1}, v{vKq}', f'v_mul_f32 v{vBa}, {fh(32.0)}, v{T+1}', f'v_mul_f32 v{vBa}, v{vBa}, v{vEf}')
vKp, vFr, vFi, vSg = 66, 67, 68, 71
g_(f'v_cndmask_b32 v{vKp}, -1, 0, s[{sM}:{sM+1}]', f'v_mov_b32 v{T+2}, 0x80000000', f'v_mov_b32 v{T+3}, 0xbf803f80', f'v_cndmask_b32 v{vFr}, v{T+2}, v{T+3}, s[{sM}:{sM+1}]',
   f'v_and_b32 v{vFi}, 0x8000, v{vKp}', f'v_and_b32 v{T}, 1, v{vJ}', f'v_mul_u32_u24 v{vSg}, 0x8000, v{T}', f'v_lshl_or_b32 v{vSg}, v{vSg}, 16, v{vSg}')
rot = [0]
def tmp():
    b = T + 4 + rot[0] * 6; rot[0] = (rot[0] + 1) % 4; return b
for ks in range(2):
    for m in range(4):
        t = tmp(); d = vB + 4 * ks + m
        for h in range(2):
            g_(f'v_fmamk_f32 v{t+h}, v{vEf}, {fh(float(128*ks+2*m+h))}, v{vBa}', f'v_cos_f32 v{t+2+h}, v{t+h}', f'v_sin_f32 v{t+4+h}, v{t+h}')
        g_(f'v_cvt_pk_bf16_f32 v{d}, v{t+2}, v{t+3}', f'v_cvt_pk_bf16_f32 v{d+16}, v{t+4}, v{t+5}',
           f'v_bitop3_b32 v{d+32}, v{d}, v{vKp}, v{vFr} bitop3:0x6a', f'v_bitop3_b32 v{d+48}, v{d+16}, v{vKp}, v{vFi} bitop3:0x6a')
        for i in range(4): g_(f'v_xor_b32 v{d+16*i+8}, v{vSg}, v{d+16*i}')
g_(B([f'v_cmp_eq_u32 vcc, 0, v{vKq}', f'v_mov_b32 v{T+1}, 0x3f80', f'v_cndmask_b32 v{vDel}, 0, v{T+1}, vcc']))
for m in range(4): g_(f'v_mov_b32 v{vOne+m}, 0x3f803f80' if m == 0 else f'v_mov_b32 v{vOne+m}, v{vOne}')
for m in range(1, 4): g_(f'v_mov_b32 v{vDel+m}, 0')
for p in (1, 2, 3):
    t = tmp()
    g_(f'v_mul_f32 v{t}, {fh(8.0*p)}, v{vEf}', f'v_cos_f32 v{vCr+p-1}, v{t}', f'v_sin_f32 v{vCr+2+p}, v{t}')
g_(f'v_lshlrev_b32 v{T}, 2, v{vKq}', f'v_sub_u32 v{T}, v{vJ}, v{T}')
for c in range(4): g_(f'v_cmp_eq_u32 vcc, {c}, v{T}', f'v_cndmask_b32 v{vDg+c}, 0, 1.0, vcc')
gen = schedule(gen, lookahead=40)
e(*gen[:OPT['pre']])
e('s_waitcnt lgkmcnt(0)')
e(*srd(SX, 4, 2048 * 1024))
e(B(['s_mov_b64 exec, 0xffff', f'buffer_load_dword v11, v15, {sr(SX)}, s{sT2} offen', 's_mov_b64 exec, -1']))
xl = []
for g in range(4):
    for ks in range(4):
        pre = [f's_add_u32 s{sT2}, s{sXb}, {g*131072:#x}'] if ks == 0 else []
        xl.append(B(pre + [f'buffer_load_dwordx4 {vr(vX+16*g+4*ks)}, v{vXo}, {sr(SX)}, s{sT2} offen offset:{256*ks}'], lat=500))
setup = srd(SWS, 46, WS_SIZE) + srd(SOUT, 42, 2048 * 1024) + srd(SDBG, 44, 256) + common_idx()
setup += [f's_lshr_b32 s{sRho}, s{sPhi}, 3', f's_lshl_b32 s{sHcR}, s{sT3}, 15', f's_add_u32 s{sHcR}, s{sHcR}, {WS_HC:#x}',
   f's_mul_i32 s{sSsR}, s{sT3}, {17*128}', f's_add_u32 s{sSsR}, s{sSsR}, {WS_SS+128:#x}',
   f'v_lshlrev_b32 v{vGs}, 15, v{vJ}', f'v_lshl_add_u32 v{vGs}, v{vKq}, 4, v{vGs}',
   f's_lshr_b32 s{sK}, s{sW}, 1', f's_lshl_b32 s{sT}, s{sK}, 12', f's_and_b32 s{sT3}, s{sW}, 1', f's_lshl_b32 s{sT3}, s{sT3}, 3', f's_add_u32 s{sT}, s{sT}, s{sT3}',
   f's_add_u32 s{sT}, s{sT}, {LDS_EX:#x}', f'v_add_u32 v{vEx}, s{sT}, v{vL16}', f'v_add_u32 v{vWA2}, {LDS_EX:#x}, v{vL16}',
   f's_mul_i32 s{sT}, s{sW}, 6144', f's_add_u32 s{sT}, s{sT}, {LDS_M:#x}', f'v_add_u32 v{vWA1}, s{sT}, v{vL16}',
   f's_lshl_b32 s{sT}, s{sW}, 2', f's_add_u32 s{sT}, s{sT}, {LDS_SY+16:#x}', f'v_mov_b32 v{vSw}, s{sT}',
   f'v_lshlrev_b32 v12, 11, v{vKq}', f'v_bfe_u32 v9, v{vL}, 3, 1', 'v_lshl_add_u32 v12, v9, 6, v12', f'v_and_b32 v9, 3, v{vL}', 'v_lshl_add_u32 v12, v9, 4, v12',
   f's_lshl_b32 s{sT}, s{sW}, 9', f's_add_u32 s{sT}, s{sT}, {LDS_XT:#x}', f'v_add_u32 v12, s{sT}, v12',
   f's_lshl_b32 s{sT}, s{sW}, 6', f's_add_u32 s{sT}, s{sT}, {LDS_MU:#x}', f'v_lshl_add_u32 v62, v{vKq}, 2, s{sT}']
def weave(loads, work, first, per):
    out = list(loads[:first]); li = first; acc = 0
    for x in work:
        out.append(x); acc += x.cost
        if acc >= per and li < len(loads):
            out.append(loads[li]); li += 1; acc = 0
    return out + list(loads[li:])
work = bundle_scc(gen[OPT['pre']:] + setup)
XD = OPT.get('xd', 0)
e(*work[:XD]); e(*weave(xl + [B(['s_barrier'])], work[XD:], 2, OPT['xper']))
stamp('A')
if OPT['stamps']: e('s_mov_b32 s40, 0')

Q = []
def q_(*xs):
    for x in xs: Q.append(mk(x))
vAcc = 64; vU = 32; vMu = 48
q_(f'v_mov_b32 v60, {fh(1e-5)}')
for g in range(4):
    ac = vAcc + 28 * (g & 1)
    for ks in range(4):
        xa = vr(vX + 16 * g + 4 * ks)
        q_(I(f'WAITFOR {xa}', wr=[f'@wx{g}{ks}'], nb=max(0, 100*(4*g+ks)-60)))
        ops = [vr(vOne), xa] + [vr(vB + 16 * i + 4 * ks) for i in range(4)] + ([vr(vDel)] if ks == 0 else [])
        for ti, bop in enumerate(ops):
            d = vr(ac + 4 * ti)
            q_(I(mf16(d, xa, bop, '0' if ks == 0 else d), rd=[f'@wx{g}{ks}']))
    on, gr, de = ac, ac + 4, ac + 24
    t = 52 + 4 * (g & 1)
    q_(f'v_mul_f32 v{t}, v{vDg}, v{gr}', f'v_fmac_f32 v{t}, v{vDg+1}, v{gr+1}', f'v_fmac_f32 v{t}, v{vDg+2}, v{gr+2}', f'v_fmac_f32 v{t}, v{vDg+3}, v{gr+3}')
    q_(f'v_add_f32 v{t+1}, v{on}, v{on+1}', f'v_add_f32 v{t+2}, v{on+2}, v{on+3}', f'v_add_f32 v{t+1}, v{t+1}, v{t+2}', f'v_mul_f32 v{vMu+g}, {fh(-1/512)}, v{t+1}',
       f'v_add_f32 v{t+3}, v{vMu+g}, v{de}')
    for rr in (8, 4, 2, 1):
        q_(I(f'v_add_f32_dpp v{t}, v{t}, v{t} row_ror:{rr} row_mask:0xf bank_mask:0xf', lat=13))
    q_(f'v_fmamk_f32 v{t}, v{t}, {fh(1/512)}, v60', f'v_fma_f32 v{t}, -v{vMu+g}, v{vMu+g}, v{t}', f'v_rsq_f32 v{t}, v{t}')
    for tile in range(2):
        re, im = ac + 8 + 8 * tile, ac + 12 + 8 * tile
        ur, ui = vU + 8 * tile + g, vU + 8 * tile + 4 + g
        q_(f'v_sub_f32 v{ur}, v{re}, v{t+3}')
        if tile == 0: q_(f'v_fma_f32 v{ui}, v{vCr}, v{im+1}, v{im}')
        else: q_(f'v_fma_f32 v{ui}, -v{vMsk}, v{t+3}, v{im}', f'v_fmac_f32 v{ui}, v{vCr}, v{im+1}')
        for p in (1, 2, 3):
            q_(f'v_fmac_f32 v{ur}, v{vCr+p-1}, v{re+p}')
            if p > 1: q_(f'v_fmac_f32 v{ui}, v{vCr+p-1}, v{im+p}')
            if tile == 0: q_(f'v_fma_f32 v{ur}, -v{vCr+2+p}, v{im+p}, v{ur}', f'v_fmac_f32 v{ui}, v{vCr+2+p}, v{re+p}')
            else: q_(f'v_fmac_f32 v{ur}, v{vCr+2+p}, v{im+p}', f'v_fma_f32 v{ui}, -v{vCr+2+p}, v{re+p}, v{ui}')
        q_(f'v_mul_f32 v{ur}, v{ur}, v{t}', f'v_mul_f32 v{ui}, v{ui}, v{t}')
for f in range(4):
    q_(f'v_cvt_pk_bf16_f32 v{vU+4*f}, v{vU+4*f}, v{vU+4*f+1}', f'v_cvt_pk_bf16_f32 v{vU+4*f+1}, v{vU+4*f+2}, v{vU+4*f+3}',
       I(f'ds_write_b64 v{vEx}, {vr(vU+4*f,2)} offset:{1024*f}', wr=['EX'], lat=60))
q_(barrier(rd=['EX'], wr=['@ex'], st='p1a'))
vPQ = 64; vM = 128; vGa = 96
for bk in range(2):
    q_(I(f'ds_read_b128 {vr(vPQ+16*bk)}, v{vWA2} offset:{4096*bk}', rd=['@ex'], lat=110))
    for i in range(3): q_(I(f'ds_read_b128 {vr(vM+12*bk+4*i)}, v{vWA1} offset:{3072*bk+1024*i}', rd=['@ex'], lat=110))
    for f in (2, 1, 3): q_(I(f'ds_read_b128 {vr(vPQ+16*bk+4*f)}, v{vWA2} offset:{4096*bk+1024*f}', rd=['@ex'], lat=110))
for bk in range(2):
    mre, mim, mni = vr(vM + 12 * bk), vr(vM + 12 * bk + 4), vr(vM + 12 * bk + 8)
    for tile in range(2):
        Pf = vr(vPQ + 16 * bk + 8 * tile); dr, di = vr(vGa + 8 * tile), vr(vGa + 8 * tile + 4)
        q_(mf16(dr, Pf, mre, '0' if bk == 0 else dr), mf16(di, Pf, mim, '0' if bk == 0 else di))
    for tile in range(2):
        Qf = vr(vPQ + 16 * bk + 8 * tile + 4); dr, di = vr(vGa + 8 * tile), vr(vGa + 8 * tile + 4)
        q_(mf16(dr, Qf, mni, dr), mf16(di, Qf, mre, di))
for tile in range(2):
    for c in range(4): q_(f'v_cvt_pk_bf16_f32 v{112+4*tile+c}, v{vGa+8*tile+c}, v{vGa+8*tile+4+c}')
    q_(I(f'buffer_store_dwordx4 {vr(112+4*tile)}, v{vGs}, {sr(SWS)}, s{sGs} offen offset:{64*tile} sc1', svc=8))
e(*schedule(Q, verbose=True))
stamp('p1')
e(f's_bitcmp1_b32 s{sCls}, 5', 's_mov_b32 exec_lo, 0x0f0f0f0f', 's_cselect_b32 exec_lo, 0xf0f0f0f0, exec_lo', 's_mov_b32 exec_hi, exec_lo', f's_and_b32 s{sT}, s{sPhi}, 3')
for ks in range(4):
    e(cond_block([f's_cmp_lg_u32 s{sT}, {ks}', 's_cbranch_scc1'], [f'ds_write_b128 v12, {vr(vX+16*g+4*ks)} offset:{128*g}' for g in range(4)]))
e('s_mov_b64 exec, -1')
for g in range(4): e(f'ds_write_b32 v62, v{vMu+g} offset:{16*g}')
e('v_mov_b32 v28, 1', 's_mov_b64 exec, 1', f'ds_add_u32 v{vSy}, v28 offset:32', 's_mov_b64 exec, -1')
Q = []
T = 96
vH = 32; vGf = 64; vXt = 120
vGo, vGo2, vX0, vTau, vTau2 = 22, 23, 25, 26, 27
vR = 160; vR2 = 176; vR3 = 192
q_(B([f's_sub_u32 s{sT4}, 64, s{sCls}', f's_and_b32 s{sT4}, s{sT4}, 63', f's_cmp_ge_u32 s{sTT}, 8', f's_cselect_b32 s{sSrc}, s{sT4}, s{sCls}', f's_cselect_b32 s{sSrc2}, s{sCls}, s{sT4}',
      f's_cselect_b64 s[{sM}:{sM+1}], -1, 0', f's_lshl_b32 s{sSrc}, s{sSrc}, 15', f's_lshl_b32 s{sSrc2}, s{sSrc2}, 15',
      f's_cmp_eq_u32 s{sCls}, 0', f's_cselect_b32 s{sT4}, 32, 31', f's_lshl_b32 s{sCnt}, s{sTT}, 5',
      f'v_sub_u32 v{T+2}, s{sT4}, v{vI}', f'v_cndmask_b32 v{vTau}, v{vI}, v{T+2}, s[{sM}:{sM+1}]', f'v_cndmask_b32 v{vTau2}, v{T+2}, v{vI}, s[{sM}:{sM+1}]',
      f'v_add_u32 v{T+3}, s{sCnt}, v{vI}', f'v_sub_u32 v{T+4}, 0x200, v{T+3}', f'v_cndmask_b32 v{T+3}, v{T+3}, v{T+4}, s[{sM}:{sM+1}]']))
q_(f'v_sub_u32 v{T+4}, 0x180, v{T+3}', f'v_and_b32 v{T+5}, 0x7f, v{T+3}', B([f'v_cmp_lt_u32 vcc, 0x80, v{T+3}', f'v_cndmask_b32 v{T+5}, v{T+5}, v{T+4}, vcc']),
   f'v_bfe_u32 v{T+6}, v{T+5}, 4, 3', f'v_lshrrev_b32 v{T+7}, 7, v{T+5}', f'v_lshl_add_u32 v{T+6}, v{T+6}, 1, v{T+7}', f'v_and_b32 v{T+5}, 15, v{T+5}',
   f'v_lshl_add_u32 v{T+5}, v{T+6}, 4, v{T+5}', f'v_lshlrev_b32 v{T+5}, 2, v{T+5}', f'v_mov_b32 v{T+4}, {WS_SIZE:#x}', f'v_and_b32 v{T+3}, 0xff, v{T+3}', B([f'v_cmp_eq_u32 vcc, 0, v{T+3}', f'v_cndmask_b32 v{T+5}, v{T+5}, v{T+4}, vcc']),
   f'v_lshl_add_u32 v{vGo}, v{vHb}, 12, v{T+5}')
def rmat(base, tau, t0, ph=None):
    o = [f'v_cvt_f32_u32 v{t0}, v{tau}', f'v_mul_f32 v{t0}, {fh(1/32)}, v{t0}', f'v_cvt_f32_u32 v{t0+1}, v{vHb}', f'v_mul_f32 v{t0+1}, 4.0, v{t0+1}', f'v_mul_f32 v{t0+1}, v{t0+1}, v{t0}',
         f'v_and_b32 v{t0+2}, 1, v{tau}', f'v_mul_u32_u24 v{t0+2}, 0x8000, v{t0+2}', f'v_lshl_or_b32 v{t0+2}, v{t0+2}, 16, v{t0+2}']
    if ph is not None: o += [f'v_add_f32 v{t0+1}, s{ph}, v{t0+1}']
    for k in range(8):
        t = t0 + 3 + 3 * (k % 3)
        o += [f'v_fmamk_f32 v{t}, v{t0}, {fh(float(8*(k>>2)+(k&3)))}, v{t0+1}', f'v_cos_f32 v{t+1}, v{t}', f'v_sin_f32 v{t+2}, v{t}',
              f'v_cvt_pk_bf16_f32 v{base+k}, v{t+1}, v{t+2}', f'v_xor_b32 v{base+8+k}, v{t0+2}, v{base+k}']
    return o
q_(*rmat(vR, vTau, 64))
q_(f'v_lshlrev_b32 v9, 6, v{vI}', f'v_lshl_add_u32 v9, v{vHb}, 3, v9', B([f's_lshl_b32 s{sT4}, s{sW}, 11', f's_add_u32 s{sT4}, s{sT4}, {LDS_XT:#x}', f'v_add_u32 v9, s{sT4}, v9']),
   B([f's_lshr_b32 s{sT4}, s{sCls}, 5', f's_lshl_b32 s{sT4}, s{sT4}, 2', f's_add_u32 s{sT4}, s{sT4}, {LDS_MU:#x}', f'v_lshl_add_u32 v24, v{vI}, 3, s{sT4}']))
e(*schedule(Q))
e('s_waitcnt lgkmcnt(0)')
spec_test = [f's_and_b32 s{sR}, s{sTT}, 7', 's_cbranch_scc1']
e(cond_block(spec_test, [f's_cmp_eq_u32 s{sTT}, 0', f's_cselect_b32 s{sR}, {fh(0.25)}, 0'] + rmat(vR2, vTau2, 80, sR) + rmat(vR3, vTau, 80, sR) +
             [f'v_lshlrev_b32 v{vGo2}, 12, v{vHb}', f'v_add_u32 v{vGo2}, 64, v{vGo2}']))
e(*[I(x) for x in spin([f'ds_read_b32 v29, v{vSy} offset:32'], 's_waitcnt lgkmcnt(0)', ['v_cmp_gt_u32 vcc, 4, v29'])])
for u in range(4): e(f'ds_read_b64 {vr(vXt+2*u,2)}, v9 offset:{16*u}')
e('ds_read_b32 v24, v24')
e(f'v_lshlrev_b32 v{vWA0}, 9, v{vHb}', f'v_bfe_u32 v54, v{vL}, 2, 2', f'v_lshl_add_u32 v{vWA0}, v54, 6, v{vWA0}',
  f'v_bfe_u32 v54, v{vL}, 4, 1', f'v_lshl_add_u32 v{vWA0}, v54, 5, v{vWA0}', f'v_and_b32 v54, 3, v{vL}', f'v_lshl_add_u32 v{vWA0}, v54, 3, v{vWA0}',
  f'v_add_u32 v{vWA1}, 0x10000, v{vWA0}', f'v_add_u32 v{vWA2}, 0x20000, v{vWA0}', 'v_mov_b32 v28, 1', 's_waitcnt lgkmcnt(0)', f'ds_write_b32 v{vSw}, v28')
for r in range(16):
    src = vXt + (r >> 1)
    e(f'v_and_b32 v{vH+r}, 0xffff0000, v{src}' if r & 1 else f'v_lshlrev_b32 v{vH+r}, 16, v{src}')
e(f'v_mov_b32 v{vX0}, v{vH}')
for r in range(16): e(f'v_add_f32 v{vH+r}, v{vH+r}, v24')
e(cond_block([f's_cmp_lg_u32 s{sW}, 3', 's_cbranch_scc1'],
   [f'v_and_b32 v29, 3, v{vL}', 'v_lshlrev_b32 v29, 6, v29'] +
   spin([f'buffer_load_dword v30, v29, {sr(SDBG)}, 0 offen sc1'], 's_waitcnt vmcnt(0)', ['v_cmp_gt_u32 vcc, 64, v30'], 28, OPT['dg']) + [f'ds_write_b32 v{vSy}, v28 offset:36']))
e(*[I(x) for x in spin([f'ds_read_b32 v29, v{vSy} offset:36'], 's_waitcnt lgkmcnt(0)', ['v_cmp_ne_u32 vcc, 1, v29'])])
stamp('g')
def gloads(dst, vo, src, tmpreg):
    o = []
    for q in range(4):
        for m in range(4):
            if m == 0 and q: o.append(f's_add_u32 s{tmpreg}, s{src}, {8192*q:#x}')
            o.append(f'buffer_load_dword v{dst+4*q+m}, v{vo}, {sr(SWS)}, s{tmpreg if q else src} offen offset:{1024*m} sc1')
    return o
e(*gloads(vGf, vGo, sSrc, sGq))
e(cond_block(spec_test, gloads(80, vGo2, sSrc2, sR) + gloads(96, vGo2, sSrc, sR)))
H = vr(vH, 16); Z = vr(128, 16)
fl = f'buffer_load_dword v30, v{vJ}, {sr(SWS)}, s{sFlR} offen sc1'
e(f'ds_read_b32 v31, v{vSy} offset:44', f'v_lshlrev_b32 v{vJ}, 7, v{vJ}', fl)
e(*validate(29, range(vGf, vGf + 16), gloads(vGf, vGo, sSrc, sR), 24))
stamp('gv')
for q in range(4): e(mf32(H, vr(vGf + 4 * q), vr(vR + 4 * q), H))
zt = maxchain(29, range(80, 112)) + ['v_cmp_eq_u32 vcc, -1, v29']
sp = zt + ['s_cbranch_vccz L_zok'] + spin(gloads(80, vGo2, sSrc2, sR) + gloads(96, vGo2, sSrc, sR), 's_waitcnt vmcnt(0)', zt, 24, OPT['bo']) + ['L_zok:'] + [mf32(Z, vr(80 + 4 * q), vr(vR2 + 4 * q), Z if q else '0') for q in range(4)] + [mf32(Z, vr(96 + 4 * q), vr(vR3 + 4 * q), Z) for q in range(4)]
sp += [f's_cmp_eq_u32 s{sTT}, 0', f's_cselect_b32 s{sR}, {fh(1/32)}, 0.5', 's_mov_b64 exec, 0xffffffff', I(f'v_fma_f32 v{vH}, s{sR}, v128, v{vH}'), 's_mov_b64 exec, -1']
e(cond_block(spec_test, sp))
e(rare_block(['v_cmp_gt_u32 vcc, 4, v31', 's_cbranch_vccnz'], spin([f'ds_read_b32 v31, v{vSy} offset:44'], 's_waitcnt lgkmcnt(0)', ['v_cmp_gt_u32 vcc, 4, v31'], 20)))
for h in range(2):
    for m in range(4): e(f'v_cvt_pk_bf16_f32 v{52+4*h+m}, v{vH+8*h+2*m}, v{vH+8*h+2*m+1}')
    e(f'buffer_store_dwordx4 {vr(52+4*h)}, v{vL16}, {sr(SWS)}, s{sHcW} offen offset:{1024*h} sc1')
stamp('h')
e(f'v_sub_f32 v{vX0}, v{vX0}, v{vH}', f'v_mul_f32 v60, v{vH}, v{vH}', f'v_mul_f32 v61, v{vH+1}, v{vH+1}')
for r in range(2, 16): e(f'v_fmac_f32 v{60+(r&1)}, v{vH+r}, v{vH+r}')
e('v_add_f32 v60, v60, v61', f'v_permlane32_swap_b32 v60, v{vX0}', 's_mov_b64 exec, 0xffffffff', f'v_add_f32 v60, v60, v{vX0}', 's_mov_b64 exec, -1')
e(f'buffer_store_dword v60, v{vSo}, {sr(SWS)}, s{sSsW} offen sc1')
vDA = 10
e(f'v_lshl_add_u32 v9, v{vHb}, 10, v{vS4}', f'v_mov_b32 v{vGs}, v{vS4}',
  f'v_lshlrev_b32 v22, 10, v{vHb}', f'v_bfe_u32 v23, v{vL}, 2, 2', 'v_lshl_add_u32 v22, v23, 7, v22', f'v_and_b32 v23, 1, v{vL}', 'v_lshl_add_u32 v22, v23, 6, v22',
  f'v_bfe_u32 v23, v{vL}, 4, 1', 'v_lshl_add_u32 v22, v23, 4, v22', f'v_bfe_u32 v23, v{vL}, 1, 1', 'v_lshl_add_u32 v22, v23, 3, v22',
  f'v_bfe_u32 v23, v{vL}, 3, 1', 'v_lshl_add_u32 v22, v23, 5, v22', f's_lshl_b32 s{sT4}, s{sK}, 11', f'v_add_u32 v{vDA}, s{sT4}, v22', f'v_xor_b32 v{vDA+3}, 32, v{vDA}')
for ct in range(2):
    for wdw in (1, 2): e(f'v_add_u32 v{vDA+3*ct+wdw}, {65536*wdw:#x}, v{vDA+3*ct}')
e(f's_and_b32 s{sT4}, s{sW}, 1', f's_lshl_b32 s{sCls}, s{sRho}, 1', f's_add_u32 s{sCls}, s{sCls}, s{sT4}', f's_lshl_b32 s{sCls}, s{sCls}, 2', f's_add_u32 s{sCls}, s{sCls}, s{sCb}',
  f's_mul_i32 s{sActR}, s{sCls}, {96*1024}', f's_lshl_b32 s{sT4}, s{sK}, 10', f's_add_u32 s{sActR}, s{sActR}, s{sT4}', f's_add_u32 s{sActR}, s{sActR}, {WS_ACT:#x}',
  )
for gq in range(4): e(f's_xor_b32 s{sT4}, s{sRo}, {gq}', f's_lshl_b32 s{sT4}, s{sT4}, 13', f's_add_u32 s{sAq+gq}, s{sActR}, s{sT4}')
e(f's_lshl_b32 s{sRo}, s{sRo}, 13')
e(rare_block(['v_cmp_gt_u32 vcc, 1, v30', 's_cbranch_vccnz'], spin([fl], 's_waitcnt vmcnt(0)', ['v_cmp_gt_u32 vcc, 1, v30'], 28, OPT['bo'])))
e('s_waitcnt vmcnt(0)')
fl = fl.replace('v30', 'v31')
if OPT.get('dh'): e(f's_sleep {OPT["dh"]}')
Q = []
vG = 128; vWB = 32; NWB = 8
def hcaddr(d, c): return [f's_add_u32 s{d}, s{sRo}, {(c+1)*4096:#x}', f's_and_b32 s{d}, s{d}, 0x7fff', f's_add_u32 s{d}, s{d}, s{sHcR}']
for k in range(32):
    pre = hcaddr(sAc, k // 4) if k % 4 == 0 else []
    q_(B(pre + [I(f'buffer_load_dwordx4 {vr(vG+4*k)}, v{vL16}, {sr(SWS)}, s{sAc} offen offset:{1024*(k&3)} sc1', wr=['@hl', f'@hl{k}'])] + (stampi('hl') if k == 0 else []), lat=900))
vSs = 96
ssl = [f'buffer_load_dword v{vSs+i}, v9, {sr(SWS)}, s{sSsR} offen offset:{128*i} sc1' for i in range(8)]

vCk = 24
def hcheck(level, tok, rd=()):
    t = [f'v_min3_u32 v{vCk}, v{vCk}, v{vCk+1}, v{vCk+2}', f'v_min_u32 v{vCk}, v{vCk}, v{vCk+3}', f'v_cmp_gt_u32 vcc, {level}, v{vCk}']
    return [I(f'ds_read_b128 {vr(vCk)}, v{vSy}', lat=130, rd=rd), t[0], t[1],
            rare_block([t[2], 's_cbranch_vccnz'], spin([f'ds_read_b128 {vr(vCk)}, v{vSy}'], 's_waitcnt lgkmcnt(0)', t, 20), lat=8, wr=[tok])]
def csignal(level, toks, st):
    x = I(f'ds_write_b32 v{vSw}, v28', wr=toks); x.drain = set(toks)
    return B([f'v_mov_b32 v28, {level}', x] + (stampi(st) if st else []))
wb = [0]; wk = [0]
def nbuf():
    b = vWB + 4 * wb[0]; wb[0] = (wb[0] + 1) % NWB; return b
def wfrag(unit, ks, pub, tk):
    b = nbuf()
    va, off = lwin(unit * U + (ks & 3) * 1024, (vWA0, vWA1, vWA2))
    return b, [I(f'ds_read_b64_tr_b16 {vr(b,2)}, v{va} offset:{off}', rd=[pub, tk]), I(f'ds_read_b64_tr_b16 {vr(b+2,2)}, v{va} offset:{off+256}', rd=[pub, tk])]
def gemm_steps(kss, tiles, pub, tk, first=False):
    for ks in kss:
        fr = []
        for ti, acc in tiles:
            b, rds = wfrag(wunit(ks >> 2, ti), ks, pub, tk); q_(*rds); fr.append((acc, b))
        wk[0] += 1
        q_(I('WAITFOR ' + ', '.join(vr(b) for _, b in fr) + (f', {vr(vG+4*ks)}' if first else ''), wr=[f'@w{wk[0]}']))
        for acc, b in fr: q_(I(mf32(acc, vr(b), vr(vG + 4 * ks), '0' if ks == 0 else acc), rd=[f'@w{wk[0]}']))
A0, A1, A2 = 64, 96, 64
t0 = [(0, vr(A0, 16)), (3, vr(A0 + 16, 16))]
WCH = {1: [8], 2: [5, 8], 3: [4, 6, 8], 4: [2, 4, 6, 8]}[OPT['wchk']]
LEAD = OPT.get('lead', 3)
starts = [0] + WCH[:-1]
for ks in range(32):
    for st_, ce in zip(starts, WCH):
        if ks == max(0, 4 * st_ - LEAD): q_(*hcheck(ce, f'@pub{ce}'))
    if ks % 4 == 0:
        q_(*validate(29, [vG + 4 * k for k in range(ks, ks + 4)], hcaddr(sR, ks // 4) +
                     [f'buffer_load_dwordx4 {vr(vG+4*k)}, v{vL16}, {sr(SWS)}, s{sR} offen offset:{1024*(k&3)} sc1' for k in range(ks, ks + 4)], 16))
    if ks == 0:
        for x in ssl: q_(I(x, svc=32, lat=900, rd=['@hl19'], pri=0))
    gemm_steps([ks], t0, f'@pub{min(ce for ce in WCH if 4 * ce > ks)}', f'L{ks//8}')
    if ks % 8 == 7: q_(csignal(2 + ks // 8, [f'L{ks//8}'], 'b0' if ks == 31 else ''))
vNr, vIr = 16, 17
q_(f'v_max3_u32 v29, v{vSs}, v{vSs+1}, v{vSs+2}', f'v_max3_u32 v29, v29, v{vSs+3}, v{vSs+4}', f'v_max3_u32 v29, v29, v{vSs+5}, v{vSs+6}', f'v_max_u32 v29, v29, v{vSs+7}')
q_(rare_block(['v_cmp_eq_u32 vcc, -1, v29', 's_cbranch_vccnz'], spin(ssl, 's_waitcnt vmcnt(0)',
    [f'v_max3_u32 v29, v{vSs}, v{vSs+1}, v{vSs+2}', f'v_max3_u32 v29, v29, v{vSs+3}, v{vSs+4}', f'v_max3_u32 v29, v29, v{vSs+5}, v{vSs+6}', f'v_max_u32 v29, v29, v{vSs+7}', 'v_cmp_eq_u32 vcc, -1, v29']), lat=8))
for i in range(0, 8, 2): q_(f'v_add_f32 v{vSs+i}, v{vSs+i}, v{vSs+i+1}')
q_(f'v_add_f32 v{vSs}, v{vSs}, v{vSs+2}', f'v_add_f32 v{vSs+4}, v{vSs+4}, v{vSs+6}', f'v_add_f32 v{vSs}, v{vSs}, v{vSs+4}',
   f'v_mov_b32 v{vSs+1}, v{vSs}', f'v_permlane32_swap_b32 v{vSs+1}, v{vSs+1}', f'v_add_f32 v{vSs}, v{vSs}, v{vSs+1}',
   f'v_mov_b32 v{vSs+1}, {fh(1e-5)}', f'v_fmamk_f32 v{vIr}, v{vSs}, {fh(1/512)}, v{vSs+1}', f'v_rsq_f32 v{vNr}, v{vIr}', f'v_mul_f32 v{vNr}, {fh(-1.4426950408889634)}, v{vNr}')
def epilogue(p, g, u):
    for r in range(16):
        q_(f'v_mul_f32 v{u+r}, v{g+r}, v{u+r}', f'v_mul_f32 v{g+r}, v{vNr}, v{g+r}', f'v_exp_f32 v{g+r}, v{g+r}', f'v_fma_f32 v{g+r}, v{g+r}, v{vIr}, v{vIr}',
           f'v_rcp_f32 v{g+r}, v{g+r}', f'v_mul_f32 v{u+r}, v{u+r}, v{g+r}')
        if r & 1: q_(f'v_cvt_pk_bf16_f32 v{g+8*(r>>3)+((r&7)>>1)}, v{u+r-1}, v{u+r}')
        if r & 7 == 7:
            q_(B([I(f'buffer_store_dwordx4 {vr(g+8*(r>>3))}, v{vL16}, {sr(SWS)}, s{(sActW, sAct1, sAct3)[p]} offen offset:{1024*(r>>3)} sc1', wr=[f'@as{p}+{OPT["lv"]}', f'@as{p}'], rd=['@pub11'], pri=0)] +
                 (stampi('p2') if p == 2 and r == 15 else [])))
t1 = [(1, vr(A1, 16)), (4, vr(A1 + 16, 16))]
for ks in range(32):
    if ks == min(OPT['c11'], 27): q_(*hcheck(11, '@pub11')); epilogue(0, A0, A0 + 16)
    gemm_steps([ks], t1, '@pub8' if ks < 28 else '@pub11', f'L{4+ks//8}')
    if ks % 8 == 7:
        x = csignal(6 + ks // 8, [f'L{4+ks//8}'], 'b1' if ks == 31 else '')
        q_(x)
epilogue(1, A1, A1 + 16)
t2 = [(2, vr(A2, 16)), (5, vr(A2 + 16, 16))]
for ks in range(32):
    if ks == OPT['cfl']:
        q_(I(fl, lat=700, rd=[f'@w{wk[0]}'], pri=0), rare_block(['v_cmp_gt_u32 vcc, 2, v31', 's_cbranch_vccnz'], spin([fl], 's_waitcnt vmcnt(0)', ['v_cmp_gt_u32 vcc, 2, v31'], 28, OPT['bo']), lat=8, wr=['@pub13']))
    if ks == 24: q_(*hcheck(15, '@pub15'))
    gemm_steps([ks], t2, '@pub11', f'L{8+ks//8}')
    if ks % 8 == 7 and ks < 31: q_(csignal(10 + ks // 8, [f'L{8+ks//8}'], ''))
NR = 32; vAct = 128
def actaddr(d, n):
    if n < 32: return [f's_add_u32 s{d}, s{sAq+((n>>2)&3)}, {(n>>4)*32768 + (n&3)*2048:#x}']
    return [f's_bfe_u64 s[{sM}:{sM+1}], s[{sTab}:{sTab+1}], {0x40000 + 4*(n-32):#x}', f's_lshl_b32 s{d}, s{sM}, 11', f's_add_u32 s{d}, s{d}, s{sActR}', f's_add_u32 s{d}, s{d}, 0x10000']
def acti(n):
    so = [] if (n < 32 and n & 1) else actaddr(sAc, n)
    return B(so + [I(f'buffer_load_dwordx4 {vr(vAct+4*(n%NR))}, v{vL16}, {sr(SWS)}, s{sAc} offen offset:{2048 if (n < 32 and n & 1) else 0} sc1', svc=70,
                     rd=['@pub13', f'@as{n//16}+{OPT["lv"]}'], wr=['@al'])], lat=900)
for n in range(16): q_(acti(n))
for n in range(16, 32): q_(acti(n))
def dfrag(n, ct):
    b = nbuf()
    va, off = lwin(dpos(n), (vDA + 3 * ct, vDA + 3 * ct + 1, vDA + 3 * ct + 2))
    tk = ['@pub15' if DQ[n] <= 6 else ('@pub18' if DQ[n] <= 9 else '@pub20'), 'L11' if n < 4 else 'LD']
    return b, [I(f'ds_read_b64_tr_b16 {vr(b,2)}, v{va} offset:{off}', rd=tk), I(f'ds_read_b64_tr_b16 {vr(b+2,2)}, v{va} offset:{off+512}', rd=tk)]
pre = {}
for n in range(4):
    for ct in range(2):
        b, rds = dfrag(n, ct); pre[(n, ct)] = b; q_(*rds)
q_(csignal(13, ['L11'], 'b2'))
epilogue(2, A2, A2 + 16)
vO = 96; vRs = 64; vRf = 80
q_(f'v_lshlrev_b32 v9, 11, v{vHb}', f'v_lshl_add_u32 v9, v{vI}, 4, v9',
   B([f's_lshl_b32 s{sHcR}, s{sCls}, 15', f's_lshl_b32 s{sT4}, s{sCgp}, 12', f's_add_u32 s{sHcR}, s{sHcR}, s{sT4}', f's_lshl_b32 s{sT4}, s{sK}, 10', f's_add_u32 s{sHcR}, s{sHcR}, s{sT4}',
      f's_add_u32 s{sHcR}, s{sHcR}, {WS_HC:#x}']), B([f's_mul_i32 s{sSsR}, s{sCls}, {17*128}', f's_add_u32 s{sSsR}, s{sSsR}, {WS_SS:#x}']))
ml = f'buffer_load_dword v{vRs+8}, v{vGs}, {sr(SWS)}, s{sSsR} offen sc1'
q_(I(f'buffer_load_dwordx4 {vr(vRs)}, v9, {sr(SWS)}, s{sHcR} offen sc1', lat=900, rd=['@pub13'], pri=0), I(f'buffer_load_dwordx4 {vr(vRs+4)}, v9, {sr(SWS)}, s{sHcR} offen offset:512 sc1', lat=900, rd=['@pub13'], pri=0),
   I(ml, lat=900, rd=['@pub13'], pri=0))
for n in range(43):
    if n == min(m for m in range(43) if DQ[m] > 6) - LEAD: q_(*hcheck(18, '@pub18'))
    if n == min(m for m in range(43) if DQ[m] > 9) - LEAD: q_(*hcheck(20, '@pub20'))
    if n % 4 == 0:
        ns = range(n, min(n + 4, 43))
        q_(*boosted(validate(29, [vAct + 4 * (m % NR) for m in ns], [x for m in ns for x in actaddr(sR, m) +
                     [f'buffer_load_dwordx4 {vr(vAct+4*(m%NR))}, v{vL16}, {sr(SWS)}, s{sR} offen sc1']], 8 if n < 32 else 0)))
    fr = []
    for ct in range(2):
        if (n, ct) in pre: b = pre[(n, ct)]
        else:
            b, rds = dfrag(n, ct); q_(*rds)
        fr.append((ct, b))
    wk[0] += 1
    q_(*boosted([I('WAITFOR ' + ', '.join(vr(b) for _, b in fr) + f', {vr(vAct+4*(n%NR))}', wr=[f'@w{wk[0]}'])]))
    for ct, b in fr:
        D = vr(vO + 16 * ct, 16)
        q_(I(mf32(D, vr(b), vr(vAct + 4 * (n % NR)), '0' if n == 0 else D), rd=[f'@w{wk[0]}']))
    if n + NR < 43: q_(acti(n + NR))
q_(*validate(30, [vRs, vRs + 4, vRs + 8], [f'buffer_load_dwordx4 {vr(vRs)}, v9, {sr(SWS)}, s{sHcR} offen sc1', f'buffer_load_dwordx4 {vr(vRs+4)}, v9, {sr(SWS)}, s{sHcR} offen offset:512 sc1', ml], None))
for c in range(16):
    src = vRs + 4 * ((c >> 2) & 1) + 2 * (c >> 3) + ((c & 3) >> 1)
    q_(f'v_and_b32 v{vRf+c}, 0xffff0000, v{src}' if c & 1 else f'v_lshlrev_b32 v{vRf+c}, 16, v{src}', f'v_add_f32 v{vRf+c}, v{vRf+c}, v{vRs+8}')
RU = [DU[n] for n in range(4, 8)]
rtab = sum(u_ << (8 * i) for i, u_ in enumerate(RU))
q_(f'v_lshlrev_b32 v19, 16, v{vI}', f'v_lshl_add_u32 v19, v{vHb}, 6, v19',
   B([f's_lshl_b32 s{sT}, s{sCgp}, 7', f's_lshl_b32 s{sT4}, s{sK}, 5', f's_add_u32 s{sT}, s{sT}, s{sT4}', f's_lshl_b32 s{sT4}, s{sCls}, 10', f's_add_u32 s{sT}, s{sT}, s{sT4}']),
   B([f's_lshl_b32 s{sT4}, s{sW}, 3', f's_lshr_b32 s{sT4}, {rtab:#x}, s{sT4}', f's_and_b32 s{sT4}, s{sT4}, 0xff', f's_lshl_b32 s{sT4}, s{sT4}, 12', f'v_add_u32 v22, s{sT4}, v{vL16}']),
   B([f's_xor_b32 s{sT4}, s{sW}, 2', f's_lshl_b32 s{sT4}, s{sT4}, 3', f's_lshr_b32 s{sT4}, {rtab:#x}, s{sT4}', f's_and_b32 s{sT4}, s{sT4}, 0xff', f's_lshl_b32 s{sT4}, s{sT4}, 12', f'v_add_u32 v23, s{sT4}, v{vL16}']))
Q.insert(max(i for i, x in enumerate(Q) if x.cls == 'mfma') - 40, mk(barrier(rd=['@pub20', f'@w{wk[0]-10}'], wr=['@late'])))
Q[max(i for i, x in enumerate(Q) if x.cls == 'mfma')].R.add('@late')
e(*schedule(Q, verbose=True, ds_lat=OPT['dsl'], vm_order=False, dump=open(sys.argv[1] + '.plan', 'w')))
stamp('p3m')
def red(own, other):
    o = [f'ds_write_b128 v22, {vr(vO+16*other+4*i)} offset:{1024*i}' for i in range(4)]
    o += [f'v_pk_add_f32 {vr(vRf+2*i,2)}, {vr(vRf+2*i,2)}, {vr(vO+16*own+2*i,2)}' for i in range(8)]
    return o
e(cond_block([f's_cmp_lg_u32 s{sK}, 0', 's_cbranch_scc1'], red(0, 1)))
e(cond_block([f's_cmp_eq_u32 s{sK}, 0', 's_cbranch_scc1'], red(1, 0)))
e('s_waitcnt lgkmcnt(0)', 's_barrier')
for i in range(4): e(f'ds_read_b128 {vr(32+4*i)}, v23 offset:{1024*i}')
stamp('red')
for h in range(2):
    for i in range(4 * h, 4 * h + 4): e(f'v_pk_add_f32 {vr(32+2*i,2)}, {vr(32+2*i,2)}, {vr(vRf+2*i,2)}')
    for i in range(4 * h, 4 * h + 4): e(f'v_cvt_pk_bf16_f32 v{56+i}, v{32+2*i}, v{33+2*i}')
    e(f'buffer_store_dwordx4 {vr(56+4*h)}, v19, {sr(SOUT)}, s{sT} offen offset:{16*h}')
def dump_stamps(base):
    e('s_waitcnt lgkmcnt(0)', f's_lshl_b32 s{sT}, s2, 2', f's_add_u32 s{sT}, s{sT}, s{sW}', f's_lshl_b32 s{sT}, s{sT}, 5', f's_add_u32 s{sT}, s{sT}, {base:#x}',
      's_mov_b64 exec, 1', 'v_mov_b32 v21, 0')
    for i in range(7): e(f'v_mov_b32 v20, s{sSt+2*i}', f'buffer_store_dword v20, v21, {sr(SWS)}, s{sT} offen offset:{4*i}')
    e('v_mov_b32 v20, s40', f'buffer_store_dword v20, v21, {sr(SWS)}, s{sT} offen offset:28')
if OPT['stamps']:
    e('s_waitcnt vmcnt(0)')
    stamp('end'); stamp('end2'); stamp('end3')
    dump_stamps(WS_ST)
e('L_exit:')
def add_trace(P, regs, lo_pred, hi_pred, pred, base, fname):
    flat = add_waits(flatten(P))
    lo = [i for i, x in enumerate(flat) if lo_pred(x)][0]; hi = [i for i, x in enumerate(flat) if hi_pred(x)][-1]
    out = []; names = []
    def tp(label):
        n = len(names)
        if n >= 64 * len(regs): return []
        names.append(label)
        return [I('s_memrealtime s[90:91]'), I('s_waitcnt lgkmcnt(0)'), I(f'v_writelane_b32 v{regs[n//64]}, s90, {n%64}')]
    nm = 0
    for i, x in enumerate(flat):
        if i == hi:
            out += tp('end')
            out += [I(f's_lshl_b32 s90, s2, 2'), I(f's_add_u32 s90, s90, s{sW}'), I('s_lshl_b32 s90, s90, 10'), I(f's_add_u32 s90, s90, {base:#x}'), I(f'v_lshlrev_b32 v{vL}, 2, v{vL}')]
            for k, r in enumerate(regs): out.append(I(f'buffer_store_dword v{r}, v{vL}, {sr(SWS)}, s90 offen offset:{256*k}', cond=9999))
        out.append(x)
        if x.cls == 'mfma' and not x.cond: nm += 1
        if i == lo: out += tp('begin')
        elif lo < i < hi and not x.cond and pred(x, nm): out += tp(f'[{nm}] ' + x.text[:70])
    open(fname, 'w').write('\n'.join(names))
    return out
if OPT.get('trace'):
    P = add_trace(P, (0,), lambda x: x.op == 's_setprio', lambda x: x.text == 'L_exit:',
                  lambda x, nm: x.op == 's_barrier' or (x.label and x.text[:3] in ('L_x', 'L_b')) or (x.cls == 'vmem' and x.store) or (x.cls == 'mfma' and nm > 120 and (nm - 120) % 32 == 0), WS_ST, sys.argv[1] + '.names')
bodyC = emit(P, OUT)

P = []; OUT = {}
e('L_helper:', f's_sub_u32 s{sW}, s{sW}, 4')
vDw, vDd, vPf, vPd, vPo = 3, 4, 5, 7, 252
e('v_mov_b32 v28, 0', f'v_lshlrev_b32 v22, 2, v{vJ}', f'v_add_u32 v22, {LDS_SY:#x}, v22', 'ds_write_b32 v22, v28')
e(f's_lshr_b32 s{sT2}, s2, 3', f's_lshl_b32 s{sT2}, s{sT2}, 2', f's_add_u32 s{sT2}, s{sT2}, s{sW}',
  f'v_mul_u32_u24 v{vPf}, {ROWW}, v{vKq}', f'v_lshl_add_u32 v{vPf}, v{vJ}, 7, v{vPf}',
  f's_and_b32 s{sT}, s{sChi}, 3', f's_mul_i32 s{sT}, s{sT}, 172', f's_add_u32 s{sT}, s{sT}, 8', f's_lshr_b32 s{sT}, s{sT}, 4', f's_lshl_b32 s{sPf}, s{sT}, 6',
  f's_mul_i32 s{sT}, s{sT2}, {4*ROWW}', f's_add_u32 s{sPf}, s{sPf}, s{sT}', f's_mul_i32 s{sPd}, s{sT2}, {11*1024}')
for i in range(4): e(f'v_mov_b32 v{vPo+i}, -1')
e(f'v_lshrrev_b32 v17, 2, v{vL}', f'v_lshlrev_b32 v{vPd}, 10, v17', f'v_and_b32 v22, 3, v{vL}', f'v_lshl_add_u32 v{vPd}, v22, 7, v{vPd}',
  f'v_lshrrev_b32 v17, 3, v{vL}', 'v_lshlrev_b32 v17, 15, v17', f'v_and_b32 v22, 7, v{vL}', 'v_lshl_add_u32 v17, v22, 4, v17', 'v_add_u32 v12, 0x40000, v17')
e('s_waitcnt lgkmcnt(0)')
e(*srd(SWG, 36, 512 * ROWW)); e(*srd(SWS, 46, WS_SIZE)); e(*srd(SWU, 38, 512 * ROWW)); e(*srd(SWD, 40, 1376 * 1024)); e(*srd(SDBG, 44, 256))
e(*common_idx())
wpf = lambda sd, d: ['s_mov_b32 exec_lo, 0x007f007f', 's_mov_b32 exec_hi, 0x007f007f', f'buffer_load_dword v{d}, v{vPf}, {sr(sd)}, s{sPf} offen', 's_mov_b64 exec, -1']
vTf, vTb, vSg, vM = 24, 25, 26, 64
G = [f's_lshl_b32 s{sT4}, s{sW}, 4', f'v_add_u32 v32, s{sT4}, v{vJ}', f'v_cvt_f32_u32 v{vTf}, v32', f'v_mul_f32 v{vTf}, {fh(-1/2048)}, v{vTf}',
     f'v_lshlrev_b32 v33, 5, v{vKq}', f'v_add_u32 v33, s{sS2}, v33', f'v_cvt_f32_u32 v{vTb}, v33', f'v_mul_f32 v{vTb}, v{vTb}, v{vTf}',
     f'v_and_b32 v32, 1, v{vJ}', f'v_mul_u32_u24 v{vSg}, 0x8000, v32', f'v_lshl_or_b32 v{vSg}, v{vSg}, 16, v{vSg}']
for m in range(4):
    t = 36 + 6 * m; d = vM + m
    for h in range(2):
        jj = 2 * m + h
        G += [f'v_fmamk_f32 v{t+h}, v{vTf}, {fh(float(512*(jj>>2)+128*(jj&3)))}, v{vTb}', f'v_cos_f32 v{t+2+h}, v{t+h}', f'v_sin_f32 v{t+4+h}, v{t+h}']
    G += [f'v_cvt_pk_bf16_f32 v{d}, v{t+2}, v{t+3}', f'v_cvt_pk_bf16_f32 v{d+4}, v{t+4}, v{t+5}', f'v_xor_b32 v{d+8}, 0x80008000, v{d+4}']
    G += [f'v_xor_b32 v{d+12+4*i}, v{vSg}, v{d+4*i}' for i in range(3)]
e(*schedule(G, lookahead=40))
e(f's_mul_i32 s{sT}, s{sW}, 6144', f's_add_u32 s{sT}, s{sT}, {LDS_M:#x}', f'v_add_u32 v22, s{sT}, v{vL16}')
for i in range(6): e(f'ds_write_b128 v22, {vr(vM+4*i)} offset:{1024*i}')
e(f's_lshl_b32 s{sT}, s{sW}, 2', f's_add_u32 s{sT}, s{sT}, {LDS_SY:#x}', f'v_mov_b32 v{vSw}, s{sT}',
  f's_and_b32 s{sT}, s{sCgp}, 4', f's_lshl_b32 s{sT}, s{sT}, 7', f's_add_u32 s{sPd}, s{sPd}, s{sT}')
e(f'v_bfe_u32 v22, v{vL}, 4, 1', 'v_lshlrev_b32 v23, 3, v22', f'v_lshl_add_u32 v23, v{vHb}, 2, v23', f'v_bfe_u32 v22, v{vL}, 2, 2', 'v_add_u32 v23, v23, v22',
  f'v_mul_u32_u24 v{vDw}, {ROWW}, v23', f'v_and_b32 v22, 3, v{vL}', f'v_lshl_add_u32 v{vDw}, v22, 4, v{vDw}',
  f's_lshl_b32 s{sWoff}, s{sT0}, 6', f's_mul_i32 s{sWc}, s{sW}, {16*ROWW}', f's_add_u32 s{sWoff}, s{sWc}, s{sWoff}', f's_mov_b32 s{sWc}, s{sWoff}', f's_mov_b32 s{sWst}, {64*ROWW}', f's_lshl_b32 s{sLW}, s{sW}, 10',
  f'v_lshrrev_b32 v22, 3, v{vL}', 'v_and_b32 v23, 3, v22', 'v_lshrrev_b32 v24, 2, v22', 'v_lshl_add_u32 v23, v24, 3, v23', f'v_lshlrev_b32 v{vDd}, 10, v23',
  'v_and_b32 v22, 2, v22', f'v_and_b32 v23, 7, v{vL}', 'v_xor_b32 v22, v22, v23', f'v_lshl_add_u32 v{vDd}, v22, 4, v{vDd}',
  f's_lshr_b32 s{sDo}, s{sW}, 1', f's_lshl_b32 s{sDo}, s{sDo}, 14', f's_and_b32 s{sT}, s{sW}, 1', f's_lshl_b32 s{sT}, s{sT}, 12', f's_add_u32 s{sDo}, s{sDo}, s{sT}',
  f's_lshl_b32 s{sT}, s{sCgp}, 7', f's_add_u32 s{sDo}, s{sDo}, s{sT}')
e('s_waitcnt lgkmcnt(0)', 's_barrier')
stamp('hb0')
e(f'buffer_store_dwordx4 {vr(vPo)}, v17, {sr(SWS)}, s{sGs} offen sc1', f'buffer_store_dwordx4 {vr(vPo)}, v12, {sr(SWS)}, s{sGs} offen sc1',
  f's_cmp_eq_u32 s{sW}, 0', f's_cselect_b32 s{sR}, s{sFlW}, {WS_SIZE:#x}', 's_mov_b64 exec, 0xffffffff', I(f'buffer_store_dword v28, v{vS4}, {sr(SWS)}, s{sR} offen sc1', wr=['init']))
if OPT['ackw']: e('s_waitcnt vmcnt(0)')
e(*wpf(SWG, 30))
if not OPT.get('pfo'): e(*wpf(SWU, 31))
def last_of_four(word, rd, body):
    e('v_mov_b32 v28, 1', 's_mov_b64 exec, 1', I(f'ds_add_rtn_u32 v29, v{vSy}, v28 offset:{word}', rd=rd), 's_waitcnt lgkmcnt(0)', 'v_cmp_ne_u32 vcc, 3, v29')
    e(cond_block(['s_cbranch_vccnz'], body))
    e('s_mov_b64 exec, -1')
e(f's_and_b32 s{sR}, s2, 3', f's_lshl_b32 s{sR}, s{sR}, 6', f's_lshl_b32 s{sT}, s{sW}, 8', f's_add_u32 s{sR}, s{sR}, s{sT}', 'v_mov_b32 v28, 1')
if OPT['early']:
    last_of_four(40, ['init'], [f's_and_b32 s{sR}, s{sR}, 0xff', f'buffer_atomic_add v28, v{vL}, {sr(SDBG)}, s{sR} offen sc1'])
    e('s_barrier')
else:
    e(I('s_barrier', rd=['init']))
    e('s_mov_b64 exec, 1', f'buffer_atomic_add v28, v{vL}, {sr(SDBG)}, s{sR} offen sc1', 's_mov_b64 exec, -1')
stamp('hb1')
wdp = ['s_mov_b32 exec_hi, 0xfff', f'buffer_load_dword v15, v{vPd}, {sr(SWD)}, s{sPd} offen', 's_mov_b64 exec, -1']
e(I('s_nop 0', rd=['v31']))
e(*[I(x) for x in spin([f'ds_read_b32 v29, v{vSy} offset:32'], 's_waitcnt lgkmcnt(0)', ['v_cmp_gt_u32 vcc, 4, v29'], None, 1)])
PO = [I(f'buffer_store_dwordx4 {vr(vPo)}, v{vL16}, {sr(SWS)}, s{sHcW} offen sc1'), I(f'buffer_store_dwordx4 {vr(vPo)}, v{vL16}, {sr(SWS)}, s{sHcW} offen offset:1024 sc1'),
      I(f'buffer_store_dword v{vPo}, v{vSo}, {sr(SWS)}, s{sSsW} offen sc1', wr=['poiH'])]
PA = [I(f'buffer_store_dwordx4 {vr(vPo)}, v{vL16}, {sr(SWS)}, s{(sActW, sAct1, sAct3)[i>>1]} offen offset:{1024*(i&1)} sc1', wr=['poiA']) for i in range(6)]
def cwait(level):
    t = ['v_min3_u32 v24, v24, v25, v26', 'v_min_u32 v24, v24, v27', f'v_cmp_gt_u32 vcc, {level}, v24']
    e(*[I(x) for x in spin([f'ds_read_b128 v[24:27], v{vSy} offset:16'], 's_waitcnt lgkmcnt(0)', t, None, 1)])
def publish(level, rd):
    e(f'v_mov_b32 v28, {level}', I(f'ds_write_b32 v{vSw}, v28', rd=rd))
m0v = [None]
def setm0(val):
    d = None if m0v[0] is None else val - m0v[0]
    m0v[0] = val
    if d is not None and -32768 <= d < 32768: return f's_addk_i32 m0, {d & 0xffff:#x}'
    return f's_add_u32 m0, s{sLW}, {val:#x}'
TILES = [(SWG, 0, 0), (SWG, 1, 1), (SWG, 2, 2), (SWU, 0, 3), (SWU, 1, 4)]
def wrow(d, c, extra=0):
    return [f's_lshl_b32 s{d}, s{sRo}, 1', f's_add_u32 s{d}, s{d}, {c+1}', f's_and_b32 s{d}, s{d}, 7', f's_mul_i32 s{d}, s{d}, s{sWst}', f's_add_u32 s{d}, s{d}, s{sWoff}'] + \
           ([f's_add_u32 s{d}, s{d}, {extra}'] if extra else [])
pend = list(WCH)
e(*PO)
if OPT['wdq'] < 0: e(*wdp)
for c in range(8):
    if c == 5: stamp('hw4'); cwait(1)
    for n, (sd, p, ti) in enumerate(TILES):
        adv = wrow(sWc, c) + [f's_add_u32 s{sC2}, s{sWc}, s{sC3}'] if n == 0 else []
        if (c, ti) == (7, 4): continue
        e(setm0((5 * c + ti) * U - p * 64), *adv, I(f'buffer_load_dwordx4 v{vDw}, {sr(sd)}, s{sC2 if p == 2 else sWc} offen offset:{p*64} lds', wr=[f'W{c}']))
        if n in (2, 4): e(f's_waitcnt vmcnt({OPT["thr"]})')
    if c == 0: last_of_four(44, ['poiH'], [f'buffer_store_dword v28, v{vL}, {sr(SWS)}, s{sFlW} offen sc1'])
    if pend and pend[0] == c:
        publish(c, [f'W{c-1}']); pend.pop(0)
publish(8, ['W7'])
stamp('hw7')
for q, step in enumerate(PLAN):
    cwait(2 + q)
    if q == OPT['wdq']: e(*wdp)
    if q == 4: stamp('hd1')
    if q and 8 + q in (11, 15, 18): publish(8 + q, [f'S{q-1}', 'poiA'])
    if q == 3: last_of_four(48, [], ['v_mov_b32 v28, 2', f'buffer_store_dword v28, v{vL}, {sr(SWS)}, s{sFlW} offen sc1'])
    for it, u_ in step:
        if it[0] == 'w': so, sd, vo = wrow(sDc, it[1], (it[2]-3)*64) + ([f's_add_u32 s{sDc}, s{sDc}, s{sC3}'] if it[2] == 5 else []), SWU, vDw
        else:
            n = it[1]
            so = [f's_lshl_b32 s{sM}, s{sRo}, 2', f's_xor_b32 s{sM}, s{sM}, {n & 15}'] if n < 32 else [f's_bfe_u64 s[{sM}:{sM+1}], s[{sTab}:{sTab+1}], {0x40000 + 4*(n-32):#x}']
            so += [f's_mul_i32 s{sDc}, s{sM}, 43', f's_add_u32 s{sDc}, s{sDc}, {8 + 16*(n>>4)}', f's_lshr_b32 s{sDc}, s{sDc}, 4', f's_lshl_b32 s{sDc}, s{sDc}, 15', f's_add_u32 s{sDc}, s{sDc}, s{sDo}']
            sd, vo = SWD, vDd
        e(setm0(u_ * U), *so, I(f'buffer_load_dwordx4 v{vo}, {sr(sd)}, s{sDc} offen lds', wr=[f'S{q}']))
    if q == OPT['paq']: e(*PA)
publish(20, ['S11'])
if OPT['stamps']:
    stamp('hend'); e('s_mov_b32 s40, 0'); dump_stamps(WS_ST + 0x8000)
e('L_hend:')
if OPT.get('trace'):
    P = add_trace(P, (250, 251), lambda x: x.text == 'L_helper:', lambda x: x.text == 'L_hend:',
                  lambda x, nm: x.op == 's_barrier' or (x.label and x.text[:3] in ('L_x', 'L_c')) or (x.op == 's_waitcnt' and 'vmcnt' in x.text) or x.op == 'ds_write_b32', WS_ST + 0x100000, sys.argv[1] + '.hnames')
bodyH = emit(P, OUT)

hdr = open('cdna_kernels/' + NAME + '.s.ref').read().split('; Override launch')[0]
src = hdr + f'''; @launch grid=(256,1,1) block=(512,1,1) lds=163840
.amdgcn_target "amdgcn-amd-amdhsa--gfx950"
.text
.globl {NAME}_kernel
.p2align 8
.type {NAME}_kernel,@function
{NAME}_kernel:
{bodyC}
{bodyH}
L_end:
.section .rodata,"a"
.p2align 6
.amdhsa_kernel {NAME}_kernel
  .amdhsa_next_free_vgpr 256
  .amdhsa_next_free_sgpr 102
  .amdhsa_accum_offset 256
  .amdhsa_group_segment_fixed_size 0
  .amdhsa_kernarg_size 96
  .amdhsa_user_sgpr_count 2
  .amdhsa_user_sgpr_kernarg_segment_ptr 1
  .amdhsa_system_sgpr_workgroup_id_x 1
.end_amdhsa_kernel
'''
open(sys.argv[1], 'w').write(src)
print('lines', src.count('\n'))
```
